```python
import torch

def _softmax(x, axis=-1):
    return torch.softmax(x, dim=axis)
def _gelu(x):
    return torch.nn.functional.gelu(x, approximate="tanh")
def _silu(x):
    return torch.nn.functional.silu(x)
def _sigmoid(x):
    return torch.sigmoid(x)
def _layernorm(x, axis=-1, eps=1e-5):
    m = x.mean(dim=axis, keepdim=True)
    v = x.var(dim=axis, keepdim=True, unbiased=False)
    return (x - m) / torch.sqrt(v + eps)
def _scatter_add(tgt, idx, src, axis=0):
    return tgt.clone().index_add_(axis, idx, src)
def _segment_sum(src, seg, n):
    out = torch.zeros((n,) + src.shape[1:], dtype=src.dtype)
    return out.index_add_(0, seg, src)
def _pad(x, pw):
    flat = tuple(v for pair in reversed(pw) for v in pair)
    return torch.nn.functional.pad(x, flat)

kernel_name = 'parallel_sum__ssm_conv_s4__dense_activation_gelu__prompt'

def setup_inputs():

    _w = (lambda a: (lambda t: t.to(torch.bfloat16) if t.is_floating_point() else t)(torch.as_tensor(a)))
    def _A_setup():
        B, L, D, N = 1, 2048, 640, 128
        A_re = -(lambda _x: torch.exp(torch.as_tensor(_x)))((lambda *s: torch.randn(*s, dtype=torch.bfloat16) * 6.4)(D, N))
        A_im = torch.pi * (lambda *s: torch.randn(*s, dtype=torch.bfloat16) * 0.05)(D, N)
        B_re = (lambda *s: torch.randn(*s, dtype=torch.bfloat16) * 0.1)(D, N)
        B_im = (lambda *s: torch.randn(*s, dtype=torch.bfloat16) * 0.1)(D, N)
        C_re = (lambda *s: torch.randn(*s, dtype=torch.bfloat16) * 0.1)(D, N)
        C_im = (lambda *s: torch.randn(*s, dtype=torch.bfloat16) * 0.1)(D, N)
        log_dt = (lambda *s: torch.randn(*s, dtype=torch.bfloat16) * 0.05)(D) * 0.5 - 4.0
        Dskip = (lambda *s: torch.randn(*s, dtype=torch.bfloat16) * 0.05)(D)
        return {
            "u": _w((lambda *s: torch.randn(*s, dtype=torch.bfloat16) * 0.05)(B, L, D)),
            "A_re": _w(A_re),
            "A_im": _w(A_im),
            "B_re": _w(B_re),
            "B_im": _w(B_im),
            "C_re": _w(C_re),
            "C_im": _w(C_im),
            "log_dt": _w(log_dt),
            "Dskip": _w(Dskip),
        }
    _A_in = _A_setup()

    def _B_setup():
        B, S, D, F = 1, 2048, 640, 1728
        return {
            "x": _w((lambda *s: torch.randn(*s, dtype=torch.bfloat16) * 0.05)(B, S, D)),
            "w1": _w((lambda *s: torch.randn(*s, dtype=torch.bfloat16) * 0.8)(D, F) * (D ** -0.5)),
            "b1": _w((lambda *s: torch.randn(*s, dtype=torch.bfloat16) * 0.2)(F) * 0.01),
            "w2": _w((lambda *s: torch.randn(*s, dtype=torch.bfloat16) * 0.2)(F, D) * (F ** -0.5)),
            "b2": _w((lambda *s: torch.randn(*s, dtype=torch.bfloat16) * 0.2)(D) * 0.01),
        }
    _B_in = _B_setup()

    return {
        "A_u": _A_in["u"],
        "A_A_re": _A_in["A_re"],
        "A_A_im": _A_in["A_im"],
        "A_B_re": _A_in["B_re"],
        "A_B_im": _A_in["B_im"],
        "A_C_re": _A_in["C_re"],
        "A_C_im": _A_in["C_im"],
        "A_log_dt": _A_in["log_dt"],
        "A_Dskip": _A_in["Dskip"],
        "B_x": _B_in["x"],
        "B_w1": _B_in["w1"],
        "B_b1": _B_in["b1"],
        "B_w2": _B_in["w2"],
        "B_b2": _B_in["b2"],
    }

def reference(A_u, A_A_re, A_A_im, A_B_re, A_B_im, A_C_re, A_C_im, A_log_dt, A_Dskip, B_x, B_w1, B_b1, B_w2, B_b2):
    def _A_ref(u, A_re, A_im, B_re, B_im, C_re, C_im, log_dt, Dskip):
        Bsz, L, D = u.shape
        dt = torch.exp(log_dt)[:, None]
        A = A_re + 1j * A_im
        Bc = B_re + 1j * B_im
        Cc = C_re + 1j * C_im
        logdA = dt * A
        dB = dt * Bc
        l = (lambda x, dt: x.to(dt))(torch.arange(L), A_re.dtype)
        P = torch.exp(logdA[:, :, None] * l[None, None, :])
        K = torch.einsum("dn,dnl,dn->dl", Cc, P, dB).real
        L2 = 2 * L
        Kp = _pad(K, ((0, 0), (0, L)))
        up = (lambda x, *d: x.permute(*d))(u, 0, 2, 1)
        up = _pad(up, ((0, 0), (0, 0), (0, L)))
        Kf = (lambda x, axes=(-2,-1): torch.fft.rfft2(x.float(), dim=axes))(Kp[:, None, :], axes=(-2, -1))
        Uf = (lambda x, axes=(-2,-1): torch.fft.rfft2(x.float(), dim=axes))(up[:, :, None, :], axes=(-2, -1))
        Yf = Uf * Kf[None, :, :, :]
        y = (lambda x, s, axes=(-2,-1): torch.fft.irfft2(x, s=s, dim=axes).to(torch.bfloat16))(Yf, (1, L2), axes=(-2, -1))[:, :, 0, :L]
        y = (lambda x, *d: x.permute(*d))(y, 0, 2, 1) + u * Dskip[None, None, :]
        return y

    def _B_ref(x, w1, b1, w2, b2):
        h = torch.einsum("bsd,df->bsf", x, w1) + b1
        h = _gelu(h)
        return torch.einsum("bsf,fd->bsd", h, w2) + b2

    x = A_u
    xn = _layernorm(x, axis=-1)
    return x + _A_ref(xn, A_A_re, A_A_im, A_B_re, A_B_im, A_C_re, A_C_im, A_log_dt, A_Dskip) + _B_ref(xn, B_w1, B_b1, B_w2, B_b2)
```

```python
import re

TRANS = ("v_exp_f32","v_log_f32","v_rcp_f32","v_rsq_f32","v_sqrt_f32","v_sin_f32","v_cos_f32","v_rcp_iflag_f32")
def regs_of(tok):
    tok = tok.strip()
    neg = re.sub(r"^-|^\||\|$", "", tok)
    m = re.fullmatch(r"abs\((.*)\)", neg)
    if m: neg = m.group(1)
    tok = neg
    m = re.fullmatch(r"([vsa])(\d+)", tok)
    if m: return [(m.group(1), int(m.group(2)))]
    m = re.fullmatch(r"([vsa])\[(\d+):(\d+)\]", tok)
    if m: return [(m.group(1), i) for i in range(int(m.group(2)), int(m.group(3))+1)]
    if tok == "vcc": return [("s", 106), ("s", 107)]
    if tok == "vcc_lo": return [("s", 106)]
    if tok == "vcc_hi": return [("s", 107)]
    if tok == "exec": return [("s", 126), ("s", 127)]
    if tok == "m0": return [("s", 124)]
    return []

def split_ops(s):
    out = []; depth = 0; cur = ""
    for ch in s:
        if ch in "[(": depth += 1
        if ch in "])": depth -= 1
        if ch == "," and depth == 0:
            out.append(cur.strip()); cur = ""
        else:
            cur += ch
    if cur.strip(): out.append(cur.strip())
    return out

class I:
    __slots__ = ("text","mn","kind","dst","src","srcC","srcAB","passes","ws","label","wide_store","isbranch","ldsdma","addr_s")
    def __init__(self, text):
        self.text = text
        t = text.split(";")[0].strip()
        self.label = t.endswith(":")
        self.dst = set(); self.src = set(); self.srcC = set(); self.srcAB = set(); self.passes = 0; self.ws = 1
        self.wide_store = set(); self.isbranch = False; self.ldsdma = False; self.addr_s = set()
        if self.label or not t or t.startswith("."):
            self.mn = ""; self.kind = "none"; self.ws = 0; return
        parts = t.split(None, 1)
        mn = parts[0]; self.mn = mn
        rest = parts[1] if len(parts) > 1 else ""
        ops = split_ops(rest)
        if ops:
            last = ops[-1].split()
            mods = last[1:]; ops[-1] = last[0] if last else ""
        else:
            mods = []
        base = re.sub(r"_e32$|_e64$|_dpp$|_sdwa$", "", mn)
        R = lambda k: set(regs_of(ops[k])) if k < len(ops) else set()
        if mn == "s_nop":
            self.kind = "salu"; self.ws = int(ops[0], 0) + 1
        elif mn.startswith("v_mfma"):
            self.kind = "mfma"; self.dst = R(0); self.srcAB = R(1) | R(2); self.srcC = R(3); self.src = self.srcAB | self.srcC
            if "32x32x16" in mn or "32x32x8" in mn: self.passes = 8
            elif "16x16x32" in mn or "16x16x16" in mn: self.passes = 4
            elif "16x16x4_f32" in mn: self.passes = 8
            elif "32x32x2_f32" in mn: self.passes = 16
            else: raise ValueError("unknown mfma " + mn)
        elif mn.startswith("v_"):
            self.kind = "trans" if base in TRANS else "valu"
            if base.startswith("v_cmpx"):
                self.dst = R(0) | {("s",126),("s",127)}; self.src = R(1) | R(2)
            elif base.startswith("v_cmp"):
                self.dst = R(0); self.src = R(1) | R(2)
            elif base in ("v_add_co_u32","v_sub_co_u32","v_subrev_co_u32"):
                self.dst = R(0) | R(1); self.src = R(2) | R(3)
            elif base in ("v_addc_co_u32","v_subb_co_u32"):
                self.dst = R(0) | R(1); self.src = R(2) | R(3) | R(4)
            elif base.startswith("v_permlane") and "swap" in base:
                self.dst = R(0) | R(1); self.src = R(0) | R(1)
            elif base == "v_nop":
                pass
            else:
                self.dst = R(0)
                for k in range(1, len(ops)): self.src |= R(k)
                if base in ("v_fmac_f32","v_pk_fmac_f16","v_dot2c_f32_bf16","v_writelane_b32") or "d16" in base: self.src |= R(0)
                if base == "v_cndmask_b32" and len(ops) == 3: self.src |= {("s",106),("s",107)}
        elif mn.startswith("ds_"):
            self.kind = "ds"
            if mn.startswith("ds_read") or mn.startswith("ds_bpermute") or mn.startswith("ds_permute") or mn.startswith("ds_swizzle") or "_rtn" in mn:
                self.dst = R(0)
                for k in range(1, len(ops)): self.src |= R(k)
                if "d16" in mn: self.src |= R(0)
            else:
                for k in range(0, len(ops)): self.src |= R(k)
        elif mn.startswith("buffer_") or mn.startswith("global_"):
            self.kind = "vmem"
            lds = "lds" in mods or "_lds_" in mn
            self.ldsdma = lds
            if mn.startswith("buffer_wb") or mn.startswith("buffer_inv"):
                pass
            elif "load" in mn:
                k0 = 0 if lds else 1
                if not lds: self.dst = R(0)
                for k in range(k0, len(ops)): self.src |= R(k)
                if "d16" in mn: self.src |= R(0)
            elif "atomic" in mn:
                for k in range(0, len(ops)): self.src |= R(k)
                if "sc0" in mods:
                    self.dst = R(0)
            else:
                for k in range(0, len(ops)): self.src |= R(k)
                if "x4" in mn or "x3" in mn:
                    self.wide_store = R(0) if mn.startswith("buffer_") else R(1)
            self.addr_s = {r for r in self.src if r[0] == "s"}
        elif mn.startswith("s_"):
            self.kind = "salu"
            if mn.startswith("s_cbranch") or mn == "s_branch" or mn == "s_endpgm" or mn.startswith("s_setpc"):
                self.isbranch = True
            elif mn.startswith("s_cmp") or mn in ("s_waitcnt","s_barrier","s_setprio","s_sleep","s_bitcmp0_b32","s_bitcmp1_b32"):
                for k in range(0, len(ops)): self.src |= R(k)
            elif mn.startswith("s_load") or mn.startswith("s_buffer_load") or mn.startswith("s_mem") or mn.startswith("s_getreg") or mn.startswith("s_getpc"):
                self.kind = "smem" if not mn.startswith("s_get") else "salu"
                self.dst = R(0)
                for k in range(1, len(ops)): self.src |= R(k)
            else:
                self.dst = R(0)
                for k in range(1, len(ops)): self.src |= R(k)
                if "saveexec" in mn: self.dst |= {("s",126),("s",127)}
        else:
            raise ValueError("unknown instr: " + text)

def V(rs): return {r for r in rs if r[0] in "va"}
def S(rs): return {r for r in rs if r[0] == "s"}
EXEC = {("s",126),("s",127)}

def need(p, c):
    n = 0
    pv = p.kind in ("valu","trans")
    cv = c.kind in ("valu","trans")
    if pv and c.kind == "mfma" and (V(p.dst) & c.src): n = max(n, 2)
    if pv and c.kind == "mfma" and (p.dst & EXEC): n = max(n, 4)
    if p.kind == "mfma":
        P = p.passes
        xdl = "_f32_16x16x4_f32" not in p.mn and "32x32x2_f32" not in p.mn
        if c.kind == "mfma":
            if p.dst & c.srcAB: n = max(n, (P+4) if xdl else (P+2))
            if p.dst & c.srcC:
                if p.dst == c.srcC and p.passes == c.passes: n = max(n, 0)
                else: n = max(n, (P+2) if xdl else P)
            elif (p.dst & c.dst): n = max(n, P+2)
        elif cv:
            if p.dst & (c.src | c.dst): n = max(n, (P+4) if xdl else (P+2))
            if xdl and (p.srcC & c.dst): n = max(n, P-1)
        elif c.kind in ("vmem","ds"):
            if p.dst & (c.src | c.dst): n = max(n, (P+4) if xdl else (P+2))
    if p.kind == "trans" and c.kind in ("valu",) and (p.dst & c.src): n = max(n, 1)
    if p.kind == "trans" and c.kind in ("vmem","ds","trans") and (p.dst & c.src): n = max(n, 1)
    if pv and S(p.dst):
        if c.kind == "vmem" and (S(p.dst) & c.addr_s): n = max(n, 5)
        if cv and (S(p.dst) - EXEC) & c.src:
            n = max(n, 4 if c.mn.startswith("v_readlane") or c.mn.startswith("v_writelane") else 2)
        if cv and (p.dst & EXEC) and (c.mn.startswith("v_readlane") or c.mn.startswith("v_readfirstlane") or c.mn.startswith("v_writelane") or c.mn.startswith("v_permlane")): n = max(n, 4)
        if cv and (p.dst & EXEC) and "dpp" in c.text: n = max(n, 5)
        if c.kind == "salu" and (S(p.dst) & c.src): n = max(n, 3)
    if pv and cv and (V(p.dst) & c.src):
        if c.mn.startswith("v_readlane") or c.mn.startswith("v_readfirstlane"): n = max(n, 1)
        if c.mn.startswith("v_permlane"): n = max(n, 2)
        if "dpp" in c.text or "row_" in c.text or "quad_perm" in c.text: n = max(n, 2)
        if ("op_sel" in p.text or "sdwa" in p.text or "dst_sel" in p.text) : n = max(n, 1)
    if p.mn.startswith("v_dot") and (V(p.dst) & (c.src | c.dst)):
        if not (c.mn == p.mn and c.text.split(",")[-1].split()[0].strip() == p.text.split()[1].rstrip(",") and not any(x.strip() == p.text.split()[1].rstrip(",") for x in c.text.split(",")[1:3])):
            n = max(n, 3)
    if p.wide_store and (p.wide_store & c.dst): n = max(n, 2 if cv else 1)
    if p.kind == "salu" and (("s",124) in p.dst) and (c.ldsdma or "addtid" in c.mn or c.mn.startswith("s_movrel")): n = max(n, 1)
    return n

class Asm:
    def __init__(self):
        self.lines = []
    def __call__(self, text):
        for l in text.split("\n"):
            l = l.strip()
            if l: self.lines.append(l)
    def label(self, name): self.lines.append(name + ":")
    def finish(self, verbose=False):
        out = []
        nins = 0
        for l in self.lines:
            c = I(l)
            if c.kind != "none":
                dist = 0; req = 0
                for p in reversed(out):
                    if p.kind == "none": continue
                    if p.mn in ("s_branch", "s_endpgm"): break
                    n = need(p, c)
                    if n > dist: req = max(req, n - dist)
                    dist += p.ws
                    if dist > 24: break
                while req > 0:
                    k = min(req, 16)
                    out.append(I("s_nop %d" % (k-1))); nins += 1
                    req -= k
            out.append(c)
        if verbose: print("inserted nops:", nins)
        return "\n".join(("" if i.label else "  ") + i.text for i in out)

def kernel_text(name, body, vgpr, sgpr=102, accum=None):
    if accum is None: accum = (vgpr + 3)//4*4
    code = f""".text
.globl {name}
.p2align 8
.type {name},@function
{name}:
{body}
"""
    kd = f""".section .rodata,"a"
.p2align 6
.amdhsa_kernel {name}
  .amdhsa_next_free_vgpr {vgpr}
  .amdhsa_next_free_sgpr {sgpr}
  .amdhsa_accum_offset {accum}
  .amdhsa_group_segment_fixed_size 0
  .amdhsa_kernarg_size 136
  .amdhsa_user_sgpr_count 2
  .amdhsa_user_sgpr_kernarg_segment_ptr 1
  .amdhsa_system_sgpr_workgroup_id_x 1
.end_amdhsa_kernel
"""
    return code, kd


class Stream:
    def __init__(self):
        self.items = []
    def __call__(self, text, tag=None):
        for l in text.split("\n"):
            l = l.strip()
            if l: self.items.append((l, tag))
    def wait(self, kind, tag): self.items.append((("wait", kind, tag), None))
    def waitall(self, kind): self.items.append((("wait", kind, None), None))
    def mark(self, name): self.items.append((("mark", name), None))
    def atomic(self, lines):
        self.items.append((("group", lines), None))
    def extend(self, other): self.items.extend(other.items)

def flatten(items):
    out = []
    for it, tag in items:
        if isinstance(it, tuple) and it[0] == "group":
            out.extend(flatten(it[1]))
        else:
            out.append((it, tag))
    return out

def resolve(items, asm, vmq=None, lgq=None):
    vmq = [] if vmq is None else vmq
    lgq = [] if lgq is None else lgq
    smem = False
    for it, tag in flatten(items):
        if isinstance(it, tuple):
            if it[0] == "mark": continue
            _, kind, t = it
            q = vmq if kind == "vm" else lgq
            name = "vmcnt" if kind == "vm" else "lgkmcnt"
            mx = 63 if kind == "vm" else 15
            if t is None:
                if q or (kind == "lg" and smem): asm(f"s_waitcnt {name}(0)")
                del q[:]
                if kind == "lg": smem = False
                continue
            tags = t if isinstance(t, (list, set)) else [t]
            idxs = [i for i, x in enumerate(q) if x in tags]
            if not idxs: continue
            idx = max(idxs)
            rem = len(q) - 1 - idx
            if kind == "lg" and smem:
                rem = 0; smem = False
            rem = min(rem, mx)
            asm(f"s_waitcnt {name}({rem})")
            del q[:len(q) - rem]
            continue
        mn = it.split()[0]
        if mn.startswith("buffer_") or mn.startswith("global_"):
            vmq.append(tag)
            assert len(vmq) <= 63, "too many vm ops outstanding: %d at %s" % (len(vmq), it)
        elif mn.startswith("ds_"):
            lgq.append(tag)
        elif mn.startswith("s_load") or mn.startswith("s_mem") or mn.startswith("s_buffer_load"):
            lgq.append(tag); smem = True
        elif mn == "s_waitcnt":
            m = re.search(r"vmcnt\((\d+)\)", it)
            if m:
                k = int(m.group(1)); del vmq[:max(0, len(vmq) - k)]
            m = re.search(r"lgkmcnt\((\d+)\)", it)
            if m:
                k = int(m.group(1)); del lgq[:max(0, len(lgq) - k)]
                if k == 0: smem = False
        asm(it)
    return vmq, lgq

def interleave(main_items, bg_items, slots):
    marks = [i for i, (it, _) in enumerate(main_items) if isinstance(it, tuple) and it[0] == "mark" and it[1] == "slot"]
    n = len(bg_items); k = len(marks)
    out = []; pos = 0; mi = 0
    for i, x in enumerate(main_items):
        out.append(x)
        if mi < k and i == marks[mi]:
            mi += 1
            end = n if mi == k else (min(n, pos + slots) if slots else (n*mi)//k)
            out.extend(bg_items[pos:end]); pos = end
    assert pos == n
    return out
```

```python
import struct
from asmlib import Asm, kernel_text
WS_H    = 0
WS_W2P  = 8 << 20
WS_XNT  = 12 << 20
WS_KR   = 16 << 20
KR_STRIDE = 4224
WS_AT   = 20 << 20
WS_STATS = 24 << 20
WS_PROF = 25 << 20
WS_SIZE = 32 << 20
class Cfg: PROF = True
def srd(a, d, lo, size):
    a(f"s_mov_b32 s{d}, s{lo}")
    a(f"s_and_b32 s{d+1}, s{lo+1}, 0xffff")
    a(f"s_mov_b32 s{d+2}, {size}")
    a(f"s_mov_b32 s{d+3}, 0x20000")
def f32bits(x):
    return "0x%08x" % struct.unpack("<I", struct.pack("<f", x))[0]
def stamp(a, i):
    if Cfg.PROF: a(f"s_memrealtime s[{80+2*i}:{81+2*i}]")
def prof_flush(a, n, srdws, swave, nw=8, kidx=0):
    if not Cfg.PROF: return
    a("s_waitcnt lgkmcnt(0)")
    a(f"s_mul_i32 s78, s2, {nw}")
    a(f"s_add_u32 s78, s78, s{swave}")
    a("s_lshl_b32 s78, s78, 6")
    a(f"s_add_u32 s78, s78, {WS_PROF + kidx*(1<<18)}")
    a("v_mov_b32 v1, 0")
    a("s_mov_b64 exec, 1")
    for i in range(n):
        a(f"v_mov_b32 v2, s{80+2*i}")
        a(f"buffer_store_dword v2, v1, s[{srdws}:{srdws+3}], s78 offen offset:{4*i}")
    a("s_mov_b64 exec, -1")
GELU_K1 = -2.0*0.7978845608028654*1.4426950408889634
GELU_K2 = GELU_K1*0.044715
```

```python
from common import *
from asmlib import Stream, resolve
from prep import chan_setup

KC_COPY = 4160
KC_SIZE = 8*KC_COPY
U_SIZE = 4608
CONV_LDS = KC_SIZE + U_SIZE

def conv_uload(SC="", vU=200, sD=47):
    a = Stream()
    a("v_mul_u32_u24 v2, 10240, v1")
    a(f"s_lshl_b32 s22, s{sD}, 4")
    a(f"s_add_u32 s22, s22, {WS_XNT}")
    for k in range(4):
        a(f"buffer_load_dwordx4 v[{vU+4*k}:{vU+3+4*k}], v2, s[36:39], s22 offen {SC}", tag="u")
        if k < 3: a("s_add_u32 s22, s22, 655360")
    return a

def conv_main(SC="", vK=112, vU=200, sD=47, sL=46, sDk=58):
    a = Stream()
    a("v_lshlrev_b32 v2, 4, v1")
    a(f"v_add_u32 v3, s{sL}, v2")
    for r in range(4, 8): a(f"v_mov_b32 v{r}, 0")
    a(f"ds_write_b128 v3, v[4:7] offset:{KC_SIZE}")
    a("v_sub_u32 v8, 63, v1")
    a("v_lshlrev_b32 v8, 4, v8")
    a(f"v_add_u32 v8, s{sL}, v8")
    for it in range(4):
        a(f"ds_write_b128 v8, v[{vK+4*it}:{vK+3+4*it}] offset:{7*KC_COPY + (3-it)*1024}")
    a(f"v_mul_u32_u24 v9, {KC_COPY}, v1")
    a(f"v_add_u32 v9, s{sL}, v9")
    a.atomic([("s_mov_b64 exec, 0xff", None), ("ds_write_b128 v9, v[4:7] offset:4096", None), ("s_mov_b64 exec, -1", None)])
    W = 16
    for it in range(4):
        a(f"ds_read_b128 v[{W+24*it+4}:{W+24*it+7}], v8 offset:{7*KC_COPY + (3-it)*1024 + 16}", tag=("nb", it))
    a.wait("vm", "u")
    for k in range(4):
        a(f"ds_write_b128 v3, v[{vU+4*k}:{vU+3+4*k}] offset:{KC_SIZE + 480 + 1024*k}")
    for it in range(4):
        w = W + 24*it
        k = vK + 4*it
        src = [k, k+1, k+2, k+3, w+4, w+5, w+6, w+7]
        off = (3-it)*1024
        a.wait("lg", ("nb", it))
        a(f"v_mov_b32 v{w+2}, v{src[2]}"); a(f"v_mov_b32 v{w+3}, v{src[3]}")
        a(f"ds_write_b128 v8, v[{w+2}:{w+5}] offset:{3*KC_COPY + off}")
        for i in range(6): a(f"v_mov_b32 v{w+8+i}, v{src[1+i]}")
        a(f"ds_write_b128 v8, v[{w+8}:{w+11}] offset:{5*KC_COPY + off}")
        a(f"ds_write_b128 v8, v[{w+10}:{w+13}] offset:{1*KC_COPY + off}")
        for i in range(6): a(f"v_alignbit_b32 v{w+14+i}, v{src[i+1]}, v{src[i]}, 16")
        a(f"ds_write_b128 v8, v[{w+14}:{w+17}] offset:{6*KC_COPY + off}")
        a(f"ds_write_b128 v8, v[{w+16}:{w+19}] offset:{2*KC_COPY + off}")
        ob = 224 + (it % 2)*6
        for i in range(6): a(f"v_alignbit_b32 v{ob+i}, v{src[i+2]}, v{src[i+1]}, 16")
        a(f"ds_write_b128 v8, v[{ob}:{ob+3}] offset:{4*KC_COPY + off}")
        a(f"ds_write_b128 v8, v[{ob+2}:{ob+5}] offset:{0*KC_COPY + off}")
    a("v_and_b32 v10, 15, v1")
    a("v_lshrrev_b32 v11, 4, v1")
    a("v_and_b32 v12, 7, v1")
    a(f"v_mul_u32_u24 v12, {KC_COPY}, v12")
    a("v_lshrrev_b32 v13, 3, v10")
    a("v_add_u32 v13, v13, v11")
    a("v_sub_u32 v13, 4, v13")
    a("v_lshl_add_u32 v12, v13, 4, v12")
    a(f"v_add_u32 v12, s{sL}, v12")
    a("v_lshlrev_b32 v13, 1, v10")
    a("v_sub_u32 v13, v13, v11")
    a("v_add_u32 v13, 3, v13")
    a("v_lshlrev_b32 v13, 4, v13")
    a(f"v_add_u32 v13, s{sL}, v13")
    ACC = 16; FR = 48
    for r in range(32): a(f"v_mov_b32 v{ACC+r}, 0")
    def rd(ph, idx):
        base = FR + (ph % 2)*64
        a(f"ds_read_b128 v[{base+8*idx}:{base+8*idx+3}], v12 offset:{512*(7-idx) + 64*(7-ph)}", tag=("fa", ph, idx))
        a(f"ds_read_b128 v[{base+8*idx+4}:{base+8*idx+7}], v13 offset:{KC_SIZE + 512*idx + 64*(7-ph)}", tag=("fa", ph, idx))
    stamp(a, 2)
    if Cfg.PROF: a.waitall("lg")
    for idx in range(8): rd(0, idx)
    pairs = sorted([(x, y) for x in range(8) for y in range(8) if x+y <= 7], key=lambda p: (max(p), p))
    for ph in range(8):
        base = FR + (ph % 2)*64
        seen = -1; nrd = 0
        for n, (x, y) in enumerate(pairs):
            mx = max(x, y)
            if mx > seen:
                a.wait("lg", ("fa", ph, mx)); seen = mx
            c = ACC + 4*(x+y)
            a(f"v_mfma_f32_16x16x32_bf16 v[{c}:{c+3}], v[{base+8*x}:{base+8*x+3}], v[{base+8*y+4}:{base+8*y+7}], v[{c}:{c+3}]")
            if ph < 7 and n % 4 == 3 and nrd < 8 and n >= 3:
                rd(ph+1, nrd); nrd += 1
        assert ph == 7 or nrd == 8
    stamp(a, 3)
    if Cfg.PROF: a.waitall("lg")
    a("v_lshlrev_b32 v14, 5, v10")
    a("v_lshl_add_u32 v14, v11, 3, v14")
    a(f"v_add_u32 v14, s{sL}, v14")
    for c in range(8):
        a(f"ds_read_b64 v[{48+2*c}:{49+2*c}], v14 offset:{KC_SIZE + 480 + 512*c}", tag=("xu", c))
    a("v_mov_b32 v15, 0xffff0000")
    for c in range(8):
        y = ACC + 4*c; t = 64 + (c % 2)*8; u = 48+2*c
        a(f"v_cvt_pk_bf16_f32 v{t}, v{y}, v{y+1}")
        a(f"v_cvt_pk_bf16_f32 v{t+1}, v{y+2}, v{y+3}")
        a(f"v_lshlrev_b32 v{y}, 16, v{t}")
        a(f"v_and_b32 v{y+1}, v15, v{t}")
        a(f"v_lshlrev_b32 v{y+2}, 16, v{t+1}")
        a(f"v_and_b32 v{y+3}, v15, v{t+1}")
        a.wait("lg", ("xu", c))
        a(f"v_lshlrev_b32 v{t+2}, 16, v{u}")
        a(f"v_and_b32 v{t+3}, v15, v{u}")
        a(f"v_lshlrev_b32 v{t+4}, 16, v{u+1}")
        a(f"v_and_b32 v{t+5}, v15, v{u+1}")
        for r in range(4): a(f"v_mul_f32 v{t+2+r}, s{sDk}, v{t+2+r}")
        a(f"v_cvt_pk_bf16_f32 v{t}, v{t+2}, v{t+3}")
        a(f"v_cvt_pk_bf16_f32 v{t+1}, v{t+4}, v{t+5}")
        a(f"v_lshlrev_b32 v{t+2}, 16, v{t}")
        a(f"v_and_b32 v{t+3}, v15, v{t}")
        a(f"v_lshlrev_b32 v{t+4}, 16, v{t+1}")
        a(f"v_and_b32 v{t+5}, v15, v{t+1}")
        for r in range(4): a(f"v_add_f32 v{y+r}, v{y+r}, v{t+2+r}")
        a(f"v_cvt_pk_bf16_f32 v{t+6}, v{y}, v{y+1}")
        a(f"v_cvt_pk_bf16_f32 v{t+7}, v{y+2}, v{y+3}")
        a(f"ds_write_b64 v14, v[{t+6}:{t+7}] offset:{512*c}")
    for k in range(4):
        a(f"ds_read_b128 v[{80+4*k}:{83+4*k}], v3 offset:{1024*k}", tag=("o", k))
    a(f"s_lshl_b32 s22, s{sD}, 12")
    a(f"s_add_u32 s22, s22, {WS_AT}")
    for k in range(4):
        a.wait("lg", ("o", k))
        a(f"buffer_store_dwordx4 v[{80+4*k}:{83+4*k}], v2, s[36:39], s22 offen offset:{1024*k} {SC}", tag="st")
    return a

def conv_kernel(kidx=2):
    a = Asm()
    a("s_cmp_ge_u32 s2, 256")
    a("s_cbranch_scc1 C_END")
    stamp(a, 0)
    a("s_load_dwordx2 s[6:7], s[0:1], 128")
    a("s_load_dwordx2 s[8:9], s[0:1], 64")
    a("v_and_b32 v1, 63, v0")
    a("v_lshrrev_b32 v6, 6, v0")
    a("v_readfirstlane_b32 s12, v6")
    a("s_and_b32 s13, s12, 3")
    a("s_waitcnt lgkmcnt(0)")
    srd(a, 36, 6, WS_SIZE)
    chan_setup(a)
    a("s_cbranch_scc0 C_END")
    a(f"s_mul_i32 s46, s13, {CONV_LDS}")
    st = Stream()
    st("v_sub_u32 v2, 63, v1")
    st("v_lshlrev_b32 v2, 4, v2")
    st(f"s_mul_i32 s22, s47, {KR_STRIDE}")
    st(f"s_add_u32 s22, s22, {WS_KR}")
    for it in range(4):
        st(f"buffer_load_dwordx4 v[{112+4*it}:{115+4*it}], v2, s[36:39], s22 offen offset:{(3-it)*1024}", tag="kr")
    st("s_lshl_b32 s22, s47, 1")
    st("v_mov_b32 v3, s22")
    st("global_load_short_d16_hi v4, v3, s[8:9]", tag="kr")
    st.extend(conv_uload())
    st.wait("vm", "kr")
    st("v_and_b32 v4, 0xffff0000, v4")
    st("v_readfirstlane_b32 s58, v4")
    stamp(st, 1)
    st.extend(conv_main())
    stamp(st, 4)
    if Cfg.PROF: st.waitall("vm")
    stamp(st, 5)
    resolve(st.items, a)
    prof_flush(a, 6, 36, 12, kidx=kidx)
    a.label("C_END")
    a("s_endpgm")
    return a.finish(True)
```

```python
from common import *
from asmlib import Stream, resolve, interleave

NST = 10
STAGE_STAMPS = True
SLOT = 30720

def g1_common_setup(a):
    a("v_and_b32 v1, 63, v0")
    a("v_lshrrev_b32 v6, 6, v0")
    a("v_readfirstlane_b32 s12, v6")
    a("s_and_b32 s13, s2, 7")
    a("s_lshr_b32 s14, s2, 3")
    a("s_lshr_b32 s15, s13, 1")
    a("s_lshl_b32 s15, s15, 2")
    a("s_and_b32 s17, s14, 3")
    a("s_add_u32 s15, s15, s17")
    a("s_and_b32 s16, s13, 1")
    a("s_lshl_b32 s16, s16, 3")
    a("s_lshr_b32 s23, s14, 2")
    a("s_add_u32 s16, s16, s23")
    a("s_mul_i32 s17, s17, 5")
    a("s_lshr_b32 s17, s17, 1")
    a("s_add_u32 s17, s17, s23")
    a("s_sub_u32 s22, s17, 10")
    a("s_cmp_ge_u32 s17, 10")
    a("s_cselect_b32 s17, s22, s17")
    a("s_and_b32 s13, s12, 3")

def g1_S(NS, AHEAD, CSOFF):
    a = Stream()
    a("v_lshrrev_b32 v6, 3, v1")
    a("v_and_b32 v7, 7, v1")
    a("v_lshrrev_b32 v8, 4, v1")
    a("v_xor_b32 v7, v7, v8")
    a("v_mul_u32_u24 v2, 1280, v6")
    a("v_lshl_add_u32 v2, v7, 4, v2")
    a("v_xor_b32 v3, 64, v2")
    a("v_mul_u32_u24 v8, 4682, v1")
    a("v_lshrrev_b32 v8, 16, v8")
    a("v_mul_u32_u24 v9, 14, v8")
    a("v_sub_u32 v9, v1, v9")
    a("v_mul_u32_u24 v4, 3456, v8")
    a("v_lshl_add_u32 v4, v9, 4, v4")
    a("s_lshl_b32 s18, s15, 2")
    a("s_add_u32 s18, s18, s13")
    a("s_mul_i32 s18, s18, 40960")
    a("s_mul_i32 s20, s13, 27648")
    a("s_mul_i32 s22, s16, 216")
    a("s_add_u32 s20, s20, s22")
    a("s_lshl_b32 s19, s13, 12")
    a("s_mul_i32 s21, s13, 896")
    a("s_add_u32 s21, s21, 16384")
    a("s_mov_b32 s40, -1")
    a("s_mov_b32 s41, 0x00ffffff")
    def issue(t):
        sb = (t % NS)*SLOT
        a("s_lshl_b32 s22, s17, 7")
        a("s_add_u32 s22, s22, s18")
        a("s_mul_i32 s23, s17, 221184")
        a("s_add_u32 s23, s23, s20")
        for i in range(4):
            ks2, h = divmod(i, 2)
            a.atomic([(f"s_add_u32 m0, s21, {sb + ks2*7168 + h*3584}", None), ("s_mov_b64 exec, s[40:41]", None),
                      ("buffer_load_dwordx4 v4, s[28:31], s23 offen lds", ("st", t)), ("s_mov_b64 exec, -1", None)])
            if i < 3: a(f"s_add_u32 s23, s23, {4*3456 if h == 0 else 28*3456}")
            a.mark("slot")
            a.atomic([(f"s_add_u32 m0, s19, {sb + i*1024}", None), ("s_nop 0", None),
                      (f"buffer_load_dwordx4 v{2 + (i&1)}, s[24:27], s22 offen lds", ("st", t))])
            if i < 3: a("s_add_u32 s22, s22, 10240")
            a.mark("slot")
        a("s_add_u32 s17, s17, 1")
        a.atomic([("s_cmp_eq_u32 s17, 10", None), ("s_cselect_b32 s17, 0, s17", None)])
    for t in range(NS): issue(t)
    issued = NS
    stamp(a, 1)
    a("v_lshrrev_b32 v6, 2, v1")
    a("v_mul_u32_u24 v10, 224, v6")
    a("v_and_b32 v6, 3, v1")
    a("v_lshl_add_u32 v10, v6, 3, v10")
    a("s_lshl_b32 s22, s13, 5")
    a("s_add_u32 s22, s22, 16384")
    a("v_add_u32 v10, s22, v10")
    a("v_add_u32 v14, 61440, v10")
    a("v_add_u32 v15, 122880, v10")
    for r in range(16, 24): a(f"v_mov_b32 v{r}, 0")
    for r in range(24, 28): a(f"v_mov_b32 v{r}, 0x3f803f80")
    if Cfg.PROF: a.waitall("lg")
    for t in range(NST):
        a.wait("vm", ("st", t))
        a("s_barrier")
        slot = t % NS
        reg = (10, 14, 15)[slot//2]; off = (slot % 2)*SLOT
        for ks2 in range(2):
            for j in range(2):
                b = 28 + (ks2*2+j)*4
                a(f"ds_read_b64_tr_b16 v[{b}:{b+1}], v{reg} offset:{off + ks2*7168 + j*128}", tag=("cs", t))
                a(f"ds_read_b64_tr_b16 v[{b+2}:{b+3}], v{reg} offset:{off + ks2*7168 + j*128 + 3584}", tag=("cs", t))
        if issued < NST and issued - NS <= t - (NS - AHEAD):
            issue(issued); issued += 1
        else:
            a.mark("slot")
        a.wait("lg", ("cs", t))
        for ks2 in range(2):
            for j in range(2):
                b = 28 + (ks2*2+j)*4
                a(f"v_mfma_f32_16x16x32_bf16 v[{16+4*j}:{19+4*j}], v[{b}:{b+3}], v[24:27], v[{16+4*j}:{19+4*j}]")
    assert issued == NST
    a("v_lshrrev_b32 v7, 4, v1")
    a("v_lshlrev_b32 v9, 4, v7")
    a("s_lshl_b32 s22, s13, 6")
    a(f"s_add_u32 s22, s22, {CSOFF}")
    a("v_add_u32 v10, s22, v9")
    a("v_and_b32 v6, 15, v1")
    a("v_cmp_eq_u32 vcc, 0, v6")
    a("s_and_saveexec_b64 s[44:45], vcc")
    a("ds_write_b128 v10, v[16:19]")
    a("ds_write_b128 v10, v[20:23] offset:256")
    a("s_mov_b64 exec, -1")
    a.waitall("lg")
    a("s_barrier")
    return a

def g1_G(NS, CSOFF, SELF_STATS=True, D=4, R=6):
    a = Stream()
    vACC = 16; vGR = 72; vONE = 80
    vXF = 92; vF = 108
    vB1 = 140
    a("v_lshrrev_b32 v7, 4, v1")
    a("v_lshlrev_b32 v8, 3, v7")
    a("s_mul_i32 s22, s16, 216")
    for ct in range(7):
        a(f"buffer_load_dwordx2 v[{vB1+2*ct}:{vB1+1+2*ct}], v8, s[32:35], s22 offen offset:{32*ct}", tag="b1")
    a("s_lshl_b32 s19, s13, 12")
    a("v_lshrrev_b32 v6, 2, v1")
    a("v_mul_u32_u24 v5, 224, v6")
    a("v_and_b32 v6, 3, v1")
    a("v_lshl_add_u32 v5, v6, 3, v5")
    a("v_add_u32 v5, 16384, v5")
    a("v_and_b32 v6, 15, v1")
    a("v_lshrrev_b32 v8, 1, v6")
    a("v_xor_b32 v8, v8, v7")
    a("v_lshlrev_b32 v8, 4, v8")
    a("v_lshl_add_u32 v11, v6, 7, v8")
    a("v_add_u32 v11, s19, v11")
    a("v_xor_b32 v12, 64, v11")
    a("v_add_u32 v13, 61440, v5")
    a("v_add_u32 v15, 61440, v11")
    a("v_add_u32 v9, 61440, v12")
    a("v_add_u32 v2, 122880, v5")
    a("v_add_u32 v3, 122880, v11")
    a("v_add_u32 v4, 122880, v12")
    for r in range(16, 80): a(f"v_mov_b32 v{r}, 0")
    a(f"v_mov_b32 v{vONE}, 0x3f803f80")
    a("v_cmp_lt_u32 s[42:43], 11, v6")
    landed = [0]
    def addr(kind, t):
        slot = t % NS
        reg = {"w": (5, 13, 2), "x0": (11, 15, 3), "x1": (12, 9, 4)}[kind][slot//2]
        return reg, (slot % 2)*SLOT
    def read_frag(g):
        s, ct = divmod(g, 7)
        t, ks2 = divmod(s, 2)
        if t >= landed[0]:
            a("s_barrier"); landed[0] = t+1
            if STAGE_STAMPS:
                a(f"s_getreg_b32 s{64+t}, hwreg(HW_REG_SHADER_CYCLES)") if False else None
                a(f"s_memtime s[92:93]"); a.waitall("lg"); a(f"s_mov_b32 s{64+t}, s92")
            if t == 0:
                stamp(a, 2)
                if Cfg.PROF: a.waitall("lg")
        if ct == 0:
            reg, off = addr("x%d" % ks2, t)
            for rt in range(2):
                b = vXF + (s % 2)*8 + rt*4
                a(f"ds_read_b128 v[{b}:{b+3}], v{reg} offset:{off + rt*2048}", tag=("x", s))
        reg, off = addr("w", t)
        off += ks2*7168
        b = vF + (g % R)*4
        a(f"ds_read_b64_tr_b16 v[{b}:{b+1}], v{reg} offset:{off + ct*32}", tag=("f", g))
        a(f"ds_read_b64_tr_b16 v[{b+2}:{b+3}], v{reg} offset:{off + ct*32 + 3584}", tag=("f", g))
    NG = 140
    for g in range(D): read_frag(g)
    for g in range(NG):
        s, ct = divmod(g, 7)
        if g + D < NG: read_frag(g + D)
        a.wait("lg", ("f", g))
        b = vF + (g % R)*4
        if ct == 6 and SELF_STATS:
            for r in range(4): a(f"v_cndmask_b32 v{b+r}, v{b+r}, v{vONE}, s[42:43]")
        for rt in range(2):
            acc = vACC + (rt*7+ct)*4
            xb = vXF + (s % 2)*8 + rt*4
            a(f"v_mfma_f32_16x16x32_bf16 v[{acc}:{acc+3}], v[{b}:{b+3}], v[{xb}:{xb+3}], v[{acc}:{acc+3}]")
        if (ct == 0 or ct == 1) and SELF_STATS:
            rt = ct
            xb = vXF + (s % 2)*8 + rt*4
            a(f"v_mfma_f32_16x16x32_bf16 v[{vGR+rt*4}:{vGR+rt*4+3}], v[{xb}:{xb+3}], v[{xb}:{xb+3}], v[{vGR+rt*4}:{vGR+rt*4+3}]")
    stamp(a, 3)
    if STAGE_STAMPS:
        a(f"s_memtime s[92:93]"); a.waitall("lg"); a(f"s_mov_b32 s74, s92")
    a("v_lshlrev_b32 v9, 4, v7")
    vST = 92
    a("v_add_u32 v11, 48, v6")
    a("v_lshlrev_b32 v11, 2, v11")
    a("v_lshrrev_b32 v12, 2, v6")
    a("v_lshl_add_u32 v12, v12, 4, v6")
    a("v_lshlrev_b32 v12, 2, v12")
    a("v_and_b32 v13, 3, v1")
    a("v_cmp_eq_u32 s[46:47], 1, v13")
    a("v_cmp_eq_u32 s[48:49], 2, v13")
    a("v_cmp_eq_u32 s[50:51], 3, v13")
    for rt in range(2):
        g = vGR + rt*4
        a(f"v_cndmask_b32 v{g}, v{g}, v{g+1}, s[46:47]")
        a(f"v_cndmask_b32 v{g}, v{g}, v{g+2}, s[48:49]")
        a(f"v_cndmask_b32 v{g}, v{g}, v{g+3}, s[50:51]")
        a(f"ds_bpermute_b32 v{vST+rt*2}, v11, v{vACC+(rt*7+6)*4}")
        a(f"ds_bpermute_b32 v{vST+1+rt*2}, v12, v{g}")
    a.waitall("lg")
    a("s_barrier")
    vCSR = 96
    a(f"v_add_u32 v10, {CSOFF}, v9")
    for ct in range(7):
        a(f"ds_read_b128 v[{vCSR+4*ct}:{vCSR+3+4*ct}], v10 offset:{64*ct}")
    a(f"s_mov_b32 s52, {f32bits(1/640.)}")
    a(f"s_mov_b32 s53, {f32bits(1e-5)}")
    a(f"v_mov_b32 v15, {f32bits(GELU_K1)}")
    a(f"s_mov_b32 s55, {f32bits(GELU_K2)}")
    a("s_mov_b32 s56, 0xffff0000")
    def rbf(r):
        a(f"v_cvt_pk_bf16_f32 v{r}, v{r}, v{r}")
        a(f"v_lshlrev_b32 v{r}, 16, v{r}")
    for rt in range(2):
        m = vST+rt*2; q = vST+1+rt*2
        a(f"v_mul_f32 v{m}, s52, v{m}")
        a(f"v_mul_f32 v{q}, s52, v{q}")
        a(f"v_fma_f32 v{q}, -v{m}, v{m}, v{q}")
        a(f"v_max_f32 v{q}, 0, v{q}")
        rbf(q)
        a(f"v_add_f32 v{q}, s53, v{q}")
        rbf(q)
        a(f"v_sqrt_f32 v{q}, v{q}")
        rbf(q)
        a(f"v_rcp_f32 v{q}, v{q}")
        rbf(m)
    vBB = 156
    a.wait("vm", "b1")
    for ct in range(7):
        a(f"v_lshlrev_b32 v{vBB+4*ct}, 16, v{vB1+2*ct}")
        a(f"v_and_b32 v{vBB+1+4*ct}, s56, v{vB1+2*ct}")
        a(f"v_lshlrev_b32 v{vBB+2+4*ct}, 16, v{vB1+1+2*ct}")
        a(f"v_and_b32 v{vBB+3+4*ct}, s56, v{vB1+1+2*ct}")
    a("s_lshl_b32 s57, s15, 3")
    a("s_lshl_b32 s58, s13, 1")
    a("s_add_u32 s57, s57, s58")
    a("s_mul_i32 s57, s57, 57344")
    a("s_lshr_b32 s58, s16, 1")
    a("s_mul_i32 s58, s58, 7168")
    a("s_add_u32 s57, s57, s58")
    a("s_and_b32 s59, s16, 1")
    a("s_mul_i32 s60, s59, 3072")
    a("s_add_u32 s60, s60, s57")
    a("s_lshl_b32 s61, s59, 3")
    a("s_add_u32 s61, s61, s57")
    a("s_add_u32 s61, s61, 6144")
    a("v_lshlrev_b32 v14, 4, v1")
    a("v_cmp_gt_u32 s[62:63], 48, v1")
    a.waitall("lg")
    for rt in range(2):
        m = vST+rt*2; q = vST+1+rt*2
        for ct in range(7):
            acc = vACC + (rt*7+ct)*4
            t = 124 + (ct % 2)*8
            for r in range(4): a(f"v_fma_f32 v{acc+r}, -v{m}, v{vCSR+4*ct+r}, v{acc+r}")
            for r in range(4): a(f"v_fma_f32 v{acc+r}, v{acc+r}, v{q}, v{vBB+4*ct+r}")
            for r in range(4): a(f"v_mul_f32 v{t+r}, v{acc+r}, v{acc+r}")
            for r in range(4): a(f"v_fma_f32 v{t+r}, v{t+r}, s55, v15")
            for r in range(4): a(f"v_mul_f32 v{t+r}, v{acc+r}, v{t+r}")
            for r in range(4): a(f"v_exp_f32 v{t+r}, v{t+r}")
            for r in range(4): a(f"v_add_f32 v{t+r}, 1.0, v{t+r}")
            for r in range(4): a(f"v_rcp_f32 v{t+r}, v{t+r}")
            for r in range(4): a(f"v_mul_f32 v{acc+r}, v{acc+r}, v{t+r}")
            o = 184 + ((ct//2) % 2)*4 + (ct % 2)*2
            a(f"v_cvt_pk_bf16_f32 v{o}, v{acc}, v{acc+1}")
            a(f"v_cvt_pk_bf16_f32 v{o+1}, v{acc+2}, v{acc+3}")
            if ct % 2 == 1:
                p = ct//2
                ob = 184 + (p % 2)*4
                a(f"buffer_store_dwordx4 v[{ob}:{ob+3}], v14, s[36:39], s60 offen offset:{1024*p}")
            if ct == 6:
                a(f"v_cndmask_b32 v{o}, 0, v{o}, s[62:63]")
                a(f"v_cndmask_b32 v{o+1}, 0, v{o+1}, s[62:63]")
                a(f"buffer_store_dwordx2 v[{o}:{o+1}], v14, s[36:39], s61 offen")
        if rt == 0:
            a("s_add_u32 s60, s60, 57344")
            a("s_add_u32 s61, s61, 57344")
    stamp(a, 4)
    if Cfg.PROF: a.waitall("vm")
    stamp(a, 5)
    return a

def gemm1(NS=4, AHEAD=2, D=4, R=6):
    a = Asm()
    CSOFF = NS*SLOT
    a("s_cmp_ge_u32 s2, 256")
    a("s_cbranch_scc1 G1_END")
    stamp(a, 0)
    a("s_load_dwordx2 s[4:5], s[0:1], 0")
    a("s_load_dwordx4 s[8:11], s[0:1], 80")
    a("s_load_dwordx2 s[6:7], s[0:1], 128")
    g1_common_setup(a)
    a("s_waitcnt lgkmcnt(0)")
    srd(a, 24, 4, 2048*1280)
    srd(a, 28, 8, 640*3456)
    srd(a, 32, 10, 3456)
    srd(a, 36, 6, WS_SIZE)
    a("s_cmp_ge_u32 s12, 4")
    a("s_cbranch_scc1 G1_S")
    resolve(g1_G(NS, CSOFF, D=D, R=R).items, a)
    prof_flush(a, 6, 36, 12, kidx=1)
    if STAGE_STAMPS:
        a("s_add_u32 s78, s78, 0x40000")
        a("s_mov_b64 exec, 1")
        for i in range(11):
            a(f"v_mov_b32 v2, s{64+i}")
            a(f"buffer_store_dword v2, v1, s[36:39], s78 offen offset:{4*i}")
    a("s_endpgm")
    a.label("G1_S")
    resolve(g1_S(NS, AHEAD, CSOFF).items, a)
    prof_flush(a, 2, 36, 12, kidx=1)
    a.label("G1_END")
    a("s_endpgm")
    return a.finish(True)

if __name__ == "__main__":
    for name, kw in [("t_g1a", dict(NS=4, AHEAD=2)), ("t_g1b", dict(NS=5, AHEAD=3)), ("t_g1c", dict(NS=4, AHEAD=3)), ("t_g1d", dict(NS=4, AHEAD=2, D=6, R=8))]:
        body = gemm1(**kw)
        code, kd = kernel_text("gemm1_kernel", body, 192)
        hdr = "; @launch kernel=gemm1_kernel grid=(256,1,1) block=(512,1,1) lds=%d\n.amdgcn_target \"amdgcn-amd-amdhsa--gfx950\"\n" % (kw["NS"]*SLOT+1024)
        open(name + ".s", "w").write(hdr + code + kd)
```

```python
from common import *
from asmlib import Stream, resolve

def g2_setup(a):
    a("s_and_b32 s22, s2, 7")
    a("s_lshr_b32 s23, s2, 3")
    a("s_lshr_b32 s44, s22, 1")
    a("s_lshl_b32 s44, s44, 3")
    a("s_and_b32 s46, s23, 7")
    a("s_add_u32 s44, s44, s46")
    a("s_and_b32 s45, s22, 1")
    a("s_lshl_b32 s45, s45, 2")
    a("s_lshr_b32 s23, s23, 3")
    a("s_add_u32 s45, s45, s23")
    a("s_lshl_b32 s46, s46, 1")
    a("s_mul_i32 s23, s23, 3")
    a("s_add_u32 s46, s46, s23")
    a("s_sub_u32 s23, s46, 14")
    a("s_cmp_ge_u32 s46, 14")
    a("s_cselect_b32 s46, s23, s46")

def g2_G(SC="", NB=4, REDOFF=0, ATOFF=61440, barrier=True):
    a = Stream()
    vACC = 16
    vBUF = 96
    vX = 240
    a("v_lshlrev_b32 v2, 4, v1")
    for dl in range(1, 5): a(f"v_add_u32 v{2+dl}, {dl*57344}, v2")
    for li in range(4):
        a(f"s_add_u32 s22, s13, {li}")
        a("s_and_b32 s22, s22, 3")
        a("s_mul_i32 s22, s22, 57344")
        a(f"v_add_u32 v{7+li}, s22, v2")
    a("s_mul_i32 s22, s13, 14336")
    a(f"s_mul_i32 s56, s44, {4*57344}")
    a("s_add_u32 s56, s56, s22")
    if WS_H: a(f"s_add_u32 s56, s56, {WS_H}")
    a(f"s_mul_i32 s57, s45, {5*57344}")
    a("s_add_u32 s57, s57, s22")
    a(f"s_add_u32 s57, s57, {WS_W2P}")
    def issue(i):
        b = vBUF + (i % NB)*36
        a("s_lshl_b32 s22, s46, 10")
        a("s_add_u32 s23, s22, s57")
        a("s_add_u32 s22, s22, s56")
        for dl in range(5):
            a(f"buffer_load_dwordx4 v[{b+16+4*dl}:{b+19+4*dl}], v{2+dl}, s[36:39], s23 offen {SC}", tag=("k", i))
        for li in range(4):
            a(f"buffer_load_dwordx4 v[{b+4*li}:{b+3+4*li}], v{7+li}, s[36:39], s22 offen {SC}", tag=("k", i))
        a("s_add_u32 s46, s46, 1")
        a("s_cmp_eq_u32 s46, 14")
        a("s_cselect_b32 s46, 0, s46")
    for i in range(NB): issue(i)
    stamp(a, 1)
    for r in range(vACC, vACC+80): a(f"v_mov_b32 v{r}, 0")
    a("v_and_b32 v11, 15, v1")
    a("v_lshrrev_b32 v12, 4, v1")
    a("v_mul_u32_u24 v13, 1280, v11")
    a("v_lshl_add_u32 v13, v12, 3, v13")
    a("s_lshl_b32 s58, s44, 2")
    a("s_add_u32 s58, s58, s13")
    a("s_mul_i32 s58, s58, 20480")
    a("s_mul_i32 s22, s45, 160")
    a("s_add_u32 s58, s58, s22")
    for i in range(14):
        b = vBUF + (i % NB)*36
        a.wait("vm", ("k", i))
        if i == 0:
            stamp(a, 2)
        for dl in range(5):
            for li in range(4):
                c = vACC + (li*5+dl)*4
                a(f"v_mfma_f32_16x16x32_bf16 v[{c}:{c+3}], v[{b+16+4*dl}:{b+19+4*dl}], v[{b+4*li}:{b+3+4*li}], v[{c}:{c+3}]")
        if i + NB < 14: issue(i + NB)
        if i == 14 - NB:
            for dl in range(5):
                a(f"buffer_load_dwordx2 v[{vX+2*dl}:{vX+1+2*dl}], v13, s[24:27], s58 offen offset:{32*dl}", tag="x")
    stamp(a, 3)
    a("v_lshlrev_b32 v14, 3, v12")
    a("s_mul_i32 s22, s45, 160")
    for dl in range(5):
        a(f"buffer_load_dwordx2 v[{108+2*dl}:{109+2*dl}], v14, s[52:55], s22 offen offset:{32*dl}", tag="b2")
    a.mark("waitY")
    a("v_lshrrev_b32 v14, 1, v1")
    a("v_lshlrev_b32 v14, 12, v14")
    a("v_and_b32 v15, 1, v1")
    a("v_lshl_add_u32 v14, v15, 4, v14")
    a(f"s_mul_i32 s22, s45, {80*4096}")
    a("s_lshl_b32 s23, s44, 2")
    a("s_add_u32 s23, s23, s13")
    a("s_lshl_b32 s23, s23, 5")
    a("s_add_u32 s22, s22, s23")
    a(f"s_add_u32 s22, s22, {WS_AT}")
    for i in range(3):
        if i == 2: a("s_mov_b32 exec_hi, 0")
        a(f"buffer_load_dwordx4 v[{96+4*i}:{99+4*i}], v14, s[36:39], s22 offen {SC}", tag="at")
        if i < 2: a(f"s_add_u32 s22, s22, {32*4096}")
    a("s_mov_b64 exec, -1")
    for li in range(1, 4):
        a(f"s_add_u32 s22, s13, {li}")
        a("s_and_b32 s22, s22, 3")
        a("s_mul_i32 s22, s22, 15360")
        a(f"s_add_u32 s22, s22, {REDOFF + (li-1)*5120}")
        a("v_add_u32 v15, s22, v2")
        for dl in range(5):
            c = vACC + (li*5+dl)*4
            a(f"ds_write_b128 v15, v[{c}:{c+3}] offset:{dl*1024}")
    a.waitall("lg")
    a("s_barrier")
    a("s_mul_i32 s22, s13, 15360")
    if REDOFF: a(f"s_add_u32 s22, s22, {REDOFF}")
    a("v_add_u32 v15, s22, v2")
    for k in range(15):
        a(f"ds_read_b128 v[{120+4*k}:{123+4*k}], v15 offset:{k*1024}", tag=("r", k))
    a("s_mul_i32 s22, s13, 3072")
    a(f"s_add_u32 s22, s22, {ATOFF}")
    a("v_add_u32 v14, s22, v2")
    a.wait("vm", "at")
    for i in range(3):
        a(f"ds_write_b128 v14, v[{96+4*i}:{99+4*i}] offset:{i*1024}", tag="atw")
    a("v_lshlrev_b32 v14, 3, v1")
    a("v_add_u32 v14, s22, v14")
    for k in range(15):
        a.wait("lg", ("r", k))
        c = vACC + (k % 5)*4
        for r in range(4): a(f"v_add_f32 v{c+r}, v{c+r}, v{120+4*k+r}")
    for dl in range(5):
        a(f"ds_read_b64_tr_b16 v[{96+2*dl}:{97+2*dl}], v14 offset:{dl*512}", tag=("atr", dl))
    a("s_mov_b32 s59, 0xffff0000")
    a.wait("vm", ["x", "b2"])
    for dl in range(5):
        c = vACC + dl*4
        t = 120 + (dl % 2)*16
        a(f"v_cvt_pk_bf16_f32 v{t}, v{c}, v{c+1}")
        a(f"v_cvt_pk_bf16_f32 v{t+1}, v{c+2}, v{c+3}")
        def unpack(dst, src):
            a(f"v_lshlrev_b32 v{dst}, 16, v{src}")
            a(f"v_and_b32 v{dst+1}, s59, v{src}")
            a(f"v_lshlrev_b32 v{dst+2}, 16, v{src+1}")
            a(f"v_and_b32 v{dst+3}, s59, v{src+1}")
        unpack(c, t)
        unpack(t+2, 108+2*dl)
        for r in range(4): a(f"v_add_f32 v{c+r}, v{c+r}, v{t+2+r}")
        a(f"v_cvt_pk_bf16_f32 v{t}, v{c}, v{c+1}")
        a(f"v_cvt_pk_bf16_f32 v{t+1}, v{c+2}, v{c+3}")
        unpack(c, t)
        unpack(t+2, vX+2*dl)
        a.wait("lg", ("atr", dl))
        unpack(t+6, 96+2*dl)
        for r in range(4): a(f"v_add_f32 v{t+2+r}, v{t+2+r}, v{t+6+r}")
        a(f"v_cvt_pk_bf16_f32 v{t}, v{t+2}, v{t+3}")
        a(f"v_cvt_pk_bf16_f32 v{t+1}, v{t+4}, v{t+5}")
        unpack(t+2, t)
        for r in range(4): a(f"v_add_f32 v{c+r}, v{c+r}, v{t+2+r}")
        a(f"v_cvt_pk_bf16_f32 v{t+10}, v{c}, v{c+1}")
        a(f"v_cvt_pk_bf16_f32 v{t+11}, v{c+2}, v{c+3}")
        a(f"buffer_store_dwordx2 v[{t+10}:{t+11}], v13, s[48:51], s58 offen offset:{32*dl}")
    stamp(a, 4)
    if Cfg.PROF: a.waitall("vm")
    stamp(a, 5)
    return a

def gemm2_kernel(kidx=3):
    a = Asm()
    a("s_cmp_ge_u32 s2, 256")
    a("s_cbranch_scc1 G2_END")
    stamp(a, 0)
    a("s_load_dwordx2 s[4:5], s[0:1], 0")
    a("s_load_dwordx4 s[8:11], s[0:1], 104")
    a("s_load_dwordx2 s[6:7], s[0:1], 128")
    a("v_and_b32 v1, 63, v0")
    a("v_lshrrev_b32 v6, 6, v0")
    a("v_readfirstlane_b32 s12, v6")
    a("s_and_b32 s13, s12, 3")
    g2_setup(a)
    a("s_waitcnt lgkmcnt(0)")
    srd(a, 24, 4, 2048*1280)
    srd(a, 36, 6, WS_SIZE)
    srd(a, 48, 10, 2048*1280)
    srd(a, 52, 8, 1280)
    resolve(g2_G().items, a)
    prof_flush(a, 6, 36, 12, kidx=kidx)
    a.label("G2_END")
    a("s_endpgm")
    return a.finish(True)
```

```python
from common import *
from asmlib import Stream, resolve
import math

def ln_piece(SC="", V0=16, S0=60):
    ld = Stream(); a = Stream()
    vR = V0
    vC = V0+40
    vT = V0+64
    vA = V0+80
    ld(f"v_lshrrev_b32 v{vT}, 3, v1")
    ld(f"v_mul_u32_u24 v{vA}, 1280, v{vT}")
    ld(f"v_and_b32 v{vT+1}, 7, v1")
    ld(f"v_lshl_add_u32 v{vA}, v{vT+1}, 4, v{vA}")
    ld(f"s_mul_i32 s{S0+16}, s2, 10240")
    for k in range(10):
        ld(f"buffer_load_dwordx4 v[{vR+4*k}:{vR+3+4*k}], v{vA}, s[24:27], s{S0+16} offen offset:{128*k}", tag="lnr")
    for r in range(24): ld(f"v_mov_b32 v{vC+r}, 0")
    ld(f"v_lshlrev_b32 v{vA+1}, 1, v1")
    ld(f"v_add_u32 v{vA+2}, 3840, v{vA+1}")
    ld(f"v_add_u32 v{vA+3}, 7680, v{vA+1}")
    ld("s_lshl_b32 s22, s13, 1")
    ld("s_mul_i32 s23, s13, 3")
    ld("s_sub_u32 s23, s23, 2")
    ld.atomic([("s_cmp_lt_u32 s13, 2", None), (f"s_cselect_b32 s{S0+17}, s22, s23", None)])
    ld(f"s_lshl_b32 s22, s{S0+17}, 7")
    ld(f"s_add_u32 s22, s22, s{S0+16}")
    for c in range(3):
        for row in range(8):
            ld(f"buffer_load_short_d16_hi v{vC+c*8+row}, v{vA+1+row//3}, s[24:27], s22 offen offset:{(row%3)*1280 + c*128}", tag="lnc")
    a(f"v_mov_b32 v{vT+8}, 0x3f803f80")
    for k in range(4): a(f"v_mov_b32 v{vT+k}, 0")
    a.wait("vm", "lnr")
    for k in range(40):
        a(f"v_dot2_f32_bf16 v{vT+(k&1)}, v{vR+k}, v{vT+8}, v{vT+(k&1)}")
        a(f"v_dot2_f32_bf16 v{vT+2+(k&1)}, v{vR+k}, v{vR+k}, v{vT+2+(k&1)}")
    m = vT; q = vT+2
    a(f"v_add_f32 v{m}, v{m}, v{m+1}")
    a(f"v_add_f32 v{q}, v{q}, v{q+1}")
    for dpp in ("quad_perm:[1,0,3,2]", "quad_perm:[2,3,0,1]", "row_half_mirror"):
        a(f"v_add_f32_dpp v{m}, v{m}, v{m} {dpp} row_mask:0xf bank_mask:0xf")
        a(f"v_add_f32_dpp v{q}, v{q}, v{q} {dpp} row_mask:0xf bank_mask:0xf")
    def rbf(r):
        a(f"v_cvt_pk_bf16_f32 v{r}, v{r}, v{r}")
        a(f"v_lshlrev_b32 v{r}, 16, v{r}")
    a(f"v_mul_f32 v{m}, {f32bits(1/640.)}, v{m}")
    a(f"v_mul_f32 v{q}, {f32bits(1/640.)}, v{q}")
    a(f"v_fma_f32 v{q}, -v{m}, v{m}, v{q}")
    a(f"v_max_f32 v{q}, 0, v{q}")
    rbf(q)
    a(f"v_add_f32 v{q}, {f32bits(1e-5)}, v{q}")
    rbf(q)
    a(f"v_sqrt_f32 v{q}, v{q}")
    rbf(q)
    a(f"v_rcp_f32 v{m+1}, v{q}")
    rbf(m)
    a(f"v_lshrrev_b32 v{vT+4}, 3, v1")
    a(f"v_lshlrev_b32 v{vT+5}, 3, v{vT+4}")
    a("s_lshl_b32 s22, s13, 4")
    a("s_mov_b32 s23, 0")
    a(f"s_mov_b32 s{S0}, 0x0101")
    a(f"s_mov_b32 s{S0+1}, 0")
    a(f"s_lshl_b64 s[{S0}:{S0+1}], s[{S0}:{S0+1}], s22")
    a("s_lshl_b32 s22, s2, 6")
    a(f"s_add_u32 s22, s22, {WS_STATS}")
    a.atomic([(f"s_mov_b64 exec, s[{S0}:{S0+1}]", None),
              (f"buffer_store_dwordx2 v[{m}:{m+1}], v{vT+5}, s[36:39], s22 offen {SC}", "st"),
              ("s_mov_b64 exec, -1", None)])
    for r in range(8):
        a(f"v_readlane_b32 s{S0+r}, v{m}, {8*r}")
        a(f"v_readlane_b32 s{S0+8+r}, v{m+1}, {8*r}")
    a(f"v_lshlrev_b32 v{vA+4}, 4, v1")
    a(f"s_lshl_b32 s22, s{S0+17}, 10")
    a(f"s_add_u32 s22, s22, s{S0+16}")
    a(f"s_add_u32 s22, s22, {WS_XNT}")
    a(f"v_mov_b32 v{vT+9}, 0xffff0000")
    a.wait("vm", "lnc")
    for c in range(3):
        if c == 2:
            a.atomic([("s_cmp_lt_u32 s13, 2", None), ("s_cselect_b32 s22, 0x7f000000, s22", None)])
        o = vR + 4*c
        for p in range(4):
            x0 = vC + c*8 + 2*p; x1 = x0+1
            a(f"v_subrev_f32 v{x0}, s{S0+2*p}, v{x0}")
            a(f"v_subrev_f32 v{x1}, s{S0+2*p+1}, v{x1}")
            a(f"v_cvt_pk_bf16_f32 v{x1}, v{x0}, v{x1}")
            a(f"v_lshlrev_b32 v{x0}, 16, v{x1}")
            a(f"v_and_b32 v{x1}, v{vT+9}, v{x1}")
            a(f"v_mul_f32 v{x0}, s{S0+8+2*p}, v{x0}")
            a(f"v_mul_f32 v{x1}, s{S0+8+2*p+1}, v{x1}")
            a(f"v_cvt_pk_bf16_f32 v{o+p}, v{x0}, v{x1}")
        a(f"buffer_store_dwordx4 v[{o}:{o+3}], v{vA+4}, s[36:39], s22 offen offset:{1024*c} {SC}", tag="st")
    return ld, a

def w2_piece(SC="", V0=110, LDS=0):
    ld = Stream(); a = Stream()
    ld("s_lshr_b32 s44, s2, 2")
    ld("s_mul_i32 s45, s44, 37")
    ld("s_lshr_b32 s45, s45, 8")
    ld("s_mul_i32 s46, s45, 7")
    ld("s_sub_u32 s46, s44, s46")
    ld("s_mul_i32 s45, s45, 216")
    ld("s_lshl_b32 s47, s46, 5")
    ld("s_add_u32 s22, s47, 12")
    ld.atomic([("s_cmp_ge_u32 s46, 3", None), ("s_cselect_b32 s47, s22, s47", None)])
    ld.atomic([("s_cmp_eq_u32 s46, 6", None), ("s_cselect_b32 s47, 96, s47", None), ("s_cselect_b32 s22, 108, 16", None), ("s_cselect_b32 s23, 12, 16", None)])
    ld("s_add_u32 s45, s45, s47")
    ld(f"v_lshrrev_b32 v{V0}, 1, v1")
    ld(f"v_and_b32 v{V0+1}, 15, v{V0}")
    ld(f"v_lshrrev_b32 v{V0}, 4, v{V0}")
    ld(f"v_mul_u32_u24 v{V0}, s22, v{V0}")
    ld(f"v_add3_u32 v{V0}, v{V0}, v{V0+1}, s45")
    ld(f"v_mul_u32_u24 v{V0}, 1280, v{V0}")
    ld(f"v_and_b32 v{V0+2}, 1, v1")
    ld(f"v_lshl_add_u32 v{V0}, v{V0+2}, 4, v{V0}")
    ld(f"v_cmp_gt_u32 vcc, s23, v{V0+1}")
    ld(f"v_mov_b32 v{V0+2}, 0x7f000000")
    ld(f"v_cndmask_b32 v{V0}, v{V0+2}, v{V0}, vcc")
    ld("s_and_b32 s46, s2, 3")
    ld("s_mul_i32 s46, s46, 10")
    ld("s_add_u32 s46, s46, s13")
    ld("s_lshl_b32 s22, s46, 5")
    ld("s_mul_i32 s47, s13, 3072")
    if LDS: ld(f"s_add_u32 s47, s47, {LDS}")
    for k in range(3):
        ld.atomic([(f"s_add_u32 m0, s47, {k*1024}", None), ("s_nop 0", None),
                   (f"buffer_load_dwordx4 v{V0}, s[40:43], s22 offen lds", "w2l")])
        if k < 2: ld("s_add_u32 s22, s22, 128")
    a(f"v_lshlrev_b32 v{V0+1}, 3, v1")
    a(f"v_add_u32 v{V0+1}, s47, v{V0+1}")
    a(f"v_lshlrev_b32 v{V0+2}, 4, v1")
    a("s_mul_i32 s22, s46, 57344")
    a("s_lshl_b32 s23, s44, 10")
    a("s_add_u32 s22, s22, s23")
    a(f"s_add_u32 s22, s22, {WS_W2P}")
    a.atomic([("s_cmp_ge_u32 s2, 224", None), ("s_cselect_b32 s22, 0x7f000000, s22", None)])
    a.wait("vm", "w2l")
    for k in range(3):
        b = V0+4+4*k
        a(f"ds_read_b64_tr_b16 v[{b}:{b+1}], v{V0+1} offset:{k*1024}", tag=("w2r", k))
        a(f"ds_read_b64_tr_b16 v[{b+2}:{b+3}], v{V0+1} offset:{k*1024+512}", tag=("w2r", k))
    for k in range(3):
        b = V0+4+4*k
        if k == 2:
            a.atomic([("s_cmp_ge_u32 s13, 2", None), ("s_cselect_b32 s22, 0x7f000000, s22", None)])
        a.wait("lg", ("w2r", k))
        a(f"buffer_store_dwordx4 v[{b}:{b+3}], v{V0+2}, s[36:39], s22 offen {SC}", tag="st")
        if k < 2: a(f"s_add_u32 s22, s22, {4*57344}")
    return ld, a

LOG2E = 1.4426950408889634
def kgen(V0=48, LDS=0, sD=47, sL=46):
    ld = Stream(); a = Stream()
    vP = V0
    vZ = V0+14
    vF = V0+40
    vG = V0+56
    vACC = V0+72
    vAD = V0+84
    for r in range(13): ld(f"v_mov_b32 v{vP+r}, 0")
    ld(f"v_lshlrev_b32 v{vAD}, 1, v1")
    ld(f"s_lshl_b32 s22, s{sD}, 8")
    ld(f"v_add_u32 v{vAD}, s22, v{vAD}")
    for ps in range(2):
        for k in range(6):
            ld(f"global_load_short_d16_hi v{vP+ps*6+k}, v{vAD}, s[{60+2*k}:{61+2*k}] offset:{128*ps}", tag="kp")
    ld(f"s_lshl_b32 s22, s{sD}, 1")
    ld(f"v_mov_b32 v{vAD+1}, s22")
    ld(f"global_load_short_d16_hi v{vP+12}, v{vAD+1}, s[72:73]", tag="kp")
    a(f"v_lshlrev_b32 v{vAD}, 2, v1")
    a(f"v_add_u32 v{vAD}, s{sL}, v{vAD}")
    a(f"v_and_b32 v{vAD+2}, 15, v1")
    a(f"v_lshrrev_b32 v{vAD+3}, 4, v1")
    a(f"v_mul_u32_u24 v{vAD+1}, 288, v{vAD+2}")
    a(f"v_lshl_add_u32 v{vAD+1}, v{vAD+3}, 4, v{vAD+1}")
    a(f"v_add_u32 v{vAD+1}, s{sL}, v{vAD+1}")
    for r in range(12): a(f"v_mov_b32 v{vACC+r}, 0")
    a.wait("vm", "kp")
    dt = vP+12; T = vZ+20
    hi = struct.unpack("<f", struct.pack("<f", LOG2E))[0]; lo = LOG2E - hi
    a(f"v_mul_f32 v{T}, {f32bits(hi)}, v{dt}")
    a(f"s_mov_b32 s22, {f32bits(hi)}")
    a(f"v_fma_f32 v{T+1}, v{dt}, s22, -v{T}")
    a(f"s_mov_b32 s22, {f32bits(lo)}")
    a(f"v_fma_f32 v{T+1}, v{dt}, s22, v{T+1}")
    a(f"v_exp_f32 v{T}, v{T}")
    a(f"v_mul_f32 v{T+1}, {f32bits(math.log(2))}, v{T+1}")
    a(f"v_fma_f32 v{dt}, v{T}, v{T+1}, v{T}")
    a(f"v_cvt_pk_bf16_f32 v{dt}, v{dt}, v{dt}")
    a(f"v_lshlrev_b32 v{dt}, 16, v{dt}")
    def z(k): return vZ + 2*(k-1)
    Z8 = vZ+14; Z128 = vZ+16; CUR = vZ+18
    def cmul(d, x, y):
        a(f"v_mul_f32 v{T}, v{x+1}, v{y+1}")
        a(f"v_mul_f32 v{T+1}, v{x+1}, v{y}")
        if d == x or d == y:
            a(f"v_fma_f32 v{T+1}, v{x}, v{y+1}, v{T+1}")
            a(f"v_fma_f32 v{d}, v{x}, v{y}, -v{T}")
            a(f"v_mov_b32 v{d+1}, v{T+1}")
        else:
            a(f"v_fma_f32 v{d}, v{x}, v{y}, -v{T}")
            a(f"v_fma_f32 v{d+1}, v{x}, v{y+1}, v{T+1}")
    def csq(d, x):
        a(f"v_mul_f32 v{T}, v{x+1}, v{x+1}")
        a(f"v_add_f32 v{T+1}, v{x}, v{x}")
        a(f"v_mul_f32 v{d+1}, v{T+1}, v{x+1}")
        a(f"v_fma_f32 v{d}, v{x}, v{x}, -v{T}")
    pk = [0]
    def put(row, x, neg=False):
        r = T+2+(pk[0] % 2); pk[0] += 1
        a(f"v_cvt_pk_bf16_f32 v{r}, v{x}, {'-' if neg else ''}v{x+1}")
        a(f"ds_write_b32 v{vAD}, v{r} offset:{row*288}")
    def direct(d, a2, f, e):
        if e != 1:
            a(f"v_mul_f32 v{T}, {float(e)!r}, v{a2}" if e in (2,4) else f"v_mul_f32 v{T}, {f32bits(float(e))}, v{a2}")
            a(f"v_mul_f32 v{T+1}, {f32bits(float(e))}, v{f}")
            a(f"v_exp_f32 v{T}, v{T}")
            a(f"v_fract_f32 v{T+1}, v{T+1}")
        else:
            a(f"v_exp_f32 v{T}, v{a2}")
            a(f"v_fract_f32 v{T+1}, v{f}")
        a(f"v_cos_f32 v{d}, v{T+1}")
        a(f"v_sin_f32 v{d+1}, v{T+1}")
        a(f"v_mul_f32 v{d}, v{T}, v{d}")
        a(f"v_mul_f32 v{d+1}, v{T}, v{d+1}")
    def readfr(dst, tag):
        for k in range(4):
            a(f"ds_read_b128 v[{dst+4*k}:{dst+3+4*k}], v{vAD+1} offset:{64*k}", tag=tag)
    def mm(acc, swap, tag):
        a.wait("lg", tag)
        for k in range(4):
            A = f"v[{vG+4*k}:{vG+3+4*k}]"; B = f"v[{vF+4*k}:{vF+3+4*k}]"
            if swap: A, B = B, A
            a(f"v_mfma_f32_16x16x32_bf16 v[{acc}:{acc+3}], {A}, {B}, v[{acc}:{acc+3}]")
    W0 = T+4
    for ps in range(2):
        p = vP + ps*6
        a(f"v_mul_f32 v{p}, v{dt}, v{p}")
        a(f"v_mul_f32 v{p+1}, v{dt}, v{p+1}")
        a(f"v_mul_f32 v{p+2}, v{dt}, v{p+2}")
        a(f"v_mul_f32 v{p+3}, v{dt}, v{p+3}")
        a(f"v_mul_f32 v{p}, {f32bits(LOG2E)}, v{p}")
        a(f"v_mul_f32 v{p+1}, 0.15915494, v{p+1}")
        cmul(CUR, p+4, p+2)
        direct(z(1), p, p+1, 1)
        direct(Z128, p, p+1, 128)
        csq(z(2), z(1)); csq(z(4), z(2)); csq(Z8, z(4))
        cur, oth = CUR, W0
        for b in range(16):
            put(b, cur, neg=True)
            if b < 15:
                cmul(oth, cur, Z8); cur, oth = oth, cur
        readfr(vF, ("kb", ps))
        cmul(z(3), z(2), z(1)); cmul(z(5), z(4), z(1)); cmul(z(6), z(4), z(2)); cmul(z(7), z(4), z(3))
        a(f"v_mov_b32 v{T+2}, 0x3f80")
        a(f"ds_write_b32 v{vAD}, v{T+2}")
        pk[0] = 1
        for k in range(1, 8): put(k, z(k))
        put(8, Z128)
        for k in range(1, 8):
            cmul(W0, Z128, z(k)); put(8+k, W0)
        readfr(vG, ("k0", ps))
        csq(CUR, Z128)
        mm(vACC, False, [("kb", ps), ("k0", ps)])
        for half in range(2):
            put(4*half, CUR)
            for k in range(1, 4):
                cmul(W0, CUR, z(2*k)); put(4*half+k, W0)
            cmul(z(1), CUR, Z128)
            a(f"v_mov_b32 v{CUR}, v{z(1)}"); a(f"v_mov_b32 v{CUR+1}, v{z(1)+1}")
        cur, oth = CUR, z(1)
        for al in range(4):
            put(8+2*al, cur)
            cmul(W0, cur, z(4)); put(9+2*al, W0)
            cmul(oth, cur, Z128); cur, oth = oth, cur
        readfr(vG, ("k1", ps))
        mm(vACC+4, False, ("k1", ps))
        for i in range(9):
            put(i, cur)
            if i < 8:
                cmul(oth, cur, Z128); cur, oth = oth, cur
        readfr(vG, ("k2", ps))
        mm(vACC+8, True, ("k2", ps))
    j = vAD+2; q = vAD+3
    t = vZ
    a(f"v_lshrrev_b32 v{t}, 1, v{q}")
    a(f"v_lshlrev_b32 v{t}, 8, v{t}")
    a(f"v_lshl_add_u32 v{t}, v{j}, 4, v{t}")
    a(f"v_and_b32 v{t+1}, 1, v{q}")
    a(f"v_lshl_add_u32 v{t}, v{t+1}, 3, v{t}")
    a(f"v_add_u32 v{t}, s{sL}, v{t}")
    a(f"v_cmp_gt_u32 vcc, 2, v{q}")
    a(f"v_lshlrev_b32 v{t+2}, 2, v{j}")
    a(f"v_lshlrev_b32 v{t+3}, 3, v{j}")
    a(f"v_cndmask_b32 v{t+2}, v{t+2}, v{t+3}, vcc")
    a(f"v_lshl_add_u32 v{t+2}, v{q}, 7, v{t+2}")
    a(f"v_add_u32 v{t+2}, s{sL}, v{t+2}")
    a(f"v_cndmask_b32 v{t+3}, 64, 4, vcc")
    a(f"v_add_u32 v{t+3}, v{t+2}, v{t+3}")
    a(f"v_lshlrev_b32 v{t+4}, 5, v{j}")
    a(f"v_lshl_add_u32 v{t+4}, v{q}, 3, v{t+4}")
    a(f"v_add_u32 v{t+4}, s{sL}, v{t+4}")
    for k in range(3):
        a(f"v_cvt_pk_bf16_f32 v{t+6+2*k}, v{vACC+4*k}, v{vACC+4*k+1}")
        a(f"v_cvt_pk_bf16_f32 v{t+7+2*k}, v{vACC+4*k+2}, v{vACC+4*k+3}")
    a(f"ds_write_b64 v{t}, v[{t+6}:{t+7}]")
    a(f"ds_write_b32 v{t+2}, v{t+8} offset:512")
    a(f"ds_write_b32 v{t+3}, v{t+9} offset:512")
    a(f"ds_write_b64 v{t+4}, v[{t+10}:{t+11}] offset:1024")
    vO = V0+64
    p = vF
    a(f"v_lshlrev_b32 v{t}, 4, v1")
    a(f"v_lshlrev_b32 v{t+1}, 3, v1")
    a(f"v_add_u32 v{t+1}, 256, v{t+1}")
    a(f"v_cmp_gt_u32 vcc, 32, v1")
    a(f"v_cndmask_b32 v{t}, v{t+1}, v{t}, vcc")
    a(f"v_add_u32 v{t}, s{sL}, v{t}")
    a(f"ds_read_b64 v[{p}:{p+1}], v{t}", tag="e0")
    a(f"ds_read_b64 v[{p+2}:{p+3}], v{t} offset:8", tag="e0")
    a(f"ds_read2_b32 v[{p+4}:{p+5}], v{vAD} offset0:192 offset1:193", tag="e1")
    a(f"v_lshlrev_b32 v{t+1}, 1, v1")
    a(f"v_add_u32 v{t+1}, s{sL}, v{t+1}")
    for it in (2, 3):
        a(f"ds_read_u16 v{p+2+2*it}, v{t+1} offset:{1024+128*(it-2)}", tag=("e", it))
        a(f"ds_read_u16 v{p+3+2*it}, v{t+1} offset:{1026+128*(it-2)}", tag=("e", it))
    LL = 0x01000100; HH = 0x03020302; HL = 0x01000302
    a(f"s_mov_b32 s22, {LL:#x}")
    a(f"s_mov_b32 s23, {HH:#x}")
    a(f"v_and_b32 v{t+2}, 1, v1")
    a(f"v_cmp_eq_u32 s[74:75], 1, v{t+2}")
    a(f"v_mov_b32 v{t+2}, 0x01000504")
    a(f"v_mov_b32 v{t+3}, 0x05040504")
    a(f"v_cndmask_b32 v{t+4}, v{t+2}, v{t+3}, s[74:75]")
    a(f"v_mov_b32 v{t+5}, 0x03020504")
    a.wait("lg", "e0")
    o = vO
    for k in range(4): a(f"v_alignbit_b32 v{o+k}, v{p+3-k}, v{p+3-k}, 16")
    a.atomic([("s_mov_b32 exec_lo, 0", None),
              (f"v_perm_b32 v{o}, v{p+2}, v{p+1}, v{t+5}", None),
              (f"v_perm_b32 v{o+1}, v{p+1}, v{p+1}, s22", None),
              (f"v_perm_b32 v{o+2}, v{p+1}, v{p}, v{t+5}", None),
              (f"v_perm_b32 v{o+3}, v{p}, v{p}, s22", None),
              ("s_mov_b32 exec_lo, -1", None)])
    a.wait("lg", "e1")
    o = vO+4
    a(f"v_perm_b32 v{o}, v{p+5}, v{p+5}, s22")
    a(f"v_perm_b32 v{o+1}, v{p+4}, v{p+4}, s23")
    a(f"v_alignbit_b32 v{o+2}, v{p+4}, v{p+4}, 16")
    a(f"v_perm_b32 v{o+3}, v{p+4}, v{p+4}, s22")
    for it in (2, 3):
        a.wait("lg", ("e", it))
        o = vO+4*it; sa = p+2+2*it; se = sa+1
        a(f"v_perm_b32 v{o}, v{se}, v{se}, s22")
        a(f"v_perm_b32 v{o+1}, v{se}, v{sa}, v{t+4}")
        a(f"v_perm_b32 v{o+2}, v{sa}, v{sa}, s22")
        a(f"v_mov_b32 v{o+3}, v{o+2}")
    return ld, a

def chan_setup(a, sD=47):
    a("s_and_b32 s22, s2, 7")
    a("s_mul_i32 s22, s22, 80")
    a("s_lshr_b32 s23, s2, 3")
    a(f"s_mul_i32 s{sD}, s23, 3")
    a("s_lshl_b32 s59, s23, 1")
    a("s_add_u32 s59, s59, 16")
    a("s_cmp_lt_u32 s23, 16")
    a(f"s_cselect_b32 s{sD}, s{sD}, s59")
    a("s_cselect_b32 s59, 3, 2")
    a(f"s_add_u32 s{sD}, s{sD}, s22")
    a(f"s_add_u32 s{sD}, s{sD}, s13")
    a("s_cmp_lt_u32 s13, s59")

def prep_kernel(kidx=0):
    a = Asm()
    a("s_cmp_ge_u32 s2, 256")
    a("s_cbranch_scc1 P_END")
    stamp(a, 0)
    a("s_load_dwordx2 s[4:5], s[0:1], 0")
    a("s_load_dwordx2 s[8:9], s[0:1], 96")
    a("s_load_dwordx2 s[6:7], s[0:1], 128")
    a("s_load_dwordx8 s[60:67], s[0:1], 8")
    a("s_load_dwordx4 s[68:71], s[0:1], 40")
    a("s_load_dwordx2 s[72:73], s[0:1], 56")
    a("v_and_b32 v1, 63, v0")
    a("v_lshrrev_b32 v6, 6, v0")
    a("v_readfirstlane_b32 s12, v6")
    a("s_and_b32 s13, s12, 3")
    a("s_waitcnt lgkmcnt(0)")
    srd(a, 24, 4, 2048*1280)
    srd(a, 36, 6, WS_SIZE)
    srd(a, 40, 8, 1728*1280)
    a("s_cmp_ge_u32 s12, 4")
    a("s_cbranch_scc1 P_S")
    l1, c1 = ln_piece()
    l2, c2 = w2_piece()
    st = Stream()
    for x in (l1, l2, c1, c2): st.extend(x)
    stamp(st, 1)
    resolve(st.items, a)
    prof_flush(a, 2, 36, 12, kidx=kidx)
    a("s_endpgm")
    a.label("P_S")
    chan_setup(a)
    a("s_cbranch_scc0 P_END")
    a("s_mul_i32 s46, s13, 4608")
    a("s_add_u32 s46, s46, 12288")
    l3, c3 = kgen()
    st = Stream(); st.extend(l3); st.extend(c3)
    st("v_sub_u32 v2, 63, v1")
    st("v_lshlrev_b32 v2, 4, v2")
    st(f"s_mul_i32 s22, s47, {KR_STRIDE}")
    st(f"s_add_u32 s22, s22, {WS_KR}")
    for it in range(4):
        st(f"buffer_store_dwordx4 v[{48+64+4*it}:{48+67+4*it}], v2, s[36:39], s22 offen offset:{(3-it)*1024}")
    st("v_mov_b32 v4, 0\nv_mov_b32 v5, 0\nv_mov_b32 v6, 0\nv_mov_b32 v7, 0\nv_mov_b32 v2, 4096")
    st("s_mov_b64 exec, 1")
    st("buffer_store_dwordx4 v[4:7], v2, s[36:39], s22 offen")
    st("s_mov_b64 exec, -1")
    stamp(st, 1)
    resolve(st.items, a)
    prof_flush(a, 2, 36, 12, kidx=kidx)
    a.label("P_END")
    a("s_endpgm")
    return a.finish(True)
```

```python
import sys
from common import *
import g1b, g2, prep, conv
Cfg.PROF = "--noprof" not in sys.argv
g1b.STAGE_STAMPS = False
out = sys.argv[1]
ks = [("prep_kernel", prep.prep_kernel(0), 160, 512, 32768),
      ("gemm1_kernel", g1b.gemm1(NS=4, AHEAD=2), 192, 512, 4*30720+1024),
      ("conv_kernel", conv.conv_kernel(2), 240, 256, 3*conv.CONV_LDS),
      ("gemm2_kernel", g2.gemm2_kernel(3), 256, 256, 73728)]
hdr = "".join(f"; @launch kernel={n} grid=(256,1,1) block=({b},1,1) lds={l}\n" for n, _, _, b, l in ks)
hdr += '.amdgcn_target "amdgcn-amd-amdhsa--gfx950"\n'
codes = []; kds = []
for n, body, vg, b, l in ks:
    c, k = kernel_text(n, body, vg); codes.append(c); kds.append(k)
open(out, "w").write(hdr + "".join(codes) + "".join(kds))
```

```python
import struct
from asmlib import Asm, kernel_text
WS_H    = 0
WS_W2P  = 8 << 20
WS_XNT  = 12 << 20
WS_KR   = 16 << 20
KR_STRIDE = 4224
WS_AT   = 20 << 20
WS_STATS = 24 << 20
WS_PROF = 25 << 20
WS_SIZE = 32 << 20
class Cfg:
    PROF = True
    CYC = False
def srd(a, d, lo, size):
    a(f"s_mov_b32 s{d}, s{lo}")
    a(f"s_and_b32 s{d+1}, s{lo+1}, 0xffff")
    a(f"s_mov_b32 s{d+2}, {size}")
    a(f"s_mov_b32 s{d+3}, 0x20000")
def f32bits(x):
    return "0x%08x" % struct.unpack("<I", struct.pack("<f", x))[0]
def stamp(a, i):
    if Cfg.PROF: a(f"{'s_memtime' if Cfg.CYC else 's_memrealtime'} s[{80+2*i}:{81+2*i}]")
def prof_flush(a, n, srdws, swave, nw=8, kidx=0):
    if not Cfg.PROF: return
    a("s_waitcnt lgkmcnt(0)")
    a(f"s_mul_i32 s78, s2, {nw}")
    a(f"s_add_u32 s78, s78, s{swave}")
    a("s_lshl_b32 s78, s78, 6")
    a(f"s_add_u32 s78, s78, {WS_PROF + kidx*(1<<18)}")
    a("v_mov_b32 v1, 0")
    a("s_mov_b64 exec, 1")
    for i in range(n):
        a(f"v_mov_b32 v2, s{80+2*i}")
        a(f"buffer_store_dword v2, v1, s[{srdws}:{srdws+3}], s78 offen offset:{4*i}")
    a("s_mov_b64 exec, -1")
GELU_K1 = -2.0*0.7978845608028654*1.4426950408889634
GELU_K2 = GELU_K1*0.044715
```

```python
import sys, math
from common import *
from asmlib import Stream, resolve, interleave

SC = "sc1"
NST = 10; SLOT = 30720; NS = 4
L_LN = 3*SLOT
L_W2 = 3*SLOT + 10752
L_KG = 4*SLOT
L_CS = L_KG + 3*8704
LDS_TOTAL = 163840
WS_FL = 26 << 20
FL_R = WS_FL; FL_A = WS_FL + 1024; FL_H = WS_FL + 4096; FL_Y = WS_FL + 8192
KC_COPY = 4160; KC_SIZE = 8*KC_COPY; U_SIZE = 4608; CONV_LDS = KC_SIZE + U_SIZE
LOG2E = 1.4426950408889634
SPIN_MAX = 20000
KG_PRE = 0
STAGE_STAMPS = 0
EARLY_SC = 1
KG_SLOT = 5
lbl = [0]
def newlabel(p):
    lbl[0] += 1; return f"{p}_{lbl[0]}"

def setup(a):
    a("s_cmp_ge_u32 s2, 256")
    a("s_cbranch_scc1 M_END")
    stamp(a, 0)
    a("s_load_dwordx2 s[6:7], s[0:1], 128")
    a("s_load_dwordx2 s[4:5], s[0:1], 0")
    a("s_load_dwordx8 s[48:55], s[0:1], 80")
    a("s_load_dwordx2 s[56:57], s[0:1], 112")
    a("s_load_dwordx16 s[60:75], s[0:1], 8")
    a("s_mov_b32 s79, 0")
    a("v_and_b32 v1, 63, v0")
    a("v_lshrrev_b32 v6, 6, v0")
    a("v_readfirstlane_b32 s12, v6")
    a("s_and_b32 s13, s2, 7")
    a("s_lshr_b32 s14, s2, 3")
    a("s_lshl_b32 s101, s13, 5")
    a("s_add_u32 s101, s101, s14")
    a("s_lshr_b32 s15, s13, 1")
    a("s_lshl_b32 s44, s15, 3")
    a("s_lshl_b32 s15, s15, 2")
    a("s_and_b32 s17, s14, 3")
    a("s_add_u32 s15, s15, s17")
    a("s_and_b32 s16, s13, 1")
    a("s_lshl_b32 s45, s16, 2")
    a("s_lshl_b32 s16, s16, 3")
    a("s_lshr_b32 s23, s14, 2")
    a("s_add_u32 s16, s16, s23")
    a("s_mul_i32 s17, s17, 5")
    a("s_lshr_b32 s17, s17, 1")
    a("s_add_u32 s17, s17, s23")
    a("s_sub_u32 s22, s17, 10")
    a("s_cmp_ge_u32 s17, 10")
    a("s_cselect_b32 s17, s22, s17")
    a("s_and_b32 s22, s14, 7")
    a("s_add_u32 s44, s44, s22")
    a("s_lshr_b32 s23, s14, 3")
    a("s_add_u32 s45, s45, s23")
    a("s_mul_i32 s47, s13, 80")
    a("s_and_b32 s13, s12, 3")
    a("s_waitcnt lgkmcnt(0)")
    a(f"s_add_u32 s8, s6, {FL_R}")
    a("s_addc_u32 s9, s7, 0")
    a("s_load_dword s100, s[8:9], 0")
    srd(a, 24, 4, 2048*1280)
    srd(a, 36, 6, WS_SIZE)

def tag_ready(a):
    a("s_waitcnt lgkmcnt(0)")
    a("s_mul_i32 s100, s100, 1664525")
    a("s_add_u32 s100, s100, 1013904223")

def poll(a, asm_flush, issue, check_regs, nl_mask, first_tag=None):
    pass

def G_pre():
    a = Stream()
    srd(a, 32, 50, 3456)
    srd(a, 40, 52, 1728*1280)
    vR = 72
    vT = 84
    a("v_lshrrev_b32 v6, 5, v1")
    a("v_and_b32 v7, 31, v1")
    a("v_mul_u32_u24 v2, 1280, v6")
    a("v_lshl_add_u32 v2, v7, 3, v2")
    a("s_mul_i32 s22, s101, 10240")
    a("s_mul_i32 s23, s13, 2560")
    a("s_add_u32 s22, s22, s23")
    for k in range(5):
        a(f"buffer_load_dwordx2 v[{vR+2*k}:{vR+1+2*k}], v2, s[24:27], s22 offen offset:{256*k}", tag="lnr")
    V0 = 104
    a("s_lshr_b32 s58, s2, 2")
    a("s_mul_i32 s59, s58, 37")
    a("s_lshr_b32 s59, s59, 8")
    a("s_mul_i32 s60, s59, 7")
    a("s_sub_u32 s60, s58, s60")
    a("s_mul_i32 s59, s59, 216")
    a("s_lshl_b32 s61, s60, 5")
    a("s_add_u32 s22, s61, 12")
    a("s_cmp_ge_u32 s60, 3")
    a("s_cselect_b32 s61, s22, s61")
    a("s_cmp_eq_u32 s60, 6")
    a("s_cselect_b32 s61, 96, s61")
    a("s_cselect_b32 s22, 108, 16")
    a("s_cselect_b32 s23, 12, 16")
    a("s_add_u32 s59, s59, s61")
    a(f"v_lshrrev_b32 v{V0}, 1, v1")
    a(f"v_and_b32 v{V0+1}, 15, v{V0}")
    a(f"v_lshrrev_b32 v{V0}, 4, v{V0}")
    a(f"v_mul_u32_u24 v{V0}, s22, v{V0}")
    a(f"v_add3_u32 v{V0}, v{V0}, v{V0+1}, s59")
    a(f"v_mul_u32_u24 v{V0}, 1280, v{V0}")
    a(f"v_and_b32 v{V0+2}, 1, v1")
    a(f"v_lshl_add_u32 v{V0}, v{V0+2}, 4, v{V0}")
    a(f"v_cmp_gt_u32 vcc, s23, v{V0+1}")
    a(f"v_mov_b32 v{V0+2}, 0x7f000000")
    a(f"v_cndmask_b32 v{V0}, v{V0+2}, v{V0}, vcc")
    a("s_and_b32 s60, s2, 3")
    a("s_mul_i32 s60, s60, 10")
    a("s_add_u32 s60, s60, s13")
    a("s_lshl_b32 s22, s60, 5")
    a("s_mul_i32 s61, s13, 3072")
    a(f"s_add_u32 s61, s61, {L_W2}")
    for k in range(3):
        a(f"s_add_u32 m0, s61, {k*1024}")
        a(f"buffer_load_dwordx4 v{V0}, s[40:43], s22 offen lds", tag="w2l")
        if k < 2: a("s_add_u32 s22, s22, 128")
    a("v_lshrrev_b32 v8, 4, v1")
    a("v_lshlrev_b32 v8, 3, v8")
    a("s_mul_i32 s22, s16, 216")
    for ct in range(7):
        a(f"buffer_load_dwordx2 v[{240+2*ct}:{241+2*ct}], v8, s[32:35], s22 offen offset:{32*ct}", tag="b1")
    srd(a, 48, 56, 2048*1280)
    srd(a, 52, 54, 1280)
    for r in range(16, 72): a(f"v_mov_b32 v{r}, 0")
    a(f"v_mov_b32 v{vT+8}, 0x3f803f80")
    a(f"v_mov_b32 v{vT+9}, 0xffff0000")
    for k in range(4): a(f"v_mov_b32 v{vT+k}, 0")
    a("s_mul_i32 s22, s13, 2688")
    a(f"s_add_u32 s22, s22, {L_LN}")
    a("v_mul_u32_u24 v3, 1344, v6")
    a("v_lshl_add_u32 v3, v7, 3, v3")
    a("v_add_u32 v3, s22, v3")
    a("v_lshlrev_b32 v4, 3, v6")
    tag_ready(a)
    a.wait("vm", "lnr")
    for k in range(10):
        a(f"v_dot2_f32_bf16 v{vT+(k&1)}, v{vR+k}, v{vT+8}, v{vT+(k&1)}")
        a(f"v_dot2_f32_bf16 v{vT+2+(k&1)}, v{vR+k}, v{vR+k}, v{vT+2+(k&1)}")
    m = vT; q = vT+2
    a(f"v_add_f32 v{m}, v{m}, v{m+1}")
    a(f"v_add_f32 v{q}, v{q}, v{q+1}")
    for dpp in ("quad_perm:[1,0,3,2]", "quad_perm:[2,3,0,1]", "row_half_mirror", "row_mirror"):
        a(f"v_add_f32_dpp v{m}, v{m}, v{m} {dpp} row_mask:0xf bank_mask:0xf")
        a(f"v_add_f32_dpp v{q}, v{q}, v{q} {dpp} row_mask:0xf bank_mask:0xf")
    a(f"v_mov_b32 v{m+1}, v{m}")
    a(f"v_mov_b32 v{q+1}, v{q}")
    a(f"v_permlane16_swap_b32 v{m}, v{m+1}")
    a(f"v_permlane16_swap_b32 v{q}, v{q+1}")
    a(f"v_add_f32 v{m}, v{m}, v{m+1}")
    a(f"v_add_f32 v{q}, v{q}, v{q+1}")
    def rbf(r):
        a(f"v_cvt_pk_bf16_f32 v{r}, v{r}, v{r}")
        a(f"v_lshlrev_b32 v{r}, 16, v{r}")
    a(f"v_mul_f32 v{m}, {f32bits(1/640.)}, v{m}")
    a(f"v_mul_f32 v{q}, {f32bits(1/640.)}, v{q}")
    a(f"v_fma_f32 v{q}, -v{m}, v{m}, v{q}")
    a(f"v_max_f32 v{q}, 0, v{q}")
    rbf(q)
    a(f"v_add_f32 v{q}, {f32bits(1e-5)}, v{q}")
    rbf(q)
    a(f"v_sqrt_f32 v{q}, v{q}")
    a(f"v_mov_b32 v{vT+5}, s100")
    a(f"v_cvt_pk_bf16_f32 v{vT+4}, v{m}, v{q}")
    a("s_lshl_b32 s22, s101, 6")
    a("s_lshl_b32 s23, s13, 4")
    a("s_add_u32 s22, s22, s23")
    a(f"s_add_u32 s22, s22, {WS_STATS}")
    a("s_mov_b32 exec_lo, 1")
    a("s_mov_b32 exec_hi, 1")
    a(f"buffer_store_dwordx2 v[{vT+4}:{vT+5}], v4, s[36:39], s22 offen {SC}", tag="st")
    a("s_mov_b64 exec, -1")
    a(f"v_and_b32 v{q}, v{vT+9}, v{vT+4}")
    a(f"v_lshlrev_b32 v{m}, 16, v{vT+4}")
    a(f"v_rcp_f32 v{q}, v{q}")
    for k in range(10):
        x = vR+k; t0 = vT+10+(k%2)*2; t1 = t0+1
        a(f"v_lshlrev_b32 v{t0}, 16, v{x}")
        a(f"v_and_b32 v{t1}, v{vT+9}, v{x}")
        a(f"v_sub_f32 v{t0}, v{t0}, v{m}")
        a(f"v_sub_f32 v{t1}, v{t1}, v{m}")
        a(f"v_cvt_pk_bf16_f32 v{x}, v{t0}, v{t1}")
        a(f"v_lshlrev_b32 v{t0}, 16, v{x}")
        a(f"v_and_b32 v{t1}, v{vT+9}, v{x}")
        a(f"v_mul_f32 v{t0}, v{t0}, v{q}")
        a(f"v_mul_f32 v{t1}, v{t1}, v{q}")
        a(f"v_cvt_pk_bf16_f32 v{x}, v{t0}, v{t1}")
        if k % 2 == 1:
            a(f"ds_write_b64 v3, v[{x-1}:{x}] offset:{256*(k//2)}")
    a(f"v_lshlrev_b32 v{V0+1}, 3, v1")
    a(f"v_add_u32 v{V0+1}, s61, v{V0+1}")
    a("v_lshlrev_b32 v14, 4, v1")
    a("s_mul_i32 s22, s60, 57344")
    a("s_lshl_b32 s23, s58, 10")
    a("s_add_u32 s22, s22, s23")
    a(f"s_add_u32 s22, s22, {WS_W2P}")
    a("s_cmp_ge_u32 s2, 224")
    a("s_cselect_b32 s22, 0x7f000000, s22")
    a.wait("vm", "w2l")
    for k in range(3):
        b = V0+4+4*k
        a(f"ds_read_b64_tr_b16 v[{b}:{b+1}], v{V0+1} offset:{k*1024}", tag=("w2r", k))
        a(f"ds_read_b64_tr_b16 v[{b+2}:{b+3}], v{V0+1} offset:{k*1024+512}", tag=("w2r", k))
    for k in range(3):
        b = V0+4+4*k
        if k == 2:
            a("s_cmp_ge_u32 s13, 2")
            a("s_cselect_b32 s22, 0x7f000000, s22")
        a.wait("lg", ("w2r", k))
        a(f"buffer_store_dwordx4 v[{b}:{b+3}], v14, s[36:39], s22 offen {SC}", tag="st")
        if k < 2: a(f"s_add_u32 s22, s22, {4*57344}")
    a("s_lshl_b32 s22, s13, 1")
    a("s_mul_i32 s23, s13, 3")
    a("s_sub_u32 s23, s23, 2")
    a("s_cmp_lt_u32 s13, 2")
    a("s_cselect_b32 s58, s22, s23")
    a("v_bfe_u32 v6, v1, 2, 2")
    a("v_mul_u32_u24 v3, 1344, v6")
    a("v_lshrrev_b32 v6, 4, v1")
    a("v_lshl_add_u32 v3, v6, 5, v3")
    a("v_and_b32 v6, 3, v1")
    a("v_lshl_add_u32 v3, v6, 3, v3")
    a("s_lshl_b32 s22, s58, 7")
    a(f"s_add_u32 s22, s22, {L_LN}")
    a("v_add_u32 v3, s22, v3")
    a("s_mul_i32 s59, s101, 10240")
    a("s_lshl_b32 s22, s58, 10")
    a("s_add_u32 s59, s59, s22")
    a(f"s_add_u32 s59, s59, {WS_XNT}")
    a.waitall("lg")
    return a

def G_ln2():
    a = Stream()
    for c in range(3):
        b = 72+4*c
        a(f"ds_read_b64_tr_b16 v[{b}:{b+1}], v3 offset:{c*128}", tag=("l2", c))
        a(f"ds_read_b64_tr_b16 v[{b+2}:{b+3}], v3 offset:{c*128+4*1344}", tag=("l2", c))
    for c in range(3):
        b = 72+4*c
        if c == 2:
            a("s_cmp_lt_u32 s13, 2")
            a("s_cselect_b32 s59, 0x7f000000, s59")
        a.wait("lg", ("l2", c))
        a(f"buffer_store_dwordx4 v[{b}:{b+3}], v14, s[36:39], s59 offen offset:{1024*c} {SC}", tag="st")
    return a

def G_loop(D=4, R=6):
    a = Stream()
    vACC = 16; vXF = 96; vF = 112
    a("v_lshrrev_b32 v7, 4, v1")
    a("s_lshl_b32 s19, s13, 12")
    a("v_lshrrev_b32 v6, 2, v1")
    a("v_mul_u32_u24 v5, 224, v6")
    a("v_and_b32 v6, 3, v1")
    a("v_lshl_add_u32 v5, v6, 3, v5")
    a("v_add_u32 v5, 16384, v5")
    a("v_and_b32 v6, 15, v1")
    a("v_lshrrev_b32 v8, 1, v6")
    a("v_xor_b32 v8, v8, v7")
    a("v_lshlrev_b32 v8, 4, v8")
    a("v_lshl_add_u32 v11, v6, 7, v8")
    a("v_add_u32 v11, s19, v11")
    a("v_xor_b32 v12, 64, v11")
    a("v_add_u32 v13, 61440, v5")
    a("v_add_u32 v15, 61440, v11")
    a("v_add_u32 v9, 61440, v12")
    a("v_lshlrev_b32 v10, 3, v6")
    a("s_lshl_b32 s60, s15, 10")
    a("s_lshl_b32 s22, s13, 8")
    a("s_add_u32 s60, s60, s22")
    a(f"s_add_u32 s60, s60, {WS_STATS}")
    a(f"s_mov_b32 s61, {FL_A}")
    landed = [0]
    def addr(kind, t):
        slot = t % NS
        reg = {"w": (5, 13), "x0": (11, 15), "x1": (12, 9)}[kind][slot//2]
        return reg, (slot % 2)*SLOT
    def reads(g):
        s, ct = divmod(g, 7)
        t, ks2 = divmod(s, 2)
        L = []
        reg, off = addr("w", t); off += ks2*7168
        b = vF + (g % R)*4
        L.append((f"ds_read_b64_tr_b16 v[{b}:{b+1}], v{reg} offset:{off + ct*32}", ("f", g)))
        L.append((f"ds_read_b64_tr_b16 v[{b+2}:{b+3}], v{reg} offset:{off + ct*32 + 3584}", ("f", g)))
        if ct in (0, 1):
            rt = ct
            reg, off = addr("x%d" % ks2, t)
            b = vXF + (s % 2)*8 + rt*4
            L.insert(1, (f"ds_read_b128 v[{b}:{b+3}], v{reg} offset:{off + rt*2048}", ("x", s)))
        return L
    def barrier_for(g):
        t = g // 14
        if t >= landed[0]:
            if t == 3: a.waitall("vm")
            if STAGE_STAMPS:
                a("s_memrealtime s[76:77]"); a("s_waitcnt lgkmcnt(0)"); a(f"v_mov_b32 v{200+2*t}, s76")
            a("s_barrier"); landed[0] = t+1
            if STAGE_STAMPS:
                a("s_memrealtime s[76:77]"); a("s_waitcnt lgkmcnt(0)"); a(f"v_mov_b32 v{201+2*t}, s76")
            if t == 0:
                stamp(a, 2)
                a.extend(G_ln2())
                if Cfg.PROF: a.waitall("lg")
            if t == 7:
                for rt in range(2):
                    a(f"buffer_load_dwordx2 v[{72+2*rt}:{73+2*rt}], v10, s[36:39], s60 offen offset:{128*rt} {SC}", tag="gr")
            if t == 9:
                a(f"buffer_load_dwordx4 v[76:79], v14, s[36:39], s61 offen {SC}", tag="fa")
    NG = 140
    stamp(a, 1)
    for g in range(D):
        barrier_for(g)
        for x, tg in reads(g): a(x, tag=tg)
    for g in range(NG):
        s, ct = divmod(g, 7)
        rr = []
        if g + D < NG:
            barrier_for(g + D)
            rr = reads(g + D)
        a.wait("lg", [("f", g), ("x", s)])
        b = vF + (g % R)*4
        for rt in range(2):
            acc = vACC + (rt*7+ct)*4
            xb = vXF + (s % 2)*8 + rt*4
            a(f"v_mfma_f32_16x16x32_bf16 v[{acc}:{acc+3}], v[{b}:{b+3}], v[{xb}:{xb+3}], v[{acc}:{acc+3}]")
            part = rr[:len(rr)-1] if rt == 0 else rr[len(rr)-1:]
            for x, tg in part: a(x, tag=tg)
    stamp(a, 3)
    if STAGE_STAMPS:
        a("s_lshl_b32 s76, s2, 2")
        a("s_add_u32 s76, s76, s13")
        a("s_lshl_b32 s76, s76, 7")
        a(f"s_add_u32 s76, s76, {WS_PROF + (1<<18)}")
        a("v_mov_b32 v220, 0")
        a("s_mov_b64 exec, 1")
        for i in range(5):
            a(f"buffer_store_dwordx4 v[{200+4*i}:{203+4*i}], v220, s[36:39], s76 offen offset:{16*i}")
        a("s_mov_b64 exec, -1")
    return a

def check_tags(a, regs, again_label, sl=None):
    a(f"v_cmp_ne_u32 vcc, s100, v{regs[0]}")
    for r in regs[1:]:
        a(f"v_cmp_ne_u32 s[62:63], s100, v{r}")
        a("s_or_b64 vcc, vcc, s[62:63]")
    out = newlabel("CT")
    a(f"s_cbranch_vccz {out}")
    a("s_add_u32 s79, s79, 1")
    a(f"s_cmp_lt_u32 s79, {SPIN_MAX}")
    a(f"s_cbranch_scc1 {again_label}")
    a.label(out)

def g2_addr(a):
    a("v_lshlrev_b32 v2, 4, v1")
    for dl in range(1, 5): a(f"v_add_u32 v{2+dl}, {dl*57344}, v2")
    a("s_and_b32 s46, s45, 3")
    a("s_mul_i32 s46, s46, 7")
    a("s_lshr_b32 s46, s46, 1")
    a("s_mov_b32 s47, s46")
    a("s_mul_i32 s22, s13, 14336")
    a(f"s_mul_i32 s56, s44, {4*57344}")
    a("s_add_u32 s56, s56, s22")
    a(f"s_mul_i32 s57, s45, {5*57344}")
    a("s_add_u32 s57, s57, s22")
    a(f"s_add_u32 s57, s57, {WS_W2P}")

vW = 160; vH = 96
def issue_w(a, i):
    b = vW + (i % 4)*20
    a("s_lshl_b32 s23, s47, 10")
    a("s_add_u32 s23, s23, s57")
    for dl in range(5):
        a(f"buffer_load_dwordx4 v[{b+4*dl}:{b+3+4*dl}], v{2+dl}, s[36:39], s23 offen {SC}", tag=("k", i))
    a("s_add_u32 s47, s47, 1")
    a("s_cmp_eq_u32 s47, 14")
    a("s_cselect_b32 s47, 0, s47")
def issue_h(a, i):
    b = vH + (i % 4)*16
    a("s_lshl_b32 s22, s46, 10")
    a("s_add_u32 s22, s22, s56")
    for li in range(4):
        a(f"buffer_load_dwordx4 v[{b+4*li}:{b+3+4*li}], v{7+li}, s[36:39], s22 offen {SC}", tag=("k", i))
    a("s_add_u32 s46, s46, 1")
    a("s_cmp_eq_u32 s46, 14")
    a("s_cselect_b32 s46, 0, s46")

def G_gelu():
    a = Stream()
    vACC = 16; vST = 72; vCSR = 80; vBB = 108
    a("v_lshlrev_b32 v9, 4, v7")
    a(f"v_add_u32 v9, {L_CS}, v9")
    for ct in range(7):
        a(f"ds_read_b128 v[{vCSR+4*ct}:{vCSR+3+4*ct}], v9 offset:{64*ct}", tag="cs")
    a(f"v_mov_b32 v15, {f32bits(GELU_K1)}")
    a(f"s_mov_b32 s64, {f32bits(GELU_K2)}")
    a("s_mov_b32 s65, 0xffff0000")
    for rt in range(2):
        m = vST+rt*2; q = m+1
        a(f"v_and_b32 v{q}, s65, v{m}")
        a(f"v_lshlrev_b32 v{m}, 16, v{m}")
        a(f"v_rcp_f32 v{q}, v{q}")
    for ct in range(7):
        a(f"v_lshlrev_b32 v{vBB+4*ct}, 16, v{240+2*ct}")
        a(f"v_and_b32 v{vBB+1+4*ct}, s65, v{240+2*ct}")
        a(f"v_lshlrev_b32 v{vBB+2+4*ct}, 16, v{241+2*ct}")
        a(f"v_and_b32 v{vBB+3+4*ct}, s65, v{241+2*ct}")
    a("s_lshl_b32 s66, s15, 3")
    a("s_lshl_b32 s67, s13, 1")
    a("s_add_u32 s66, s66, s67")
    a("s_mul_i32 s66, s66, 57344")
    a("s_lshr_b32 s67, s16, 1")
    a("s_mul_i32 s67, s67, 7168")
    a("s_add_u32 s66, s66, s67")
    a("s_and_b32 s67, s16, 1")
    a("s_mul_i32 s68, s67, 3072")
    a("s_add_u32 s68, s68, s66")
    a("s_lshl_b32 s69, s67, 3")
    a("s_add_u32 s69, s69, s66")
    a("s_add_u32 s69, s69, 6144")
    a("v_cmp_gt_u32 s[70:71], 48, v1")
    a.wait("lg", "cs")
    for rt in range(2):
        m = vST+rt*2; q = m+1
        for ct in range(7):
            acc = vACC + (rt*7+ct)*4
            t = 136 + (ct % 2)*4
            for r in range(4): a(f"v_fma_f32 v{acc+r}, -v{m}, v{vCSR+4*ct+r}, v{acc+r}")
            for r in range(4): a(f"v_fma_f32 v{acc+r}, v{acc+r}, v{q}, v{vBB+4*ct+r}")
            for r in range(4): a(f"v_mul_f32 v{t+r}, v{acc+r}, v{acc+r}")
            for r in range(4): a(f"v_fma_f32 v{t+r}, v{t+r}, s64, v15")
            for r in range(4): a(f"v_mul_f32 v{t+r}, v{acc+r}, v{t+r}")
            for r in range(4): a(f"v_exp_f32 v{t+r}, v{t+r}")
            for r in range(4): a(f"v_add_f32 v{t+r}, 1.0, v{t+r}")
            for r in range(4): a(f"v_rcp_f32 v{t+r}, v{t+r}")
            for r in range(4): a(f"v_mul_f32 v{acc+r}, v{acc+r}, v{t+r}")
            o = 144 + ((ct//2) % 2)*4 + (ct % 2)*2
            a(f"v_cvt_pk_bf16_f32 v{o}, v{acc}, v{acc+1}")
            a(f"v_cvt_pk_bf16_f32 v{o+1}, v{acc+2}, v{acc+3}")
            if ct % 2 == 1:
                p = ct//2
                ob = 144 + (p % 2)*4
                a(f"buffer_store_dwordx4 v[{ob}:{ob+3}], v14, s[36:39], s68 offen offset:{1024*p} {SC}", tag="hs")
            if ct == 6:
                a(f"v_cndmask_b32 v{o}, 0, v{o}, s[70:71]")
                a(f"v_cndmask_b32 v{o+1}, 0, v{o+1}, s[70:71]")
                a(f"buffer_store_dwordx2 v[{o}:{o+1}], v14, s[36:39], s69 offen {SC}", tag="hs")
            a.mark("slot")
        if rt == 0:
            a("s_add_u32 s68, s68, 57344")
            a("s_add_u32 s69, s69, 57344")
    return a

def G_gemm2_main():
    a = Stream()
    vACC = 16; vX = 240
    for i in range(4): issue_h(a, i)
    stamp(a, 6)
    a("v_and_b32 v11, 15, v1")
    a("v_lshrrev_b32 v12, 4, v1")
    a("v_mul_u32_u24 v13, 1280, v11")
    a("v_lshl_add_u32 v13, v12, 3, v13")
    a("s_lshl_b32 s58, s44, 2")
    a("s_add_u32 s58, s58, s13")
    a("s_mul_i32 s58, s58, 20480")
    a("s_mul_i32 s22, s45, 160")
    a("s_add_u32 s58, s58, s22")
    for i in range(14):
        bw = vW + (i % 4)*20; bh = vH + (i % 4)*16
        a.wait("vm", ("k", i))
        for dl in range(5):
            for li in range(4):
                c = vACC + (li*5+dl)*4
                a(f"v_mfma_f32_16x16x32_bf16 v[{c}:{c+3}], v[{bw+4*dl}:{bw+3+4*dl}], v[{bh+4*li}:{bh+3+4*li}], v[{c}:{c+3}]")
        if i + 4 < 14:
            issue_h(a, i + 4); issue_w(a, i + 4)
        if i == 10:
            for dl in range(5):
                a(f"buffer_load_dwordx2 v[{vX+2*dl}:{vX+1+2*dl}], v13, s[24:27], s58 offen offset:{32*dl}", tag="x")
            a("v_lshlrev_b32 v14, 3, v12")
            a("s_mul_i32 s22, s45, 160")
            for dl in range(5):
                a(f"buffer_load_dwordx2 v[{128+2*dl}:{129+2*dl}], v14, s[52:55], s22 offen offset:{32*dl}", tag="b2")
    stamp(a, 7)
    return a

def G_final():
    a = Stream()
    vACC = 16; vX = 240; vB2 = 128
    REDOFF = 0; ATOFF = 61440
    a("v_lshrrev_b32 v14, 1, v1")
    a("v_lshlrev_b32 v14, 12, v14")
    a("v_and_b32 v15, 1, v1")
    a("v_lshl_add_u32 v14, v15, 4, v14")
    a(f"s_mul_i32 s22, s45, {80*4096}")
    a("s_lshl_b32 s23, s44, 2")
    a("s_add_u32 s23, s23, s13")
    a("s_lshl_b32 s23, s23, 5")
    a("s_add_u32 s22, s22, s23")
    a(f"s_add_u32 s22, s22, {WS_AT}")
    for i in range(3):
        if i == 2: a("s_mov_b32 exec_hi, 0")
        a(f"buffer_load_dwordx4 v[{96+4*i}:{99+4*i}], v14, s[36:39], s22 offen {SC}", tag="at")
        if i < 2: a(f"s_add_u32 s22, s22, {32*4096}")
    a("s_mov_b64 exec, -1")
    a("s_barrier")
    for li in range(1, 4):
        a(f"s_add_u32 s22, s13, {li}")
        a("s_and_b32 s22, s22, 3")
        a("s_mul_i32 s22, s22, 15360")
        a(f"s_add_u32 s22, s22, {REDOFF + (li-1)*5120}")
        a("v_add_u32 v15, s22, v2")
        for dl in range(5):
            c = vACC + (li*5+dl)*4
            a(f"ds_write_b128 v15, v[{c}:{c+3}] offset:{dl*1024}")
    a.waitall("lg")
    a("s_barrier")
    a("s_mul_i32 s22, s13, 15360")
    a("v_add_u32 v15, s22, v2")
    RB = 140
    for k in range(15):
        a(f"ds_read_b128 v[{RB+4*k}:{RB+3+4*k}], v15 offset:{k*1024}", tag=("r", k))
    a("s_mul_i32 s22, s13, 3072")
    a(f"s_add_u32 s22, s22, {ATOFF}")
    a("v_add_u32 v14, s22, v2")
    a.wait("vm", "at")
    for i in range(3):
        a(f"ds_write_b128 v14, v[{96+4*i}:{99+4*i}] offset:{i*1024}", tag="atw")
    a("v_lshlrev_b32 v14, 3, v1")
    a("v_add_u32 v14, s22, v14")
    for dl in range(5):
        a(f"ds_read_b64_tr_b16 v[{110+2*dl}:{111+2*dl}], v14 offset:{dl*512}", tag=("atr", dl))
    for k in range(15):
        a.wait("lg", ("r", k))
        c = vACC + (k % 5)*4
        for r in range(4): a(f"v_add_f32 v{c+r}, v{c+r}, v{RB+4*k+r}")
    a("s_mov_b32 s59, 0xffff0000")
    for dl in range(5):
        c = vACC + dl*4
        t = 200 + (dl % 2)*16
        a(f"v_cvt_pk_bf16_f32 v{t}, v{c}, v{c+1}")
        a(f"v_cvt_pk_bf16_f32 v{t+1}, v{c+2}, v{c+3}")
        def unpack(dst, src):
            a(f"v_lshlrev_b32 v{dst}, 16, v{src}")
            a(f"v_and_b32 v{dst+1}, s59, v{src}")
            a(f"v_lshlrev_b32 v{dst+2}, 16, v{src+1}")
            a(f"v_and_b32 v{dst+3}, s59, v{src+1}")
        unpack(c, t)
        unpack(t+2, vB2+2*dl)
        for r in range(4): a(f"v_add_f32 v{c+r}, v{c+r}, v{t+2+r}")
        a(f"v_cvt_pk_bf16_f32 v{t}, v{c}, v{c+1}")
        a(f"v_cvt_pk_bf16_f32 v{t+1}, v{c+2}, v{c+3}")
        unpack(c, t)
        unpack(t+2, vX+2*dl)
        a.wait("lg", ("atr", dl))
        unpack(t+6, 110+2*dl)
        for r in range(4): a(f"v_add_f32 v{t+2+r}, v{t+2+r}, v{t+6+r}")
        a(f"v_cvt_pk_bf16_f32 v{t}, v{t+2}, v{t+3}")
        a(f"v_cvt_pk_bf16_f32 v{t+1}, v{t+4}, v{t+5}")
        unpack(t+2, t)
        for r in range(4): a(f"v_add_f32 v{c+r}, v{c+r}, v{t+2+r}")
        a(f"v_cvt_pk_bf16_f32 v{t+10}, v{c}, v{c+1}")
        a(f"v_cvt_pk_bf16_f32 v{t+11}, v{c+2}, v{c+3}")
        a(f"buffer_store_dwordx2 v[{t+10}:{t+11}], v13, s[48:51], s58 offen offset:{32*dl}")
    return a

def emit_G(a):
    a("s_setprio 3")
    st = Stream()
    st.extend(G_pre()); st.extend(G_loop())
    st.waitall("vm")
    resolve(st.items, a)
    a("s_branch G_CHK")
    a.label("G_RETRY")
    a("s_sleep 2")
    for rt in range(2):
        a(f"buffer_load_dwordx2 v[{72+2*rt}:{73+2*rt}], v10, s[36:39], s60 offen offset:{128*rt} {SC}")
    a(f"buffer_load_dwordx4 v[76:79], v14, s[36:39], s61 offen {SC}")
    a("s_waitcnt vmcnt(0)")
    a.label("G_CHK")
    check_tags(a, [73, 75, 76, 77, 78, 79], "G_RETRY")
    a("s_or_b32 s22, s2, s12")
    a("s_cmp_lg_u32 s22, 0")
    a("s_cbranch_scc1 G_NOR")
    a("v_mov_b32 v8, s100")
    a("v_mov_b32 v9, 0")
    a(f"s_mov_b32 s22, {FL_R}")
    a("s_mov_b64 exec, 1")
    a(f"buffer_store_dword v8, v9, s[36:39], s22 offen {SC}")
    a("s_mov_b64 exec, -1")
    a.label("G_NOR")
    a("s_barrier")
    st = Stream()
    stamp(st, 4)
    g2_addr(st)
    wl = Stream()
    for i in range(4):
        sub = Stream(); issue_w(sub, i)
        wl.atomic(sub.items)
    ge = G_gelu()
    items = interleave(ge.items, wl.items, 1)
    st.items.extend(items)
    for li in range(4):
        st(f"s_add_u32 s22, s13, {li}")
        st("s_and_b32 s22, s22, 3")
        st("s_mul_i32 s22, s22, 57344")
        st(f"v_add_u32 v{7+li}, s22, v2")
    for r in range(16, 96): st(f"v_mov_b32 v{r}, 0")
    st("s_lshl_b32 s22, s15, 1")
    st("s_lshr_b32 s23, s13, 1")
    st("s_add_u32 s22, s22, s23")
    st("s_lshl_b32 s22, s22, 7")
    st("s_and_b32 s23, s13, 1")
    st("s_lshl_b32 s23, s23, 4")
    st("s_add_u32 s23, s23, s16")
    st("s_lshl_b32 s23, s23, 2")
    st("s_add_u32 s22, s22, s23")
    st(f"s_add_u32 s22, s22, {FL_H}")
    st("v_mov_b32 v11, s100")
    st("v_mov_b32 v12, 0")
    st("v_and_b32 v13, 31, v1")
    st("v_lshlrev_b32 v13, 2, v13")
    st("s_lshl_b32 s59, s44, 7")
    st(f"s_add_u32 s59, s59, {FL_H}")
    st.waitall("vm")
    st("s_mov_b64 exec, 1")
    st(f"buffer_store_dword v11, v12, s[36:39], s22 offen {SC}")
    st("s_mov_b64 exec, -1")
    stamp(st, 5)
    resolve(st.items, a)
    a.label("G_PH")
    a(f"buffer_load_dword v15, v13, s[36:39], s59 offen {SC}")
    a("s_waitcnt vmcnt(0)")
    check_tags(a, [15], "G_PH")
    st = Stream()
    st.extend(G_gemm2_main())
    st("v_min_u32 v15, 19, v1")
    st("v_lshlrev_b32 v15, 4, v15")
    st("s_lshl_b32 s59, s45, 9")
    st(f"s_add_u32 s59, s59, {FL_Y}")
    resolve(st.items, a)
    a.label("G_PY")
    a(f"buffer_load_dwordx4 v[96:99], v15, s[36:39], s59 offen {SC}")
    a("s_waitcnt vmcnt(0)")
    check_tags(a, [96, 97, 98, 99], "G_PY")
    st = Stream()
    stamp(st, 8)
    st.extend(G_final())
    if Cfg.PROF: st.waitall("vm")
    stamp(st, 9)
    resolve(st.items, a)
    prof_flush(a, 10, 36, 12)
    a("s_endpgm")

def S_dma(publish_fa):
    a = Stream()
    a("v_lshrrev_b32 v6, 3, v1")
    a("v_and_b32 v7, 7, v1")
    a("v_lshrrev_b32 v8, 4, v1")
    a("v_xor_b32 v7, v7, v8")
    a("v_mul_u32_u24 v2, 1280, v6")
    a("v_lshl_add_u32 v2, v7, 4, v2")
    a("v_xor_b32 v3, 64, v2")
    a("v_mul_u32_u24 v8, 4682, v1")
    a("v_lshrrev_b32 v8, 16, v8")
    a("v_mul_u32_u24 v9, 14, v8")
    a("v_sub_u32 v9, v1, v9")
    a("v_mul_u32_u24 v4, 3456, v8")
    a("v_lshl_add_u32 v4, v9, 4, v4")
    a("s_lshl_b32 s18, s15, 2")
    a("s_add_u32 s18, s18, s13")
    a("s_mul_i32 s18, s18, 40960")
    a("s_mul_i32 s20, s13, 27648")
    a("s_mul_i32 s22, s16, 216")
    a("s_add_u32 s20, s20, s22")
    a("s_lshl_b32 s19, s13, 12")
    a("s_mul_i32 s21, s13, 896")
    a("s_add_u32 s21, s21, 16384")
    a("s_mov_b32 s40, -1")
    a("s_mov_b32 s41, 0x00ffffff")
    def issue(t, marks):
        sb = (t % NS)*SLOT
        a("s_lshl_b32 s22, s17, 7")
        a("s_add_u32 s22, s22, s18")
        a("s_mul_i32 s23, s17, 221184")
        a("s_add_u32 s23, s23, s20")
        for i in range(4):
            ks2, h = divmod(i, 2)
            a(f"s_add_u32 m0, s21, {sb + ks2*7168 + h*3584}")
            a("s_mov_b64 exec, s[40:41]")
            a("buffer_load_dwordx4 v4, s[28:31], s23 offen lds", tag=("st", t))
            a("s_mov_b64 exec, -1")
            if i < 3: a(f"s_add_u32 s23, s23, {4*3456 if h == 0 else 28*3456}")
            if marks: a.mark("slot")
            a(f"s_add_u32 m0, s19, {sb + i*1024}")
            a("s_nop 0")
            a(f"buffer_load_dwordx4 v{2 + (i&1)}, s[24:27], s22 offen lds", tag=("st", t))
            if i < 3: a("s_add_u32 s22, s22, 10240")
            if marks: a.mark("slot")
        a("s_add_u32 s17, s17, 1")
        a("s_cmp_eq_u32 s17, 10")
        a("s_cselect_b32 s17, 0, s17")
    issue(0, False); issue(1, False)
    a.mark("ld")
    stamp(a, 1)
    a("v_lshrrev_b32 v6, 2, v1")
    a("v_mul_u32_u24 v10, 224, v6")
    a("v_and_b32 v6, 3, v1")
    a("v_lshl_add_u32 v10, v6, 3, v10")
    a("s_lshl_b32 s22, s13, 5")
    a("s_add_u32 s22, s22, 16384")
    a("v_add_u32 v10, s22, v10")
    a("v_add_u32 v14, 61440, v10")
    for r in range(16, 24): a(f"v_mov_b32 v{r}, 0")
    for r in range(24, 28): a(f"v_mov_b32 v{r}, 0x3f803f80")
    a("v_lshlrev_b32 v15, 4, v1")
    tag_ready(a)
    a.mark("pre")
    for t in range(NST):
        a.wait("vm", ("st", t))
        a("s_barrier")
        slot = t % NS
        reg = (10, 14)[slot//2]; off = (slot % 2)*SLOT
        for ks2 in range(2):
            for j in range(2):
                b = 28 + (ks2*2+j)*4
                a(f"ds_read_b64_tr_b16 v[{b}:{b+1}], v{reg} offset:{off + ks2*7168 + j*128}", tag=("cs", t))
                a(f"ds_read_b64_tr_b16 v[{b+2}:{b+3}], v{reg} offset:{off + ks2*7168 + j*128 + 3584}", tag=("cs", t))
        if t == 3 and publish_fa:
            a("v_mov_b32 v5, s100")
            a("v_mov_b32 v6, 0")
            a("s_lshl_b32 s22, s2, 2")
            a(f"s_add_u32 s22, s22, {FL_A}")
            a("s_cmp_eq_u32 s13, 3")
            a("s_cselect_b32 s22, s22, 0x7f000000")
            a("s_mov_b64 exec, 1")
            a(f"buffer_store_dword v5, v6, s[36:39], s22 offen {SC}", tag="fast")
            a("s_mov_b64 exec, -1")
        if t + 2 < NST:
            issue(t + 2, True)
        else:
            if t == 8 and not publish_fa:
                a(f"s_mov_b32 s22, {FL_A}")
                a(f"buffer_load_dwordx4 v[44:47], v15, s[36:39], s22 offen {SC}", tag="fa")
            for _ in range(6): a.mark("slot")
        a.wait("lg", ("cs", t))
        for ks2 in range(2):
            for j in range(2):
                b = 28 + (ks2*2+j)*4
                a(f"v_mfma_f32_16x16x32_bf16 v[{16+4*j}:{19+4*j}], v[{b}:{b+3}], v[24:27], v[{16+4*j}:{19+4*j}]")
    a("v_lshrrev_b32 v7, 4, v1")
    a("v_lshlrev_b32 v9, 4, v7")
    a("s_lshl_b32 s22, s13, 6")
    a(f"s_add_u32 s22, s22, {L_CS}")
    a("v_add_u32 v10, s22, v9")
    a("v_and_b32 v6, 15, v1")
    a("v_cmp_eq_u32 vcc, 0, v6")
    a("s_and_saveexec_b64 s[42:43], vcc")
    a("ds_write_b128 v10, v[16:19]")
    a("ds_write_b128 v10, v[20:23] offset:256")
    a("s_mov_b64 exec, -1")
    a.waitall("lg")
    return a

def kgen(V0=48, sD=47, sL=46):
    ld = Stream(); a = Stream()
    vRAW = V0
    vP = V0+8
    ZB = V0+20
    vPK = V0+68
    vF = V0+72
    vG = V0+104
    vAD = V0+120
    vACC = V0+124
    vO = V0+136
    assert vPK % 2 == 0 and vF % 4 == 0 and vG % 4 == 0 and vACC % 4 == 0 and vO % 4 == 0
    ld(f"v_lshlrev_b32 v{vAD}, 2, v1")
    ld(f"s_lshl_b32 s76, s{sD}, 8")
    ld(f"v_add_u32 v{vAD}, s76, v{vAD}")
    for k in range(6):
        ld(f"global_load_dword v{vRAW+k}, v{vAD}, s[{60+2*k}:{61+2*k}]", tag="kp")
    ld(f"s_lshl_b32 s76, s{sD}, 1")
    ld(f"v_mov_b32 v{vAD+1}, s76")
    ld(f"global_load_ushort v{vRAW+6}, v{vAD+1}, s[72:73]", tag="kp")
    ld(f"global_load_ushort v{vRAW+7}, v{vAD+1}, s[74:75]", tag="kp")
    a(f"v_lshlrev_b32 v{vAD}, 3, v1")
    a(f"v_add_u32 v{vAD}, s{sL}, v{vAD}")
    a(f"v_and_b32 v{vAD+2}, 15, v1")
    a(f"v_lshrrev_b32 v{vAD+3}, 4, v1")
    a(f"v_mul_u32_u24 v{vAD+1}, 544, v{vAD+2}")
    a(f"v_lshl_add_u32 v{vAD+1}, v{vAD+3}, 4, v{vAD+1}")
    a(f"v_add_u32 v{vAD+1}, s{sL}, v{vAD+1}")
    for r in range(12): a(f"v_mov_b32 v{vACC+r}, 0")
    a.wait("vm", "kp")
    dt = vRAW+6; T0 = ZB+22
    a(f"v_lshlrev_b32 v{dt}, 16, v{dt}")
    a(f"v_lshlrev_b32 v{vRAW+7}, 16, v{vRAW+7}")
    hi = struct.unpack("<f", struct.pack("<f", LOG2E))[0]; lo = LOG2E - hi
    a(f"s_mov_b32 s76, {f32bits(hi)}")
    a(f"s_mov_b32 s77, {f32bits(lo)}")
    a(f"v_mul_f32 v{T0}, s76, v{dt}")
    a(f"v_readfirstlane_b32 s58, v{vRAW+7}")
    a(f"v_fma_f32 v{T0+1}, v{dt}, s76, -v{T0}")
    a(f"v_exp_f32 v{T0}, v{T0}")
    a(f"v_fma_f32 v{T0+1}, v{dt}, s77, v{T0+1}")
    a(f"v_mul_f32 v{T0+1}, {f32bits(math.log(2))}, v{T0+1}")
    for k in range(6):
        a(f"v_lshlrev_b32 v{vP+k}, 16, v{vRAW+k}")
        a(f"v_and_b32 v{vP+6+k}, 0xffff0000, v{vRAW+k}")
    a(f"v_fma_f32 v{dt}, v{T0}, v{T0+1}, v{T0}")
    a(f"v_cvt_pk_bf16_f32 v{dt}, v{dt}, v{dt}")
    a(f"v_lshlrev_b32 v{dt}, 16, v{dt}")
    def R(c, x):
        if isinstance(x, tuple): return vP + 6*c + x[1]
        return ZB + 24*c + x
    def both(fmt, *regs):
        for c in range(2):
            a(fmt.format(*[R(c, x) for x in regs]))
    def z(k): return 2*(k-1)
    Z8 = 14; Z128 = 16; CUR = 18; W0 = 20; T = 22
    def inc(x): return ("p", x[1]+1) if isinstance(x, tuple) else x+1
    def cmul(d, x, y):
        assert d != x and d != y
        both("v_mul_f32 v{0}, v{1}, v{2}", T, inc(x), inc(y))
        both("v_mul_f32 v{0}, v{1}, v{2}", T+1, inc(x), y)
        both("v_fma_f32 v{0}, v{1}, v{2}, -v{3}", d, x, y, T)
        both("v_fma_f32 v{0}, v{1}, v{2}, v{3}", d+1, x, inc(y), T+1)
    def csq(d, x):
        both("v_mul_f32 v{0}, v{1}, v{1}", T, x+1)
        both("v_add_f32 v{0}, v{1}, v{1}", T+1, x)
        both("v_fma_f32 v{0}, v{1}, v{1}, -v{2}", d, x, T)
        both("v_mul_f32 v{0}, v{1}, v{2}", d+1, T+1, x+1)
    pk = [0]; pend = []
    def flush():
        while pend: a(pend.pop(0))
    def put(row, x, neg=False):
        flush()
        r = vPK + 2*(pk[0] % 2); pk[0] += 1
        for c in range(2):
            a(f"v_cvt_pk_bf16_f32 v{r+c}, v{R(c,x)}, {'-' if neg else ''}v{R(c,x+1)}")
        pend.append(f"ds_write_b64 v{vAD}, v[{r}:{r+1}] offset:{row*544}")
    def direct(d, e):
        if e != 1:
            both(f"v_mul_f32 v{{0}}, {f32bits(float(e))}, v{{1}}", T, ("p", 0))
            both(f"v_mul_f32 v{{0}}, {f32bits(float(e))}, v{{1}}", T+1, ("p", 1))
            both("v_exp_f32 v{0}, v{0}", T)
            both("v_fract_f32 v{0}, v{0}", T+1)
        else:
            both("v_exp_f32 v{0}, v{1}", T, ("p", 0))
            both("v_fract_f32 v{0}, v{1}", T+1, ("p", 1))
        both("v_cos_f32 v{0}, v{1}", d, T+1)
        both("v_sin_f32 v{0}, v{1}", d+1, T+1)
        both("v_mul_f32 v{0}, v{1}, v{0}", d, T)
        both("v_mul_f32 v{0}, v{1}, v{0}", d+1, T)
    def tile(acc, swap, name):
        flush()
        for h in range(2):
            for k in range(4):
                a(f"ds_read_b128 v[{vG+4*k}:{vG+3+4*k}], v{vAD+1} offset:{64*(4*h+k)}", tag=(name, h))
            a.wait("lg", [(name, h), "kb"])
            for k in range(4):
                A = f"v[{vG+4*k}:{vG+3+4*k}]"; B = f"v[{vF+4*(4*h+k)}:{vF+3+4*(4*h+k)}]"
                if swap: A, B = B, A
                a(f"v_mfma_f32_16x16x32_bf16 v[{acc}:{acc+3}], {A}, {B}, v[{acc}:{acc+3}]")
    for k in range(4):
        for c in range(2): a(f"v_mul_f32 v{vP+6*c+k}, v{dt}, v{vP+6*c+k}")
    both(f"v_mul_f32 v{{0}}, {f32bits(LOG2E)}, v{{0}}", ("p", 0))
    both("v_mul_f32 v{0}, 0.15915494, v{0}", ("p", 1))
    cmul(CUR, ("p", 4), ("p", 2))
    direct(z(1), 1)
    direct(Z128, 128)
    csq(z(2), z(1)); csq(z(4), z(2)); csq(Z8, z(4))
    cur, oth = CUR, W0
    for b in range(16):
        put(b, cur, neg=True)
        if b < 15:
            cmul(oth, cur, Z8); cur, oth = oth, cur
    flush()
    for k in range(8):
        a(f"ds_read_b128 v[{vF+4*k}:{vF+3+4*k}], v{vAD+1} offset:{64*k}", tag="kb")
    cmul(z(3), z(2), z(1)); cmul(z(5), z(4), z(1)); cmul(z(6), z(4), z(2)); cmul(z(7), z(4), z(3))
    r = vPK + 2*(pk[0] % 2); pk[0] += 1
    a(f"v_mov_b32 v{r}, 0x3f80"); a(f"v_mov_b32 v{r+1}, 0x3f80")
    pend.append(f"ds_write_b64 v{vAD}, v[{r}:{r+1}]")
    for k in range(1, 8): put(k, z(k))
    put(8, Z128)
    for k in range(1, 8):
        cmul(W0, Z128, z(k)); put(8+k, W0)
    csq(CUR, Z128)
    tile(vACC, False, "k0")
    cur, oth = CUR, z(1)
    for half in range(2):
        put(4*half, cur)
        for k in range(1, 4):
            cmul(W0, cur, z(2*k)); put(4*half+k, W0)
        cmul(oth, cur, Z128); cur, oth = oth, cur
    for al in range(4):
        put(8+2*al, cur)
        cmul(W0, cur, z(4)); put(9+2*al, W0)
        cmul(oth, cur, Z128); cur, oth = oth, cur
    tile(vACC+4, False, "k1")
    for i in range(9):
        put(i, cur)
        if i < 8:
            cmul(oth, cur, Z128); cur, oth = oth, cur
    tile(vACC+8, True, "k2")
    j = vAD+2; q = vAD+3; t = ZB
    a(f"v_lshrrev_b32 v{t}, 1, v{q}")
    a(f"v_lshlrev_b32 v{t}, 8, v{t}")
    a(f"v_lshl_add_u32 v{t}, v{j}, 4, v{t}")
    a(f"v_and_b32 v{t+1}, 1, v{q}")
    a(f"v_lshl_add_u32 v{t}, v{t+1}, 3, v{t}")
    a(f"v_add_u32 v{t}, s{sL}, v{t}")
    a(f"v_cmp_gt_u32 s[76:77], 2, v{q}")
    a(f"v_lshlrev_b32 v{t+2}, 2, v{j}")
    a(f"v_lshlrev_b32 v{t+3}, 3, v{j}")
    a(f"v_cndmask_b32 v{t+2}, v{t+2}, v{t+3}, s[76:77]")
    a(f"v_lshl_add_u32 v{t+2}, v{q}, 7, v{t+2}")
    a(f"v_add_u32 v{t+2}, s{sL}, v{t+2}")
    a(f"v_cndmask_b32 v{t+3}, 64, 4, s[76:77]")
    a(f"v_add_u32 v{t+3}, v{t+2}, v{t+3}")
    a(f"v_lshlrev_b32 v{t+4}, 5, v{j}")
    a(f"v_lshl_add_u32 v{t+4}, v{q}, 3, v{t+4}")
    a(f"v_add_u32 v{t+4}, s{sL}, v{t+4}")
    for k in range(3):
        a(f"v_cvt_pk_bf16_f32 v{t+6+2*k}, v{vACC+4*k}, v{vACC+4*k+1}")
        a(f"v_cvt_pk_bf16_f32 v{t+7+2*k}, v{vACC+4*k+2}, v{vACC+4*k+3}")
    a(f"ds_write_b64 v{t}, v[{t+6}:{t+7}]")
    a(f"ds_write_b32 v{t+2}, v{t+8} offset:512")
    a(f"ds_write_b32 v{t+3}, v{t+9} offset:512")
    a(f"ds_write_b64 v{t+4}, v[{t+10}:{t+11}] offset:1024")
    p = vF
    t = ZB+12
    a(f"v_lshlrev_b32 v{t}, 4, v1")
    a(f"v_lshlrev_b32 v{t+1}, 3, v1")
    a(f"v_add_u32 v{t+1}, 256, v{t+1}")
    a(f"v_cmp_gt_u32 s[76:77], 32, v1")
    a(f"v_cndmask_b32 v{t}, v{t+1}, v{t}, s[76:77]")
    a(f"v_add_u32 v{t}, s{sL}, v{t}")
    a(f"ds_read_b64 v[{p}:{p+1}], v{t}", tag="e0")
    a(f"ds_read_b64 v[{p+2}:{p+3}], v{t} offset:8", tag="e0")
    a(f"v_lshlrev_b32 v{t+1}, 2, v1")
    a(f"v_add_u32 v{t+1}, s{sL}, v{t+1}")
    a(f"ds_read2_b32 v[{p+4}:{p+5}], v{t+1} offset0:192 offset1:193", tag="e1")
    a(f"v_lshlrev_b32 v{t+6}, 1, v1")
    a(f"v_add_u32 v{t+6}, s{sL}, v{t+6}")
    for it in (2, 3):
        a(f"ds_read_u16 v{p+2+2*it}, v{t+6} offset:{1024+128*(it-2)}", tag=("e", it))
        a(f"ds_read_u16 v{p+3+2*it}, v{t+6} offset:{1026+128*(it-2)}", tag=("e", it))
    a(f"v_and_b32 v{t+2}, 1, v1")
    a(f"v_cmp_eq_u32 s[76:77], 1, v{t+2}")
    a(f"v_mov_b32 v{t+2}, 0x01000504")
    a(f"v_mov_b32 v{t+3}, 0x05040504")
    a(f"v_cndmask_b32 v{t+4}, v{t+2}, v{t+3}, s[76:77]")
    a(f"v_mov_b32 v{t+5}, 0x03020504")
    a("s_mov_b32 s76, 0x01000100")
    a("s_mov_b32 s77, 0x03020302")
    a.wait("lg", "e0")
    o = vO
    for k in range(4): a(f"v_alignbit_b32 v{o+k}, v{p+3-k}, v{p+3-k}, 16")
    a.atomic([("s_mov_b32 exec_lo, 0", None),
              (f"v_perm_b32 v{o}, v{p+2}, v{p+1}, v{t+5}", None),
              (f"v_perm_b32 v{o+1}, v{p+1}, v{p+1}, s76", None),
              (f"v_perm_b32 v{o+2}, v{p+1}, v{p}, v{t+5}", None),
              (f"v_perm_b32 v{o+3}, v{p}, v{p}, s76", None),
              ("s_mov_b32 exec_lo, -1", None)])
    a.wait("lg", "e1")
    o = vO+4
    a(f"v_perm_b32 v{o}, v{p+5}, v{p+5}, s76")
    a(f"v_perm_b32 v{o+1}, v{p+4}, v{p+4}, s77")
    a(f"v_alignbit_b32 v{o+2}, v{p+4}, v{p+4}, 16")
    a(f"v_perm_b32 v{o+3}, v{p+4}, v{p+4}, s76")
    for it in (2, 3):
        a.wait("lg", ("e", it))
        o = vO+4*it; sa = p+2+2*it; se = sa+1
        a(f"v_perm_b32 v{o}, v{se}, v{se}, s76")
        a(f"v_perm_b32 v{o+1}, v{se}, v{sa}, v{t+4}")
        a(f"v_perm_b32 v{o+2}, v{sa}, v{sa}, s76")
        a(f"v_mov_b32 v{o+3}, v{o+2}")
    return ld, a, vO

def emit_S(a):
    import conv
    srd(a, 28, 48, 640*3456)
    a("s_mul_i32 s22, s14, 3")
    a("s_lshl_b32 s23, s14, 1")
    a("s_add_u32 s23, s23, 16")
    a("s_cmp_lt_u32 s14, 16")
    a("s_cselect_b32 s22, s22, s23")
    a("s_cselect_b32 s23, 3, 2")
    a("s_add_u32 s59, s22, s13")
    a("s_add_u32 s47, s47, s59")
    a("s_cmp_lt_u32 s13, s23")
    a("s_cbranch_scc1 S_K")
    st = S_dma(True)
    st("s_barrier")
    resolve([(x, t) for x, t in st.items], a)
    prof_flush(a, 2, 36, 12)
    a("s_endpgm")
    a.label("S_K")
    a("s_mul_i32 s46, s13, 8704")
    a(f"s_add_u32 s46, s46, {L_KG}")
    ld, kg, vO = kgen()
    st = Stream()
    dm = S_dma(False)
    pos = 0
    for it in dm.items:
        st.items.append(it)
        if isinstance(it[0], tuple) and it[0][0] == "mark":
            if it[0][1] == "ld": st.extend(ld)
            else:
                n = KG_PRE if it[0][1] == "pre" else KG_SLOT
                st.items.extend(kg.items[pos:pos+n]); pos += n
    rest = kg.items[pos:]
    print("kgen items", len(kg.items), "rest", len(rest))
    st.waitall("lg")
    st.waitall("vm")
    stamp(st, 6)
    resolve(st.items, a)
    a("s_branch S_CHK")
    a.label("S_RETRY")
    a("s_sleep 2")
    a(f"s_mov_b32 s22, {FL_A}")
    a(f"buffer_load_dwordx4 v[44:47], v15, s[36:39], s22 offen {SC}")
    a("s_waitcnt vmcnt(0)")
    a.label("S_CHK")
    check_tags(a, [44, 45, 46, 47], "S_RETRY")
    st = Stream()
    st.extend(conv.conv_uload(SC=SC, vU=208))
    st("s_barrier")
    st.items.extend(rest)
    st(f"s_mul_i32 s46, s13, {CONV_LDS}")
    st.extend(conv.conv_main(SC=SC, vK=vO, vU=208))
    stamp(st, 4)
    st("s_and_b32 s22, s2, 7")
    st("s_lshl_b32 s22, s22, 9")
    st("s_lshl_b32 s23, s59, 2")
    st("s_add_u32 s22, s22, s23")
    st(f"s_add_u32 s22, s22, {FL_Y}")
    st("v_mov_b32 v5, s100")
    st("v_mov_b32 v6, 0")
    st.waitall("vm")
    st("s_mov_b64 exec, 1")
    st(f"buffer_store_dword v5, v6, s[36:39], s22 offen {SC}")
    st("s_mov_b64 exec, -1")
    stamp(st, 5)
    resolve(st.items, a)
    prof_flush(a, 7, 36, 12)
    a("s_endpgm")

def mega():
    a = Asm()
    setup(a)
    a("s_cmp_ge_u32 s12, 4")
    a("s_cbranch_scc1 M_S")
    emit_G(a)
    a.label("M_S")
    emit_S(a)
    a.label("M_END")
    a("s_endpgm")
    return a.finish(True)

if __name__ == "__main__":
    Cfg.PROF = "--noprof" not in sys.argv
    for x in sys.argv[2:]:
        if "=" in x:
            k, v = x.split("="); globals()[k] = int(v)
    name = "parallel_sum__ssm_conv_s4__dense_activation_gelu__prompt_kernel"
    body = mega()
    code, kd = kernel_text(name, body, 256)
    hdr = f"; @launch grid=(256,1,1) block=(512,1,1) lds={LDS_TOTAL}\n.amdgcn_target \"amdgcn-amd-amdhsa--gfx950\"\n"
    open(sys.argv[1], "w").write(hdr + code + kd)
```

```python
import sys, math
from common import *
from asmlib import Stream, resolve, interleave
import mega as M1
import conv

SC = "sc1"
NST = 10; SLOT = 32768; NS = 4
L_KG = 131072
L_LN = L_KG + 2*8704
L_SY = L_LN + 10752
LDS_TOTAL = 163840
HS = 55296
WS_FL = 26 << 20
FL_R = WS_FL; FL_X = WS_FL + 1024; FL_W = WS_FL + 2048; FL_K = WS_FL + 3072; FL_H = WS_FL + 4096; FL_Y = WS_FL + 8192
CONV_LDS = conv.CONV_LDS
SPIN_MAX = 20000
OOB = "0x7f000000"
LDBG = 0
DBGOUT = 0
ROT = 4
CPREF = 1
KDELAY = 0
NOCS = 0
LJ0 = 6
GRS = 18
PSLEEP = 8
GPRIO = 2
LPRIO = 3
lbl = [0]
def newlabel(p):
    lbl[0] += 1; return f"{p}_{lbl[0]}"

def spin_tail(a, again):
    out = newlabel("CT")
    a(f"s_cbranch_vccz {out}")
    a("s_add_u32 s79, s79, 1")
    a(f"s_cmp_lt_u32 s79, {SPIN_MAX}")
    a(f"s_cbranch_scc1 {again}")
    a(out + ":")

def check_tags(a, regs, again):
    a(f"v_cmp_ne_u32 vcc, s100, v{regs[0]}")
    for r in regs[1:]:
        a(f"v_cmp_ne_u32 s[62:63], s100, v{r}")
        a("s_or_b64 vcc, vcc, s[62:63]")
    spin_tail(a, again)

def poll_global(a, loads, regs, sleep=1):
    L = newlabel("PG"); F = newlabel("PF")
    a(f"s_branch {F}")
    a(L + ":")
    a(f"s_sleep {PSLEEP}")
    a(F + ":")
    for l in loads: a(l)
    a("s_waitcnt vmcnt(0)")
    check_tags(a, regs, L)

def wait_lds(a, vaddr, vtmp, thr, sleep=True):
    L = newlabel("WL")
    a(L + ":")
    a(f"ds_read_b32 v{vtmp}, v{vaddr}")
    a("s_waitcnt lgkmcnt(0)")
    a(f"v_cmp_gt_u32 vcc, {thr}, v{vtmp}")
    spin_tail(a, L)

def flag_store(a, soff, v0=250):
    a(f"v_mov_b32 v{v0}, s100")
    a(f"v_mov_b32 v{v0+1}, 0")
    a("s_mov_b64 exec, 1")
    a(f"buffer_store_dword v{v0}, v{v0+1}, s[36:39], {soff} offen {SC}")
    a("s_mov_b64 exec, -1")

def setup(a):
    a("s_cmp_ge_u32 s2, 256")
    a("s_cbranch_scc1 M_END")
    stamp(a, 0)
    a("s_load_dwordx2 s[6:7], s[0:1], 128")
    a("s_load_dwordx2 s[4:5], s[0:1], 0")
    a("s_load_dwordx8 s[48:55], s[0:1], 80")
    a("s_load_dwordx16 s[60:75], s[0:1], 8")
    a("s_mov_b32 s79, 0")
    a("v_and_b32 v1, 63, v0")
    a("v_lshrrev_b32 v6, 6, v0")
    a("v_lshlrev_b32 v254, 2, v0")
    a(f"v_add_u32 v254, {L_SY}, v254")
    a("v_mov_b32 v255, 0")
    a("ds_write_b32 v254, v255")
    a("v_readfirstlane_b32 s12, v6")
    a("v_mov_b32 v255, 1")
    a("s_and_b32 s3, s2, 7")
    a("s_lshr_b32 s14, s2, 3")
    a("s_lshl_b32 s101, s3, 5")
    a("s_add_u32 s101, s101, s14")
    a("s_lshr_b32 s15, s3, 1")
    a("s_lshl_b32 s44, s15, 3")
    a("s_lshl_b32 s15, s15, 2")
    a("s_and_b32 s17, s14, 3")
    a("s_add_u32 s15, s15, s17")
    a("s_and_b32 s16, s3, 1")
    a("s_lshl_b32 s45, s16, 2")
    a("s_mul_i32 s16, s16, 7")
    a("s_lshr_b32 s23, s14, 2")
    a("s_add_u32 s16, s16, s23")
    if ROT == 0:
        a("s_mul_i32 s17, s17, 5")
        a("s_lshr_b32 s17, s17, 1")
        a("s_mul_i32 s23, s23, 3")
        a("s_lshr_b32 s23, s23, 1")
        a("s_add_u32 s17, s17, s23")
        a("s_sub_u32 s22, s17, 10")
        a("s_cmp_ge_u32 s17, 10")
        a("s_cselect_b32 s17, s22, s17")
    elif ROT == 2:
        a("s_add_u32 s17, s17, s23")
        a("s_and_b32 s17, s17, 1")
        a("s_mul_i32 s17, s17, 5")
    elif ROT == 4:
        a("s_add_u32 s17, s17, s23")
        a("s_and_b32 s17, s17, 3")
        a("s_mul_i32 s17, s17, 5")
        a("s_lshr_b32 s17, s17, 1")
    elif ROT == 1:
        a("s_mov_b32 s17, 0")
    a("s_and_b32 s22, s14, 7")
    a("s_add_u32 s44, s44, s22")
    a("s_lshr_b32 s23, s14, 3")
    a("s_add_u32 s45, s45, s23")
    a("s_and_b32 s13, s12, 3")

def ptr_ready(a):
    a("s_waitcnt lgkmcnt(0)")
    srd(a, 24, 4, 2048*1280)
def ptr_rest(a):
    a(f"s_add_u32 s8, s6, {FL_R}")
    a("s_addc_u32 s9, s7, 0")
    a("s_load_dword s100, s[8:9], 0")
    srd(a, 36, 6, WS_SIZE)

def tag_ready(a):
    a("s_waitcnt lgkmcnt(0)")
    a("s_mul_i32 s100, s100, 1664525")
    a("s_add_u32 s100, s100, 1013904223")

def bump(a, tag=None):
    a("ds_add_u32 v254, v255", tag=tag) if isinstance(a, Stream) else a("ds_add_u32 v254, v255")

def G_ln1():
    a = Stream()
    vR = 200; vT = 212
    a("v_lshrrev_b32 v6, 5, v1")
    a("v_and_b32 v7, 31, v1")
    a("v_mul_u32_u24 v2, 1280, v6")
    a("v_lshl_add_u32 v2, v7, 3, v2")
    a("s_mul_i32 s22, s101, 10240")
    a("s_mul_i32 s23, s13, 2560")
    a("s_add_u32 s22, s22, s23")
    ptr_ready(a)
    for k in range(5):
        a(f"buffer_load_dwordx2 v[{vR+2*k}:{vR+1+2*k}], v2, s[24:27], s22 offen offset:{256*k}", tag="lnr")
    ptr_rest(a)
    a.mark("idle")
    a(f"v_mov_b32 v{vT+8}, 0x3f803f80")
    a(f"v_mov_b32 v{vT+9}, 0xffff0000")
    for k in range(4): a(f"v_mov_b32 v{vT+k}, 0")
    a("v_lshrrev_b32 v6, 5, v1")
    a("v_and_b32 v7, 31, v1")
    a("s_mul_i32 s22, s13, 2688")
    a(f"s_add_u32 s22, s22, {L_LN}")
    a(f"v_mul_u32_u24 v{vT+14}, 1344, v6")
    a(f"v_lshl_add_u32 v{vT+14}, v7, 3, v{vT+14}")
    a(f"v_add_u32 v{vT+14}, s22, v{vT+14}")
    a(f"v_lshlrev_b32 v{vT+15}, 3, v6")
    tag_ready(a)
    a("s_barrier")
    a.wait("vm", "lnr")
    for k in range(10):
        a(f"v_dot2_f32_bf16 v{vT+(k&1)}, v{vR+k}, v{vT+8}, v{vT+(k&1)}")
        a(f"v_dot2_f32_bf16 v{vT+2+(k&1)}, v{vR+k}, v{vR+k}, v{vT+2+(k&1)}")
    m = vT; q = vT+2
    a(f"v_add_f32 v{m}, v{m}, v{m+1}")
    a(f"v_add_f32 v{q}, v{q}, v{q+1}")
    for dpp in ("quad_perm:[1,0,3,2]", "quad_perm:[2,3,0,1]", "row_half_mirror", "row_mirror"):
        a(f"v_add_f32_dpp v{m}, v{m}, v{m} {dpp} row_mask:0xf bank_mask:0xf")
        a(f"v_add_f32_dpp v{q}, v{q}, v{q} {dpp} row_mask:0xf bank_mask:0xf")
    a(f"v_mov_b32 v{m+1}, v{m}")
    a(f"v_mov_b32 v{q+1}, v{q}")
    a(f"v_permlane16_swap_b32 v{m}, v{m+1}")
    a(f"v_permlane16_swap_b32 v{q}, v{q+1}")
    a(f"v_add_f32 v{m}, v{m}, v{m+1}")
    a(f"v_add_f32 v{q}, v{q}, v{q+1}")
    def rbf(r):
        a(f"v_cvt_pk_bf16_f32 v{r}, v{r}, v{r}")
        a(f"v_lshlrev_b32 v{r}, 16, v{r}")
    a(f"v_mul_f32 v{m}, {f32bits(1/640.)}, v{m}")
    a(f"v_mul_f32 v{q}, {f32bits(1/640.)}, v{q}")
    a(f"v_fma_f32 v{q}, -v{m}, v{m}, v{q}")
    a(f"v_max_f32 v{q}, 0, v{q}")
    rbf(q)
    a(f"v_add_f32 v{q}, {f32bits(1e-5)}, v{q}")
    rbf(q)
    a(f"v_sqrt_f32 v{q}, v{q}")
    a(f"v_mov_b32 v{vT+5}, s100")
    a(f"v_cvt_pk_bf16_f32 v{vT+4}, v{m}, v{q}")
    a("s_lshl_b32 s22, s101, 6")
    a("s_lshl_b32 s23, s13, 4")
    a("s_add_u32 s22, s22, s23")
    a(f"s_add_u32 s22, s22, {WS_STATS}")
    a("s_mov_b32 exec_lo, 1")
    a("s_mov_b32 exec_hi, 1")
    a(f"buffer_store_dwordx2 v[{vT+4}:{vT+5}], v{vT+15}, s[36:39], s22 offen {SC}", tag="st")
    a("s_mov_b64 exec, -1")
    a(f"v_and_b32 v{q}, v{vT+9}, v{vT+4}")
    a(f"v_lshlrev_b32 v{m}, 16, v{vT+4}")
    a(f"v_rcp_f32 v{q}, v{q}")
    for k2 in range(5):
        xs = [vR+2*k2, vR+2*k2+1]; ts = [(vT+10, vT+11), (vT+12, vT+13)]
        def two(fmt):
            for x, (t0, t1) in zip(xs, ts): a(fmt.format(x=x, t0=t0, t1=t1, m=m, q=q, k=vT+9))
        two("v_lshlrev_b32 v{t0}, 16, v{x}")
        two("v_and_b32 v{t1}, v{k}, v{x}")
        two("v_sub_f32 v{t0}, v{t0}, v{m}")
        two("v_sub_f32 v{t1}, v{t1}, v{m}")
        two("v_cvt_pk_bf16_f32 v{x}, v{t0}, v{t1}")
        two("v_lshlrev_b32 v{t0}, 16, v{x}")
        two("v_and_b32 v{t1}, v{k}, v{x}")
        two("v_mul_f32 v{t0}, v{t0}, v{q}")
        two("v_mul_f32 v{t1}, v{t1}, v{q}")
        two("v_cvt_pk_bf16_f32 v{x}, v{t0}, v{t1}")
        a(f"ds_write_b64 v{vT+14}, v[{xs[0]}:{xs[1]}] offset:{256*k2}")
    bump(a)
    return a

vACC = 16
vCS = 80
vFR = 96
vONE = 160
vGRN = 164
vB1 = 172
vFL = 176

def G_loop_setup():
    a = Stream()
    srd(a, 32, 50, 3456)
    a("s_lshr_b32 s18, s13, 1")
    a("s_and_b32 s19, s13, 1")
    a("v_and_b32 v10, 15, v1")
    a("v_lshrrev_b32 v11, 4, v1")
    a("v_lshlrev_b32 v12, 1, v10")
    a("s_lshl_b32 s22, s16, 8")
    a("s_lshl_b32 s23, s19, 7")
    a("s_add_u32 s22, s22, s23")
    for c in range(4):
        a(f"buffer_load_ushort v{vB1+c}, v12, s[32:35], s22 offen offset:{32*c}", tag="b1")
    a("v_lshrrev_b32 v12, 2, v1")
    a("v_and_b32 v13, 7, v12")
    a("s_lshl_b32 s22, s19, 2")
    a("v_xor_b32 v13, s22, v13")
    a("v_lshlrev_b32 v13, 5, v13")
    a("v_lshl_add_u32 v13, v12, 8, v13")
    a("v_and_b32 v12, 3, v1")
    a("v_lshl_add_u32 v13, v12, 3, v13")
    a("v_add_u32 v2, 16384, v13")
    for c in range(1, 4): a(f"v_xor_b32 v{2+c}, {32*c}, v2")
    a("v_lshrrev_b32 v12, 1, v10")
    a("v_xor_b32 v12, v12, v11")
    a("v_lshlrev_b32 v12, 4, v12")
    a("v_and_b32 v13, 7, v10")
    a("v_lshl_add_u32 v12, v13, 7, v12")
    a("v_lshrrev_b32 v13, 3, v10")
    a("v_lshl_add_u32 v12, v13, 12, v12")
    a("s_lshl_b32 s22, s18, 13")
    a("v_add_u32 v8, s22, v12")
    a("v_xor_b32 v9, 64, v8")
    a("v_and_b32 v13, 1, v1")
    a("v_lshlrev_b32 v13, 8, v13")
    a(f"v_add_u32 v13, {L_SY + 6*256}, v13")
    a("v_lshlrev_b32 v14, 4, v1")
    a("v_lshlrev_b32 v15, 3, v10")
    a("s_lshl_b32 s60, s15, 10")
    a("s_lshl_b32 s22, s18, 9")
    a("s_add_u32 s60, s60, s22")
    a(f"s_add_u32 s60, s60, {WS_STATS}")
    for r in range(vACC, vACC+80): a(f"v_mov_b32 v{r}, 0")
    for r in range(4): a(f"v_mov_b32 v{vONE+r}, 0x3f803f80")
    return a

def G_loop(a):
    def reads(s):
        t, ks2 = divmod(s, 2)
        off = (t % 2)*SLOT
        b = vFR + (s % 2)*32
        L = []
        for c in range(4):
            L.append(f"ds_read_b64_tr_b16 v[{b+4*c}:{b+4*c+1}], v{2+c} offset:{off + ks2*8192}")
            L.append(f"ds_read_b64_tr_b16 v[{b+4*c+2}:{b+4*c+3}], v{2+c} offset:{off + ks2*8192 + 4096}")
            L.append(f"ds_read_b128 v[{b+16+4*c}:{b+16+4*c+3}], v{8+ks2} offset:{off + c*1024}")
        return L
    def check_full(t, preread):
        L = newlabel("GF"); ok = newlabel("GFO")
        if preread:
            a(f"v_cmp_gt_u32 vcc, {t+1}, v{vFL}")
            a(f"s_cbranch_vccz {ok}")
        wait_lds(a, 13, vFL, t+1)
        a(ok + ":")
    def toggle():
        for r in (2, 3, 4, 5, 8, 9): a(f"v_xor_b32 v{r}, 0x10000, v{r}")
    stamp(a, 1)
    check_full(0, False)
    stamp(a, 2)
    for x in reads(0): a(x)
    for s in range(20):
        t, ks2 = divmod(s, 2)
        b = vFR + (s % 2)*32
        a("s_waitcnt lgkmcnt(0)")
        extra = []
        if ks2 == 1:
            extra.append("ds_add_u32 v254, v255")
            if t + 1 < NST:
                check_full(t+1, True)
                if (t+1) % 2 == 0: toggle()
        rr = reads(s+1) if s+1 < 20 else []
        if ks2 == 0 and t + 1 < NST: rr = rr + [f"ds_read_b32 v{vFL}, v13"]
        rr = extra + rr
        if s == GRS:
            for rt in range(4):
                rr.append(f"buffer_load_dwordx2 v[{vGRN+2*rt}:{vGRN+1+2*rt}], v15, s[36:39], s60 offen offset:{128*rt} {SC}")
        mm = []
        for c in range(4):
            for rt in range(4):
                acc = vACC + (rt*4+c)*4
                mm.append(f"v_mfma_f32_16x16x32_bf16 v[{acc}:{acc+3}], v[{b+4*c}:{b+4*c+3}], v[{b+16+4*rt}:{b+16+4*rt+3}], v[{acc}:{acc+3}]")
            if not NOCS: mm.append(f"v_mfma_f32_16x16x32_bf16 v[{vCS+4*c}:{vCS+4*c+3}], v[{vONE}:{vONE+3}], v[{b+4*c}:{b+4*c+3}], v[{vCS+4*c}:{vCS+4*c+3}]")
        for i, x in enumerate(mm):
            a(x)
            if i < len(rr): a(rr[i])
        for x in rr[len(mm):]: a(x)
    stamp(a, 3)

def G_gelu():
    a = Stream()
    vA = 96
    vB = 104
    vK = 112
    vT = 124
    vO = 132
    a("s_mov_b32 s65, 0xffff0000")
    a("v_cmp_gt_u32 s[70:71], 16, v1")
    a("s_mov_b32 s66, 0x01000100")
    for c in range(4):
        cs = vCS+4*c
        a(f"v_cvt_pk_bf16_f32 v{cs+1}, v{cs}, v{cs}")
        a(f"v_and_b32 v{cs+1}, s65, v{cs+1}")
        a(f"v_sub_f32 v{cs+1}, v{cs}, v{cs+1}")
        a(f"v_cvt_pk_bf16_f32 v{cs+2}, v{cs}, v{cs+1}")
        a(f"v_cndmask_b32 v{vA+2*c}, 0, v{cs+2}, s[70:71]")
        a(f"v_cndmask_b32 v{vA+2*c+1}, 0, v{vB1+c}, s[70:71]")
    for rt in range(4):
        g = vGRN+2*rt
        a(f"v_perm_b32 v{vB+2*rt}, v{g}, v{g}, s66")
        a(f"v_xor_b32 v{vB+2*rt}, 0x80008000, v{vB+2*rt}")
        a(f"v_lshrrev_b32 v{vB+2*rt+1}, 16, v{g}")
    for rt in range(4):
        for c in range(4):
            acc = vACC + (rt*4+c)*4
            a(f"v_mfma_f32_16x16x16_bf16 v[{acc}:{acc+3}], v[{vA+2*c}:{vA+2*c+1}], v[{vB+2*rt}:{vB+2*rt+1}], v[{acc}:{acc+3}]")
        g = vGRN+2*rt; k = vK+3*rt
        a(f"v_and_b32 v{k+2}, s65, v{g}")
        a(f"v_rcp_f32 v{k}, v{k+2}")
        a(f"v_mul_f32 v{k+1}, v{k}, v{k}")
        a(f"v_mul_f32 v{k+1}, v{k+1}, v{k}")
        a(f"v_mul_f32 v{k+1}, {f32bits(GELU_K2)}, v{k+1}")
        a(f"v_mul_f32 v{k}, {f32bits(GELU_K1)}, v{k}")
    a("s_lshl_b32 s66, s15, 3")
    a("s_lshl_b32 s67, s18, 2")
    a("s_add_u32 s66, s66, s67")
    a(f"s_mul_i32 s66, s66, {HS}")
    a("s_lshl_b32 s67, s16, 12")
    a("s_add_u32 s66, s66, s67")
    a("s_lshl_b32 s67, s19, 11")
    a("s_add_u32 s66, s66, s67")
    for rt in range(4):
        k = vK+3*rt
        for p in range(2):
            accs = [vACC + (rt*4+2*p)*4 + r for r in range(8)]
            ts = [vT + r for r in range(8)]
            for x, t in zip(accs, ts): a(f"v_mul_f32 v{t}, v{x}, v{x}")
            for x, t in zip(accs, ts): a(f"v_fma_f32 v{t}, v{t}, v{k+1}, v{k}")
            for x, t in zip(accs, ts): a(f"v_mul_f32 v{t}, v{x}, v{t}")
            for x, t in zip(accs, ts): a(f"v_exp_f32 v{t}, v{t}")
            for x, t in zip(accs, ts): a(f"v_fma_f32 v{t}, v{t}, v{k+2}, v{k+2}")
            for x, t in zip(accs, ts): a(f"v_rcp_f32 v{t}, v{t}")
            for x, t in zip(accs, ts): a(f"v_mul_f32 v{x}, v{x}, v{t}")
            o = vO + 4*p
            for i in range(4): a(f"v_cvt_pk_bf16_f32 v{o+i}, v{accs[2*i]}, v{accs[2*i+1]}")
            a(f"buffer_store_dwordx4 v[{o}:{o+3}], v14, s[36:39], s66 offen offset:{1024*p} {SC}", tag="hs")
        if rt < 3: a(f"s_add_u32 s66, s66, {HS}")
    return a

vW = 160; vH = 96
def g2_addr(a):
    a("v_lshlrev_b32 v2, 4, v1")
    for dl in range(1, 5): a(f"v_add_u32 v{2+dl}, {dl*HS}, v2")
    for li in range(4):
        a(f"s_add_u32 s22, s13, {li}")
        a("s_and_b32 s22, s22, 3")
        a(f"s_mul_i32 s22, s22, {HS}")
        a(f"v_add_u32 v{7+li}, s22, v2")
    a("s_and_b32 s46, s45, 3")
    a("s_mul_i32 s46, s46, 7")
    a("s_lshr_b32 s46, s46, 1")
    a("s_mov_b32 s47, s46")
    a("s_mul_i32 s22, s13, 14336")
    a(f"s_mul_i32 s56, s44, {4*HS}")
    a("s_add_u32 s56, s56, s22")
    a(f"s_mul_i32 s57, s45, {5*HS}")
    a("s_add_u32 s57, s57, s22")
    a(f"s_add_u32 s57, s57, {WS_W2P}")
    a("s_cmp_eq_u32 s13, 3")
    a("s_cselect_b32 s64, 12, 14")
def issue_w(a, i):
    b = vW + (i % 4)*20
    a("s_lshl_b32 s23, s47, 10")
    a("s_add_u32 s23, s23, s57")
    a("s_cmp_lt_u32 s47, s64")
    a(f"s_cselect_b32 s23, s23, {OOB}")
    for dl in range(5):
        a(f"buffer_load_dwordx4 v[{b+4*dl}:{b+3+4*dl}], v{2+dl}, s[36:39], s23 offen {SC}", tag=("k", i))
    a("s_add_u32 s47, s47, 1")
    a("s_cmp_eq_u32 s47, 14")
    a("s_cselect_b32 s47, 0, s47")
def issue_h(a, i):
    b = vH + (i % 4)*16
    a("s_lshl_b32 s22, s46, 10")
    a("s_add_u32 s22, s22, s56")
    a("s_cmp_lt_u32 s46, s64")
    a(f"s_cselect_b32 s22, s22, {OOB}")
    for li in range(4):
        a(f"buffer_load_dwordx4 v[{b+4*li}:{b+3+4*li}], v{7+li}, s[36:39], s22 offen {SC}", tag=("k", i))
    a("s_add_u32 s46, s46, 1")
    a("s_cmp_eq_u32 s46, 14")
    a("s_cselect_b32 s46, 0, s46")

def emit_G(a):
    a(f"s_setprio {GPRIO}")
    ln = G_ln1()
    ls = G_loop_setup()
    st = Stream()
    for it in ln.items:
        st.items.append(it)
        if isinstance(it[0], tuple) and it[0] == ("mark", "idle"): st.extend(ls)
    resolve(st.items, a)
    a("s_cmp_ge_u32 s14, 28")
    a("s_cbranch_scc1 GC")
    a("s_lshl_b32 s22, s16, 1")
    a("s_add_u32 s22, s22, s19")
    a("s_cmp_eq_u32 s22, 27")
    a("s_cbranch_scc1 G_SKIP")
    G_loop(a)
    a("s_waitcnt vmcnt(0)")
    a("s_branch G_CHK")
    a.label("G_RETRY")
    for rt in range(4):
        a(f"buffer_load_dwordx2 v[{vGRN+2*rt}:{vGRN+1+2*rt}], v15, s[36:39], s60 offen offset:{128*rt} {SC}")
    a("s_waitcnt vmcnt(0)")
    a.label("G_CHK")
    check_tags(a, [vGRN+1, vGRN+3, vGRN+5, vGRN+7], "G_RETRY")
    st = Stream()
    st.extend(G_gelu())
    stamp(st, 4)
    st("s_lshl_b32 s22, s15, 1")
    st("s_add_u32 s22, s22, s18")
    st("s_lshl_b32 s22, s22, 7")
    st("s_lshl_b32 s23, s16, 1")
    st("s_add_u32 s23, s23, s19")
    st("s_lshl_b32 s23, s23, 2")
    st("s_add_u32 s22, s22, s23")
    st(f"s_add_u32 s68, s22, {FL_H}")
    st.waitall("vm")
    resolve(st.items, a)
    flag_store(a, "s68")
    stamp(a, 5)
    a("s_branch G2")
    a.label("G_SKIP")
    a("v_mov_b32 v2, 32")
    a("ds_add_u32 v254, v2")
    a.label("G2")
    a("s_load_dwordx4 s[8:11], s[0:1], 104")
    g2_addr(a)
    a("s_waitcnt lgkmcnt(0)")
    srd(a, 48, 10, 2048*1280)
    srd(a, 52, 8, 1280)
    a("v_lshlrev_b32 v13, 2, v1")
    a(f"s_mov_b32 s59, {FL_W}")
    poll_global(a, [f"buffer_load_dword v15, v13, s[36:39], s59 offen {SC}"], [15])
    st = Stream()
    for i in range(4): issue_w(st, i)
    for r in range(16, 96): st(f"v_mov_b32 v{r}, 0")
    st("v_min_u32 v13, 26, v1")
    st("v_lshlrev_b32 v13, 2, v13")
    st("s_lshl_b32 s59, s44, 7")
    st(f"s_add_u32 s59, s59, {FL_H}")
    resolve(st.items, a)
    poll_global(a, [f"buffer_load_dword v15, v13, s[36:39], s59 offen {SC}"], [15])
    M1.issue_h = issue_h; M1.issue_w = issue_w
    st = Stream()
    st.extend(M1.G_gemm2_main())
    st("v_min_u32 v15, 19, v1")
    st("v_lshlrev_b32 v15, 4, v15")
    st("s_lshl_b32 s59, s45, 9")
    st(f"s_add_u32 s59, s59, {FL_Y}")
    resolve(st.items, a)
    poll_global(a, [f"buffer_load_dwordx4 v[96:99], v15, s[36:39], s59 offen {SC}"], [96, 97, 98, 99])
    st = Stream()
    stamp(st, 8)
    st.extend(M1.G_final())
    if Cfg.PROF: st.waitall("vm")
    stamp(st, 9)
    resolve(st.items, a)
    prof_flush(a, 10, 36, 12)
    if DBGOUT:
        a("s_cmp_lg_u32 s2, 9")
        a("s_cbranch_scc1 DBG_E")
        a("s_cmp_lg_u32 s12, 0")
        a("s_cbranch_scc1 DBG_E")
        a("s_load_dwordx2 s[8:9], s[0:1], 120")
        a("s_waitcnt lgkmcnt(0)")
        srd(a, 40, 8, 256)
        a("v_mov_b32 v1, 0")
        a("s_mov_b64 exec, 1")
        for i in range(1, 10):
            a(f"s_sub_u32 s22, s{80+2*i}, s80")
            a("v_mov_b32 v2, s22")
            a(f"buffer_store_dword v2, v1, s[40:43], 0 offen offset:{4*i}")
        a.label("DBG_E")
    a("s_endpgm")
    a.label("GC")
    a("s_setprio 0")
    a("s_load_dwordx2 s[60:61], s[0:1], 8")
    a("s_sub_u32 s59, s14, 28")
    a("s_lshl_b32 s59, s59, 2")
    a("s_add_u32 s59, s59, s13")
    a("s_add_u32 s59, s59, 64")
    a("s_mul_i32 s46, s13, 8704")
    a("s_add_u32 s46, s46, 73728")
    a("s_waitcnt lgkmcnt(0)")
    a("s_branch KGEN")

def ln2(a):
    a("v_and_b32 v2, 3, v1")
    a("v_lshlrev_b32 v2, 8, v2")
    a(f"v_add_u32 v2, {L_SY}, v2")
    a("v_bfe_u32 v6, v1, 2, 2")
    a("v_mul_u32_u24 v3, 1344, v6")
    a("v_lshrrev_b32 v6, 4, v1")
    a("v_lshl_add_u32 v3, v6, 5, v3")
    a("v_and_b32 v6, 3, v1")
    a("v_lshl_add_u32 v3, v6, 3, v3")
    a(f"v_add_u32 v3, {L_LN}, v3")
    a("v_lshlrev_b32 v4, 4, v1")
    a("s_mul_i32 s22, s101, 10240")
    a(f"s_add_u32 s22, s22, {WS_XNT}")
    wait_lds(a, 2, 5, 1)
    st = Stream()
    for c in range(10):
        b = 8+4*c
        st(f"ds_read_b64_tr_b16 v[{b}:{b+1}], v3 offset:{c*128}", tag=("l2", c))
        st(f"ds_read_b64_tr_b16 v[{b+2}:{b+3}], v3 offset:{c*128+4*1344}", tag=("l2", c))
    for c in range(10):
        b = 8+4*c
        st.wait("lg", ("l2", c))
        st(f"buffer_store_dwordx4 v[{b}:{b+3}], v4, s[36:39], s22 offen offset:{1024*(c%4)} {SC}")
        if c % 4 == 3: st("s_add_u32 s22, s22, 4096")
    resolve(st.items, a)

KSPLIT1 = 120; KSPLIT2 = 420
def emit_K(a):
    a("s_lshl_b32 s59, s14, 1")
    a("s_add_u32 s59, s59, s13")
    a("s_mul_i32 s46, s13, 8704")
    a(f"s_add_u32 s46, s46, {L_KG}")
    if CPREF:
        a("s_cmp_lt_u32 s14, 28")
        a("s_cbranch_scc1 PFE")
        a("s_getpc_b64 s[10:11]")
        a.label("PCREF")
        a("s_sub_u32 s10, s10, PCREF-KSTART")
        a("s_subb_u32 s11, s11, 0")
        a("v_lshlrev_b32 v5, 7, v1")
        a("s_mul_i32 s22, s13, 24576")
        a("v_add_u32 v5, s22, v5")
        for k in range(3):
            a("v_min_u32 v2, M_END-KSTART, v5")
            a("v_mov_b32 v3, s11")
            a("v_add_co_u32 v2, vcc, s10, v2")
            a("v_addc_co_u32 v3, vcc, 0, v3, vcc")
            a("global_load_dword v4, v[2:3], off")
            a("v_add_u32 v5, 8192, v5")
        a.label("PFE")
    ptr_ready(a)
    ptr_rest(a)
    tag_ready(a)
    a("s_barrier")
    a.label("KGEN")
    a("s_mul_i32 s47, s3, 80")
    a("s_add_u32 s47, s47, s59")
    ld, kg, vO = M1.kgen()
    st = Stream(); st.extend(ld); st.items.extend(kg.items[:KSPLIT1]); st.waitall("lg")
    resolve(st.items, a)
    a("s_cmp_lg_u32 s12, 4")
    a("s_cbranch_scc1 K_A")
    ln2(a)
    a.label("K_A")
    if KDELAY:
        a("s_cmp_ge_u32 s14, 28")
        a("s_cbranch_scc1 K_A2")
        a("s_cmp_lg_u32 s12, 4")
        a("s_cbranch_scc1 K_A3")
        a("s_waitcnt vmcnt(0)")
        a("s_lshl_b32 s22, s2, 2")
        a(f"s_add_u32 s22, s22, {FL_X}")
        flag_store(a, "s22", 2)
        a.label("K_A3")
        a("v_and_b32 v2, 3, v1")
        a("v_lshlrev_b32 v2, 8, v2")
        a(f"v_add_u32 v2, {L_SY}, v2")
        a.label("K_A4")
        a("s_sleep 8")
        a("ds_read_b32 v5, v2")
        a("s_waitcnt lgkmcnt(0)")
        a("v_cmp_gt_u32 vcc, 11, v5")
        spin_tail(a, "K_A4")
        a.label("K_A2")
    st = Stream(); st.items.extend(kg.items[KSPLIT1:KSPLIT2]); st.waitall("lg")
    resolve(st.items, a)
    a("s_cmp_lg_u32 s12, 4")
    a("s_cbranch_scc1 K_B")
    a("s_waitcnt vmcnt(0)")
    a("s_lshl_b32 s22, s2, 2")
    a(f"s_add_u32 s22, s22, {FL_X}")
    flag_store(a, "s22", 2)
    a.label("K_B")
    st = Stream(); st.items.extend(kg.items[KSPLIT2:])
    stamp(st, 1)
    resolve(st.items, a)
    a("s_cmp_ge_u32 s12, 4")
    a("s_cbranch_scc1 CONV")
    a("v_lshlrev_b32 v2, 4, v1")
    a("s_lshl_b32 s23, s3, 4")
    a("s_add_u32 s23, s23, s59")
    a("s_sub_u32 s23, s23, 64")
    a("s_lshl_b32 s22, s23, 12")
    a(f"s_add_u32 s22, s22, {WS_KR}")
    for it in range(4):
        a(f"buffer_store_dwordx4 v[{vO+4*it}:{vO+3+4*it}], v2, s[36:39], s22 offen offset:{it*1024} {SC}")
    a("s_lshl_b32 s22, s23, 2")
    a(f"s_add_u32 s22, s22, {FL_K}")
    a("s_waitcnt vmcnt(0) lgkmcnt(0)")
    flag_store(a, "s22", 2)
    a("s_setprio 3")
    a("s_branch G_SKIP")
    a.label("CONV")
    a("v_and_b32 v4, 7, v1")
    a("v_lshlrev_b32 v5, 8, v4")
    a(f"v_add_u32 v5, {L_SY}, v5")
    a("v_cmp_gt_u32 vcc, 4, v4")
    a("v_cndmask_b32 v6, 0, 11, vcc")
    a("v_cmp_lt_u32 vcc, 5, v4")
    a("v_cndmask_b32 v6, v6, 10, vcc")
    L = newlabel("RF")
    a(L + ":")
    a("s_sleep 1")
    a("ds_read_b32 v7, v5")
    a("s_waitcnt lgkmcnt(0)")
    a("v_cmp_gt_u32 vcc, v6, v7")
    spin_tail(a, L)
    a("v_lshlrev_b32 v15, 4, v1")
    a(f"s_mov_b32 s22, {FL_X}")
    poll_global(a, [f"buffer_load_dwordx4 v[44:47], v15, s[36:39], s22 offen {SC}"], [44, 45, 46, 47])
    a("s_cmp_lg_u32 s2, 0")
    a("s_cbranch_scc1 C_NOR")
    a("s_cmp_lg_u32 s12, 4")
    a("s_cbranch_scc1 C_NOR")
    a(f"s_mov_b32 s22, {FL_R}")
    flag_store(a, "s22", 2)
    a("s_waitcnt vmcnt(0)")
    a.label("C_NOR")
    stamp(a, 6)
    st = Stream()
    st.extend(conv.conv_uload(SC=SC, vU=208))
    st(f"s_mul_i32 s46, s13, {CONV_LDS}")
    st.extend(conv.conv_main(SC=SC, vK=vO, vU=208))
    stamp(st, 4)
    st("s_lshl_b32 s22, s3, 9")
    st("s_lshl_b32 s23, s59, 2")
    st("s_add_u32 s22, s22, s23")
    st(f"s_add_u32 s22, s22, {FL_Y}")
    st.waitall("vm")
    resolve(st.items, a)
    flag_store(a, "s22", 5)
    stamp(a, 5)
    prof_flush(a, 7, 36, 12)
    a("s_endpgm")
    return vO

def emit_L(a, vO):
    a("s_cmp_ge_u32 s14, 28")
    a("s_cbranch_scc1 LC")
    a("s_cmp_eq_u32 s12, 7")
    a("s_cbranch_scc1 L_W1")
    a("v_lshrrev_b32 v6, 3, v1")
    a("v_and_b32 v7, 7, v1")
    a("v_lshrrev_b32 v8, 4, v1")
    a("v_xor_b32 v7, v7, v8")
    a("v_mul_u32_u24 v2, 1280, v6")
    a("v_lshl_add_u32 v2, v7, 4, v2")
    a("v_xor_b32 v3, 64, v2")
    a("v_mov_b32 v4, v2")
    a("v_mov_b32 v5, v3")
    a("s_mul_i32 s18, s15, 163840")
    a("s_mov_b32 s19, 0")
    a("s_mov_b32 s20, 10240")
    a("s_mov_b32 s21, 128")
    a("s_waitcnt lgkmcnt(0)")
    srd(a, 28, 4, 2048*1280)
    a("s_branch L_GO")
    a.label("L_W1")
    a("v_lshrrev_b32 v6, 4, v1")
    a("v_bfe_u32 v7, v1, 1, 3")
    a("v_xor_b32 v7, v7, v6")
    a("v_and_b32 v8, 1, v1")
    a("v_lshl_add_u32 v7, v7, 1, v8")
    a("v_mul_u32_u24 v2, 3456, v6")
    a("v_lshl_add_u32 v2, v7, 4, v2")
    a("v_xor_b32 v9, 8, v7")
    a("v_mul_u32_u24 v4, 3456, v6")
    a("v_lshl_add_u32 v4, v9, 4, v4")
    a("s_cmp_eq_u32 s16, 13")
    a("s_cselect_b32 s22, 8, 16")
    a(f"v_mov_b32 v10, {OOB}")
    a("v_cmp_gt_u32 vcc, s22, v7")
    a("v_cndmask_b32 v2, v10, v2, vcc")
    a("v_cmp_gt_u32 vcc, s22, v9")
    a("v_cndmask_b32 v4, v10, v4, vcc")
    a("v_mov_b32 v3, v2")
    a("v_mov_b32 v5, v4")
    a("s_lshl_b32 s18, s16, 8")
    a("s_mov_b32 s19, 16384")
    a(f"s_mov_b32 s20, {4*3456}")
    a(f"s_mov_b32 s21, {64*3456}")
    a("s_waitcnt lgkmcnt(0)")
    srd(a, 28, 48, 640*3456)
    a.label("L_GO")
    ptr_rest(a)
    a(f"s_setprio {LPRIO}")
    def acc(k):
        if LDBG == 2:
            a("s_memtime s[42:43]"); a("s_waitcnt lgkmcnt(0)")
            a("s_mov_b32 m0, s40")
            a(f"v_writelane_b32 v{100+k}, s42, m0")
    a("v_and_b32 v11, 3, v1")
    a("v_lshlrev_b32 v11, 8, v11")
    a(f"v_add_u32 v11, {L_SY}, v11")
    a("v_mov_b32 v12, 0")
    a("s_mov_b32 s40, 0")
    a.label("L_LOOP")
    a("s_cmp_lt_u32 s40, 4")
    a("s_cbranch_scc1 L_ISS")
    a("s_sub_u32 s41, s40, 2")
    a("s_waitcnt lgkmcnt(0)")
    a("v_cmp_gt_u32 vcc, s41, v12")
    a("s_cbranch_vccz L_ISS")
    wait_lds(a, 11, 12, "s41")
    a.label("L_ISS")
    acc(1)
    a("s_mul_i32 s22, s17, s21")
    a("s_add_u32 s22, s22, s18")
    for j in range(16):
        pi = (j >> 3)*8 + (j & 1)*4 + ((j >> 1) & 3)
        if j == LJ0:
            sk = newlabel("LS")
            a("s_cmp_lt_u32 s40, 2")
            a(f"s_cbranch_scc1 {sk}")
            a(f"s_waitcnt vmcnt({16+LJ0})")
            bump(a)
            acc(0)
            a(sk + ":")
        if j == 13: a("ds_read_b32 v12, v11")
        a(f"s_add_u32 m0, s19, {pi*1024}")
        if j > 0: a("s_add_u32 s22, s22, s20")
        else: a("s_nop 0")
        a(f"buffer_load_dwordx4 v{2 + (j & 3)}, s[28:31], s22 offen lds")
    a("s_add_u32 s17, s17, 1")
    a("s_cmp_eq_u32 s17, 10")
    a("s_cselect_b32 s17, 0, s17")
    a(f"s_add_u32 s19, s19, {SLOT}")
    a("s_and_b32 s19, s19, 0x1ffff")
    acc(2)
    a("s_cmp_lg_u32 s40, 0")
    a("s_cbranch_scc1 L_NB")
    tag_ready(a)
    a("s_barrier")
    a.label("L_NB")
    a("s_add_u32 s40, s40, 1")
    a("s_cmp_lt_u32 s40, 10")
    a("s_cbranch_scc1 L_LOOP")
    a("s_waitcnt vmcnt(16)")
    bump(a)
    a("s_waitcnt vmcnt(0)")
    bump(a)
    stamp(a, 1)
    if LDBG == 2:
        a("s_lshl_b32 s22, s2, 1")
        a("s_and_b32 s23, s12, 1")
        a("s_add_u32 s22, s22, s23")
        a("s_lshl_b32 s22, s22, 8")
        a(f"s_add_u32 s22, s22, {WS_PROF + (1<<18)}")
        a("v_lshlrev_b32 v2, 2, v1")
        a("s_mov_b64 exec, 0xffff")
        for k in range(3): a(f"buffer_store_dword v{100+k}, v2, s[36:39], s22 offen offset:{64*k}")
        a("s_mov_b64 exec, -1")
    a("s_branch L_END")
    return
def emit_L2(a, vO):
    a.label("LC")
    ptr_ready(a)
    ptr_rest(a)
    tag_ready(a)
    a("s_barrier")
    srd(a, 40, 52, 1728*1280)
    a("s_lshl_b32 s18, s3, 2")
    a("s_add_u32 s18, s18, s14")
    a("s_sub_u32 s18, s18, 28")
    a("s_lshl_b32 s18, s18, 1")
    a("s_and_b32 s22, s12, 1")
    a("s_add_u32 s18, s18, s22")
    a("s_mul_i32 s19, s22, 36864")
    a("v_lshrrev_b32 v6, 3, v1")
    a("v_and_b32 v7, 7, v1")
    a("v_mul_u32_u24 v2, 1280, v6")
    a("v_lshl_add_u32 v2, v7, 4, v2")
    st = Stream()
    for i in range(9):
        st(f"s_add_u32 s20, s18, {64*i}")
        st("s_mul_i32 s21, s20, 6554")
        st("s_lshr_b32 s21, s21, 16")
        st("s_mul_i32 s22, s21, 10")
        st("s_sub_u32 s22, s20, s22")
        st(f"s_mul_i32 s{64+i}, s22, {4*HS}")
        st("s_lshl_b32 s23, s21, 10")
        st(f"s_add_u32 s{64+i}, s{64+i}, s23")
        st(f"s_add_u32 s{64+i}, s{64+i}, {WS_W2P}")
        st("s_lshl_b32 s22, s22, 7")
        st("s_mul_i32 s23, s21, 40960")
        st("s_add_u32 s22, s22, s23")
        if i == 8:
            st("s_cmp_lt_u32 s20, 540")
            st(f"s_cselect_b32 s{64+i}, s{64+i}, {OOB}")
        for k in range(4):
            st(f"s_add_u32 m0, s19, {i*4096 + k*1024}")
            st("s_nop 0")
            st("buffer_load_dwordx4 v2, s[40:43], s22 offen lds", tag=("wl", i))
            if k < 3: st("s_add_u32 s22, s22, 10240")
    st("v_lshrrev_b32 v6, 2, v1")
    st("v_lshlrev_b32 v3, 7, v6")
    st("v_and_b32 v6, 3, v1")
    st("v_lshl_add_u32 v3, v6, 3, v3")
    st("v_add_u32 v3, s19, v3")
    st("v_lshlrev_b32 v4, 4, v1")
    for dl in range(1, 4): st(f"v_add_u32 v{4+dl}, {dl*HS}, v4")
    for i in range(9):
        st.wait("vm", ("wl", i))
        b = 16 + (i % 4)*16
        for dl in range(4):
            st(f"ds_read_b64_tr_b16 v[{b+4*dl}:{b+4*dl+1}], v3 offset:{i*4096 + 32*dl}", tag=("wr", i, dl))
            st(f"ds_read_b64_tr_b16 v[{b+4*dl+2}:{b+4*dl+3}], v3 offset:{i*4096 + 32*dl + 2048}", tag=("wr", i, dl))
        for dl in range(4):
            st.wait("lg", ("wr", i, dl))
            st(f"buffer_store_dwordx4 v[{b+4*dl}:{b+4*dl+3}], v{4+dl}, s[36:39], s{64+i} offen {SC}", tag=("ws", i))
        if i >= 3: pass
    st("s_lshl_b32 s22, s18, 2")
    st(f"s_add_u32 s22, s22, {FL_W}")
    st("v_mov_b32 v2, 32")
    st("ds_add_u32 v254, v2")
    st.waitall("vm")
    resolve(st.items, a)
    flag_store(a, "s22", 2)
    stamp(a, 1)
    a("s_branch L_END2")
    a.label("L_END")
    a.label("L_END2")
    a("s_cmp_lg_u32 s12, 6")
    a("s_cbranch_scc1 L_EXIT")
    a("s_cmp_lt_u32 s14, 16")
    a("s_cbranch_scc1 L_EXIT")
    a("s_add_u32 s59, s14, 48")
    a("s_mul_i32 s47, s3, 80")
    a("s_add_u32 s47, s47, s59")
    a("s_lshl_b32 s23, s3, 4")
    a("s_add_u32 s23, s23, s14")
    a("s_sub_u32 s23, s23, 16")
    a("s_lshl_b32 s22, s23, 2")
    a(f"s_add_u32 s22, s22, {FL_K}")
    a("v_mov_b32 v2, 0")
    a("s_load_dwordx2 s[74:75], s[0:1], 64")
    poll_global(a, [f"buffer_load_dword v3, v2, s[36:39], s22 offen {SC}"], [3])
    a("v_lshlrev_b32 v2, 4, v1")
    a("s_lshl_b32 s22, s23, 12")
    a(f"s_add_u32 s22, s22, {WS_KR}")
    for it in range(4):
        a(f"buffer_load_dwordx4 v[{vO+4*it}:{vO+3+4*it}], v2, s[36:39], s22 offen offset:{it*1024} {SC}")
    a("s_lshl_b32 s22, s47, 1")
    a("v_mov_b32 v3, s22")
    a("s_waitcnt lgkmcnt(0)")
    a("global_load_ushort v4, v3, s[74:75]")
    a("s_waitcnt vmcnt(0)")
    a("v_lshlrev_b32 v4, 16, v4")
    a("v_readfirstlane_b32 s58, v4")
    a("s_branch CONV")
    a.label("L_EXIT")
    prof_flush(a, 5, 36, 12)
    a("s_endpgm")

def mega():
    a = Asm()
    a.label("KSTART")
    setup(a)
    a("s_cmp_lt_u32 s12, 4")
    a("s_cbranch_scc1 M_G")
    a("s_cmp_lt_u32 s12, 6")
    a("s_cbranch_scc1 M_K")
    emit_L(a, 0)
    a.label("M_G")
    emit_G(a)
    a.label("M_K")
    vO = emit_K(a)
    emit_L2(a, vO)
    a.label("M_END")
    a("s_endpgm")
    return a.finish(True)

if __name__ == "__main__":
    Cfg.PROF = "--noprof" not in sys.argv
    Cfg.CYC = "--cyc" in sys.argv
    for x in sys.argv[2:]:
        if "=" in x:
            k, v = x.split("="); globals()[k] = int(v)
    name = "parallel_sum__ssm_conv_s4__dense_activation_gelu__prompt_kernel"
    body = mega()
    code, kd = kernel_text(name, body, 256)
    hdr = f"; @launch grid=(256,1,1) block=(512,1,1) lds={LDS_TOTAL}\n.amdgcn_target \"amdgcn-amd-amdhsa--gfx950\"\n"
    open(sys.argv[1], "w").write(hdr + code + kd)
```

```python
import math
from common import *
from asmlib import Stream
LOG2E = 1.4426950408889634

def kgen(sD=47, sL=46):
    ld = Stream(); a = Stream(); m = Stream()
    V0 = 48
    vRAW = V0
    vP = V0+8
    ZB = V0+20
    vAD = V0+68
    vPK = 120
    vF = 48; vG = 80; vACC = 232; vO = 184
    ld(f"v_lshlrev_b32 v{vAD}, 2, v1")
    ld(f"s_lshl_b32 s76, s{sD}, 8")
    ld(f"v_add_u32 v{vAD}, s76, v{vAD}")
    for k in range(6):
        ld(f"global_load_dword v{vRAW+k}, v{vAD}, s[{60+2*k}:{61+2*k}]", tag="kp")
    ld(f"s_lshl_b32 s76, s{sD}, 1")
    ld(f"v_mov_b32 v{vAD+1}, s76")
    ld(f"global_load_ushort v{vRAW+6}, v{vAD+1}, s[72:73]", tag="kp")
    ld(f"global_load_ushort v{vRAW+7}, v{vAD+1}, s[74:75]", tag="kp")
    ld.wait("vm", "kp")
    dt = vRAW+6; T0 = ZB+22
    a(f"v_lshlrev_b32 v{dt}, 16, v{dt}")
    a(f"v_lshlrev_b32 v{vRAW+7}, 16, v{vRAW+7}")
    hi = struct.unpack("<f", struct.pack("<f", LOG2E))[0]; lo = LOG2E - hi
    a(f"s_mov_b32 s76, {f32bits(hi)}")
    a(f"s_mov_b32 s77, {f32bits(lo)}")
    a(f"v_mul_f32 v{T0}, s76, v{dt}")
    a(f"v_readfirstlane_b32 s58, v{vRAW+7}")
    a(f"v_fma_f32 v{T0+1}, v{dt}, s76, -v{T0}")
    a(f"v_exp_f32 v{T0}, v{T0}")
    a(f"v_fma_f32 v{T0+1}, v{dt}, s77, v{T0+1}")
    a(f"v_mul_f32 v{T0+1}, {f32bits(math.log(2))}, v{T0+1}")
    for k in range(6):
        a(f"v_lshlrev_b32 v{vP+k}, 16, v{vRAW+k}")
        a(f"v_and_b32 v{vP+6+k}, 0xffff0000, v{vRAW+k}")
    a(f"v_fma_f32 v{dt}, v{T0}, v{T0+1}, v{T0}")
    a(f"v_cvt_pk_bf16_f32 v{dt}, v{dt}, v{dt}")
    a(f"v_lshlrev_b32 v{dt}, 16, v{dt}")
    def R(c, x):
        if isinstance(x, tuple): return vP + 6*c + x[1]
        return ZB + 24*c + x
    def both(fmt, *regs):
        for c in range(2):
            a(fmt.format(*[R(c, x) for x in regs]))
    def z(k): return 2*(k-1)
    Z8 = 14; Z128 = 16; CUR = 18; W0 = 20; T = 22
    def inc(x): return ("p", x[1]+1) if isinstance(x, tuple) else x+1
    def cmul(d, x, y):
        assert d != x and d != y
        both("v_mul_f32 v{0}, v{1}, v{2}", T, inc(x), inc(y))
        both("v_mul_f32 v{0}, v{1}, v{2}", T+1, inc(x), y)
        both("v_fma_f32 v{0}, v{1}, v{2}, -v{3}", d, x, y, T)
        both("v_fma_f32 v{0}, v{1}, v{2}, v{3}", d+1, x, inc(y), T+1)
    def csq(d, x):
        both("v_mul_f32 v{0}, v{1}, v{1}", T, x+1)
        both("v_add_f32 v{0}, v{1}, v{1}", T+1, x)
        both("v_fma_f32 v{0}, v{1}, v{1}, -v{2}", d, x, T)
        both("v_mul_f32 v{0}, v{1}, v{2}", d+1, T+1, x+1)
    rows = {}
    def put(tile, row, x, neg=False):
        r = vPK + 2*len(rows); rows[tile*16+row] = r
        for c in range(2):
            a(f"v_cvt_pk_bf16_f32 v{r+c}, v{R(c,x)}, {'-' if neg else ''}v{R(c,x+1)}")
    def direct(d, e):
        if e != 1:
            both(f"v_mul_f32 v{{0}}, {f32bits(float(e))}, v{{1}}", T, ("p", 0))
            both(f"v_mul_f32 v{{0}}, {f32bits(float(e))}, v{{1}}", T+1, ("p", 1))
            both("v_exp_f32 v{0}, v{0}", T)
            both("v_fract_f32 v{0}, v{0}", T+1)
        else:
            both("v_exp_f32 v{0}, v{1}", T, ("p", 0))
            both("v_fract_f32 v{0}, v{1}", T+1, ("p", 1))
        both("v_cos_f32 v{0}, v{1}", d, T+1)
        both("v_sin_f32 v{0}, v{1}", d+1, T+1)
        both("v_mul_f32 v{0}, v{1}, v{0}", d, T)
        both("v_mul_f32 v{0}, v{1}, v{0}", d+1, T)
    for k in range(4):
        for c in range(2): a(f"v_mul_f32 v{vP+6*c+k}, v{dt}, v{vP+6*c+k}")
    both(f"v_mul_f32 v{{0}}, {f32bits(LOG2E)}, v{{0}}", ("p", 0))
    both("v_mul_f32 v{0}, 0.15915494, v{0}", ("p", 1))
    cmul(CUR, ("p", 4), ("p", 2))
    direct(z(1), 1)
    direct(Z128, 128)
    csq(z(2), z(1)); csq(z(4), z(2)); csq(Z8, z(4))
    cur, oth = CUR, W0
    for b in range(16):
        if b < 15: cmul(oth, cur, Z8)
        put(0, b, cur, neg=True)
        cur, oth = oth, cur
    cmul(z(3), z(2), z(1)); cmul(z(5), z(4), z(1)); cmul(z(6), z(4), z(2)); cmul(z(7), z(4), z(3))
    for k in range(1, 8): put(1, k, z(k))
    put(1, 8, Z128)
    tmp = [W0, CUR]
    for k in range(1, 8):
        cmul(tmp[k % 2], Z128, z(k))
        if k > 1: put(1, 8+k-1, tmp[(k-1) % 2])
    csq(z(1), Z128)
    put(1, 15, tmp[1])
    cur, oth = z(1), z(3)
    for half in range(2):
        put(2, 4*half, cur)
        for k in range(1, 4):
            cmul(tmp[k % 2], cur, z(2*k))
            if k > 1: put(2, 4*half+k-1, tmp[(k-1) % 2])
        cmul(oth, cur, Z128)
        put(2, 4*half+3, tmp[1])
        cur, oth = oth, cur
    for al in range(4):
        cmul(W0, cur, z(4))
        put(2, 8+2*al, cur)
        cmul(oth, cur, Z128)
        put(2, 9+2*al, W0)
        cur, oth = oth, cur
    for i in range(9):
        if i < 8: cmul(oth, cur, Z128)
        put(3, i, cur)
        cur, oth = oth, cur
    assert len(rows) == 56
    a(f"v_lshlrev_b32 v{vAD}, 3, v1")
    a(f"v_add_u32 v{vAD}, s{sL}, v{vAD}")
    a(f"v_and_b32 v{vAD+2}, 15, v1")
    a(f"v_lshrrev_b32 v{vAD+3}, 4, v1")
    a(f"v_mul_u32_u24 v{vAD+1}, 544, v{vAD+2}")
    a(f"v_lshl_add_u32 v{vAD+1}, v{vAD+3}, 4, v{vAD+1}")
    a(f"v_add_u32 v{vAD+1}, s{sL}, v{vAD+1}")
    for r in range(12): a(f"v_mov_b32 v{vACC+r}, 0")
    a("v_mov_b32 v244, 0x3f80"); a("v_mov_b32 v245, 0x3f80")
    rows[16] = 244
    a(f"v_min_u32 v246, 8, v{vAD+2}")
    a(f"v_mul_u32_u24 v246, 544, v246")
    a(f"v_lshl_add_u32 v246, v{vAD+3}, 4, v246")
    a(f"v_add_u32 v246, s{sL}, v246")
    j = vAD+2; q = vAD+3; t = 8
    TB = 31744
    a(f"v_lshrrev_b32 v{t}, 1, v{q}")
    a(f"v_lshlrev_b32 v{t}, 8, v{t}")
    a(f"v_lshl_add_u32 v{t}, v{j}, 4, v{t}")
    a(f"v_and_b32 v{t+1}, 1, v{q}")
    a(f"v_lshl_add_u32 v{t}, v{t+1}, 3, v{t}")
    a(f"v_add_u32 v{t}, s{sL}, v{t}")
    a(f"v_cmp_gt_u32 s[76:77], 2, v{q}")
    a(f"v_lshlrev_b32 v{t+2}, 2, v{j}")
    a(f"v_lshlrev_b32 v{t+3}, 3, v{j}")
    a(f"v_cndmask_b32 v{t+2}, v{t+2}, v{t+3}, s[76:77]")
    a(f"v_lshl_add_u32 v{t+2}, v{q}, 7, v{t+2}")
    a(f"v_add_u32 v{t+2}, s{sL}, v{t+2}")
    a(f"v_cndmask_b32 v{t+3}, 64, 4, s[76:77]")
    a(f"v_add_u32 v{t+3}, v{t+2}, v{t+3}")
    a(f"v_lshlrev_b32 v{t+4}, 5, v{j}")
    a(f"v_lshl_add_u32 v{t+4}, v{q}, 3, v{t+4}")
    a(f"v_add_u32 v{t+4}, s{sL}, v{t+4}")
    u = 16
    a(f"v_lshlrev_b32 v{u}, 4, v1")
    a(f"v_lshlrev_b32 v{u+1}, 3, v1")
    a(f"v_add_u32 v{u+1}, 256, v{u+1}")
    a(f"v_cmp_gt_u32 s[76:77], 32, v1")
    a(f"v_cndmask_b32 v{u}, v{u+1}, v{u}, s[76:77]")
    a(f"v_add_u32 v{u}, s{sL}, v{u}")
    a(f"v_lshlrev_b32 v{u+1}, 2, v1")
    a(f"v_add_u32 v{u+1}, s{sL}, v{u+1}")
    a(f"v_add_u32 v{u+1}, {TB}, v{u+1}")
    a(f"v_lshlrev_b32 v{u+6}, 1, v1")
    a(f"v_add_u32 v{u+6}, s{sL}, v{u+6}")
    a(f"v_and_b32 v{u+2}, 1, v1")
    a(f"v_cmp_eq_u32 s[76:77], 1, v{u+2}")
    a(f"v_mov_b32 v{u+2}, 0x01000504")
    a(f"v_mov_b32 v{u+3}, 0x05040504")
    a(f"v_cndmask_b32 v{u+4}, v{u+2}, v{u+3}, s[76:77]")
    a(f"v_mov_b32 v{u+5}, 0x03020504")
    a("s_mov_b32 s76, 0x01000100")
    a("s_mov_b32 s77, 0x03020302")
    def wr(tile):
        for row in range(16):
            g = tile*16+row
            if g in rows: m(f"ds_write_b64 v{vAD}, v[{rows[g]}:{rows[g]+1}] offset:{g*544}")
    def rd(tile, h):
        ad = 246 if tile == 3 else vAD+1
        for k in range(4):
            b = vG + 16*h + 4*k
            m(f"ds_read_b128 v[{b}:{b+3}], v{ad} offset:{tile*8704 + 64*(4*h+k)}", tag=("ka", tile, h))
    def mm(tile, h):
        acc = vACC + 4*(tile-1)
        m.wait("lg", [("ka", tile, h), "kb"])
        for k in range(4):
            A = f"v[{vG+16*h+4*k}:{vG+16*h+3+4*k}]"; B = f"v[{vF+4*(4*h+k)}:{vF+3+4*(4*h+k)}]"
            if tile == 3: A, B = B, A
            m(f"v_mfma_f32_16x16x32_bf16 v[{acc}:{acc+3}], {A}, {B}, v[{acc}:{acc+3}]")
    wr(0)
    for k in range(8):
        m(f"ds_read_b128 v[{vF+4*k}:{vF+3+4*k}], v{vAD+1} offset:{64*k}", tag="kb")
    wr(1); rd(1, 0); rd(1, 1)
    wr(2); mm(1, 0); rd(2, 0); mm(1, 1); rd(2, 1)
    wr(3); mm(2, 0); rd(3, 0); mm(2, 1); rd(3, 1)
    mm(3, 0); mm(3, 1)
    c = 24
    for k in range(3):
        m(f"v_cvt_pk_bf16_f32 v{c+2*k}, v{vACC+4*k}, v{vACC+4*k+1}")
        m(f"v_cvt_pk_bf16_f32 v{c+1+2*k}, v{vACC+4*k+2}, v{vACC+4*k+3}")
    m(f"ds_write_b64 v{t}, v[{c}:{c+1}] offset:{TB}")
    m(f"ds_write_b32 v{t+2}, v{c+2} offset:{TB+512}")
    m(f"ds_write_b32 v{t+3}, v{c+3} offset:{TB+512}")
    m(f"ds_write_b64 v{t+4}, v[{c+4}:{c+5}] offset:{TB+1024}")
    p = 32
    m(f"ds_read_b64 v[{p}:{p+1}], v{u} offset:{TB}", tag="e0")
    m(f"ds_read_b64 v[{p+2}:{p+3}], v{u} offset:{TB+8}", tag="e0")
    m(f"ds_read2_b32 v[{p+4}:{p+5}], v{u+1} offset0:192 offset1:193", tag="e1")
    for it in (2, 3):
        m(f"ds_read_u16 v{p+2+2*it}, v{u+6} offset:{TB+1024+128*(it-2)}", tag=("e", it))
        m(f"ds_read_u16 v{p+3+2*it}, v{u+6} offset:{TB+1026+128*(it-2)}", tag=("e", it))
    m.wait("lg", "e0")
    o = vO
    for k in range(4): m(f"v_alignbit_b32 v{o+k}, v{p+3-k}, v{p+3-k}, 16")
    m("s_mov_b32 exec_lo, 0")
    m(f"v_perm_b32 v{o}, v{p+2}, v{p+1}, v{u+5}")
    m(f"v_perm_b32 v{o+1}, v{p+1}, v{p+1}, s76")
    m(f"v_perm_b32 v{o+2}, v{p+1}, v{p}, v{u+5}")
    m(f"v_perm_b32 v{o+3}, v{p}, v{p}, s76")
    m("s_mov_b32 exec_lo, -1")
    m.wait("lg", "e1")
    o = vO+4
    m(f"v_perm_b32 v{o}, v{p+5}, v{p+5}, s76")
    m(f"v_perm_b32 v{o+1}, v{p+4}, v{p+4}, s77")
    m(f"v_alignbit_b32 v{o+2}, v{p+4}, v{p+4}, 16")
    m(f"v_perm_b32 v{o+3}, v{p+4}, v{p+4}, s76")
    for it in (2, 3):
        m.wait("lg", ("e", it))
        o = vO+4*it; sa = p+2+2*it; se = sa+1
        m(f"v_perm_b32 v{o}, v{se}, v{se}, s76")
        m(f"v_perm_b32 v{o+1}, v{se}, v{sa}, v{u+4}")
        m(f"v_perm_b32 v{o+2}, v{sa}, v{sa}, s76")
        m(f"v_mov_b32 v{o+3}, v{o+2}")
    return ld, a, m, vO
```

```python
import sys, math
from common import *
from asmlib import Stream, resolve, interleave
import mega as M1
import conv

SC = "sc1"
NST = 10; SLOT = 32768; NS = 4
L_KG = 131072
L_LN = L_KG + 2*8704
L_SY = L_LN + 10752
LDS_TOTAL = 163840
HS = 55296
WS_FL = 26 << 20
FL_R = WS_FL; FL_X = WS_FL + 1024; FL_W = WS_FL + 2048; FL_K = WS_FL + 3072; FL_H = WS_FL + 4096; FL_Y = WS_FL + 8192
CONV_LDS = conv.CONV_LDS
SPIN_MAX = 20000
OOB = "0x7f000000"
LDBG = 0
GDBG = 0
DBGOUT = 0
ROT = 0
CPREF = 1
KDELAY = 0
NOCS = 0
LJ0 = 6
GRS = 18
PSLEEP = 8
GPRIO = 2
LPRIO = 3
lbl = [0]
def newlabel(p):
    lbl[0] += 1; return f"{p}_{lbl[0]}"

def spin_tail(a, again):
    out = newlabel("CT")
    a(f"s_cbranch_vccz {out}")
    a("s_add_u32 s79, s79, 1")
    a(f"s_cmp_lt_u32 s79, {SPIN_MAX}")
    a(f"s_cbranch_scc1 {again}")
    a(out + ":")

def check_tags(a, regs, again):
    a(f"v_cmp_ne_u32 vcc, s100, v{regs[0]}")
    for r in regs[1:]:
        a(f"v_cmp_ne_u32 s[62:63], s100, v{r}")
        a("s_or_b64 vcc, vcc, s[62:63]")
    spin_tail(a, again)

def poll_global(a, loads, regs, sleep=1):
    L = newlabel("PG"); F = newlabel("PF")
    a(f"s_branch {F}")
    a(L + ":")
    a(f"s_sleep {PSLEEP}")
    a(F + ":")
    for l in loads: a(l)
    a("s_waitcnt vmcnt(0)")
    check_tags(a, regs, L)

def wait_lds(a, vaddr, vtmp, thr, sleep=True):
    L = newlabel("WL")
    a(L + ":")
    a(f"ds_read_b32 v{vtmp}, v{vaddr}")
    a("s_waitcnt lgkmcnt(0)")
    a(f"v_cmp_gt_u32 vcc, {thr}, v{vtmp}")
    spin_tail(a, L)

def flag_store(a, soff, v0=250):
    a(f"v_mov_b32 v{v0}, s100")
    a(f"v_mov_b32 v{v0+1}, 0")
    a("s_mov_b64 exec, 1")
    a(f"buffer_store_dword v{v0}, v{v0+1}, s[36:39], {soff} offen {SC}")
    a("s_mov_b64 exec, -1")

def setup(a):
    a("s_cmp_ge_u32 s2, 256")
    a("s_cbranch_scc1 M_END")
    stamp(a, 0)
    a("s_load_dwordx2 s[6:7], s[0:1], 128")
    a("s_load_dwordx2 s[4:5], s[0:1], 0")
    a("s_load_dwordx8 s[48:55], s[0:1], 80")
    a("s_load_dwordx16 s[60:75], s[0:1], 8")
    a("s_mov_b32 s79, 0")
    a("v_and_b32 v1, 63, v0")
    a("v_lshrrev_b32 v6, 6, v0")
    a("v_lshlrev_b32 v254, 2, v0")
    a(f"v_add_u32 v254, {L_SY}, v254")
    a("v_mov_b32 v255, 0")
    a("ds_write_b32 v254, v255")
    a("v_readfirstlane_b32 s12, v6")
    a("v_mov_b32 v255, 1")
    a("s_and_b32 s3, s2, 7")
    a("s_lshr_b32 s14, s2, 3")
    a("s_lshl_b32 s101, s3, 5")
    a("s_add_u32 s101, s101, s14")
    a("s_lshr_b32 s15, s3, 1")
    a("s_lshl_b32 s44, s15, 3")
    a("s_lshl_b32 s15, s15, 2")
    a("s_and_b32 s17, s14, 3")
    a("s_add_u32 s15, s15, s17")
    a("s_and_b32 s16, s3, 1")
    a("s_lshl_b32 s45, s16, 2")
    a("s_mul_i32 s16, s16, 7")
    a("s_lshr_b32 s23, s14, 2")
    a("s_add_u32 s16, s16, s23")
    if ROT == 0:
        a("s_mul_i32 s17, s17, 5")
        a("s_lshr_b32 s17, s17, 1")
        a("s_mul_i32 s23, s23, 3")
        a("s_lshr_b32 s23, s23, 1")
        a("s_add_u32 s17, s17, s23")
        a("s_sub_u32 s22, s17, 10")
        a("s_cmp_ge_u32 s17, 10")
        a("s_cselect_b32 s17, s22, s17")
    elif ROT == 2:
        a("s_add_u32 s17, s17, s23")
        a("s_and_b32 s17, s17, 1")
        a("s_mul_i32 s17, s17, 5")
    elif ROT == 4:
        a("s_add_u32 s17, s17, s23")
        a("s_and_b32 s17, s17, 3")
        a("s_mul_i32 s17, s17, 5")
        a("s_lshr_b32 s17, s17, 1")
    elif ROT == 1:
        a("s_mov_b32 s17, 0")
    a("s_and_b32 s22, s14, 7")
    a("s_add_u32 s44, s44, s22")
    a("s_lshr_b32 s23, s14, 3")
    a("s_add_u32 s45, s45, s23")
    a("s_and_b32 s13, s12, 3")

def ptr_ready(a):
    a("s_waitcnt lgkmcnt(0)")
    srd(a, 24, 4, 2048*1280)
def ptr_rest(a):
    a(f"s_add_u32 s8, s6, {FL_R}")
    a("s_addc_u32 s9, s7, 0")
    a("s_load_dword s100, s[8:9], 0")
    srd(a, 36, 6, WS_SIZE)

def tag_ready(a):
    a("s_waitcnt lgkmcnt(0)")
    a("s_mul_i32 s100, s100, 1664525")
    a("s_add_u32 s100, s100, 1013904223")

def bump(a, tag=None):
    a("ds_add_u32 v254, v255", tag=tag) if isinstance(a, Stream) else a("ds_add_u32 v254, v255")

def G_ln1():
    a = Stream()
    vR = 200; vT = 212
    a("v_lshrrev_b32 v6, 5, v1")
    a("v_and_b32 v7, 31, v1")
    a("v_mul_u32_u24 v2, 1280, v6")
    a("v_lshl_add_u32 v2, v7, 3, v2")
    a("s_mul_i32 s22, s101, 10240")
    a("s_mul_i32 s23, s13, 2560")
    a("s_add_u32 s22, s22, s23")
    ptr_ready(a)
    for k in range(5):
        a(f"buffer_load_dwordx2 v[{vR+2*k}:{vR+1+2*k}], v2, s[24:27], s22 offen offset:{256*k}", tag="lnr")
    ptr_rest(a)
    a.mark("idle")
    a(f"v_mov_b32 v{vT+8}, 0x3f803f80")
    a(f"v_mov_b32 v{vT+9}, 0xffff0000")
    for k in range(4): a(f"v_mov_b32 v{vT+k}, 0")
    a("v_lshrrev_b32 v6, 5, v1")
    a("v_and_b32 v7, 31, v1")
    a("s_mul_i32 s22, s13, 2688")
    a(f"s_add_u32 s22, s22, {L_LN}")
    a(f"v_mul_u32_u24 v{vT+14}, 1344, v6")
    a(f"v_lshl_add_u32 v{vT+14}, v7, 3, v{vT+14}")
    a(f"v_add_u32 v{vT+14}, s22, v{vT+14}")
    a(f"v_lshlrev_b32 v{vT+15}, 3, v6")
    tag_ready(a)
    a("s_barrier")
    a.wait("vm", "lnr")
    for k in range(10):
        a(f"v_dot2_f32_bf16 v{vT+(k&1)}, v{vR+k}, v{vT+8}, v{vT+(k&1)}")
        a(f"v_dot2_f32_bf16 v{vT+2+(k&1)}, v{vR+k}, v{vR+k}, v{vT+2+(k&1)}")
    m = vT; q = vT+2
    a(f"v_add_f32 v{m}, v{m}, v{m+1}")
    a(f"v_add_f32 v{q}, v{q}, v{q+1}")
    for dpp in ("quad_perm:[1,0,3,2]", "quad_perm:[2,3,0,1]", "row_half_mirror", "row_mirror"):
        a(f"v_add_f32_dpp v{m}, v{m}, v{m} {dpp} row_mask:0xf bank_mask:0xf")
        a(f"v_add_f32_dpp v{q}, v{q}, v{q} {dpp} row_mask:0xf bank_mask:0xf")
    a(f"v_mov_b32 v{m+1}, v{m}")
    a(f"v_mov_b32 v{q+1}, v{q}")
    a(f"v_permlane16_swap_b32 v{m}, v{m+1}")
    a(f"v_permlane16_swap_b32 v{q}, v{q+1}")
    a(f"v_add_f32 v{m}, v{m}, v{m+1}")
    a(f"v_add_f32 v{q}, v{q}, v{q+1}")
    def rbf(r):
        a(f"v_cvt_pk_bf16_f32 v{r}, v{r}, v{r}")
        a(f"v_lshlrev_b32 v{r}, 16, v{r}")
    a(f"v_mul_f32 v{m}, {f32bits(1/640.)}, v{m}")
    a(f"v_mul_f32 v{q}, {f32bits(1/640.)}, v{q}")
    a(f"v_fma_f32 v{q}, -v{m}, v{m}, v{q}")
    a(f"v_max_f32 v{q}, 0, v{q}")
    rbf(q)
    a(f"v_add_f32 v{q}, {f32bits(1e-5)}, v{q}")
    rbf(q)
    a(f"v_sqrt_f32 v{q}, v{q}")
    a(f"v_mov_b32 v{vT+5}, s100")
    a(f"v_cvt_pk_bf16_f32 v{vT+4}, v{m}, v{q}")
    a("s_lshl_b32 s22, s101, 6")
    a("s_lshl_b32 s23, s13, 4")
    a("s_add_u32 s22, s22, s23")
    a(f"s_add_u32 s22, s22, {WS_STATS}")
    a("s_mov_b32 exec_lo, 1")
    a("s_mov_b32 exec_hi, 1")
    a(f"buffer_store_dwordx2 v[{vT+4}:{vT+5}], v{vT+15}, s[36:39], s22 offen {SC}", tag="st")
    a("s_mov_b64 exec, -1")
    a(f"v_and_b32 v{q}, v{vT+9}, v{vT+4}")
    a(f"v_lshlrev_b32 v{m}, 16, v{vT+4}")
    a(f"v_rcp_f32 v{q}, v{q}")
    for k2 in range(5):
        xs = [vR+2*k2, vR+2*k2+1]; ts = [(vT+10, vT+11), (vT+12, vT+13)]
        def two(fmt):
            for x, (t0, t1) in zip(xs, ts): a(fmt.format(x=x, t0=t0, t1=t1, m=m, q=q, k=vT+9))
        two("v_lshlrev_b32 v{t0}, 16, v{x}")
        two("v_and_b32 v{t1}, v{k}, v{x}")
        two("v_sub_f32 v{t0}, v{t0}, v{m}")
        two("v_sub_f32 v{t1}, v{t1}, v{m}")
        two("v_cvt_pk_bf16_f32 v{x}, v{t0}, v{t1}")
        two("v_lshlrev_b32 v{t0}, 16, v{x}")
        two("v_and_b32 v{t1}, v{k}, v{x}")
        two("v_mul_f32 v{t0}, v{t0}, v{q}")
        two("v_mul_f32 v{t1}, v{t1}, v{q}")
        two("v_cvt_pk_bf16_f32 v{x}, v{t0}, v{t1}")
        a(f"ds_write_b64 v{vT+14}, v[{xs[0]}:{xs[1]}] offset:{256*k2}")
    bump(a)
    return a

vACC = 16
vCS = 80
vFR = 96
vONE = 160
vGRN = 164
vB1 = 172
vFL = 176

def G_loop_setup():
    a = Stream()
    srd(a, 32, 50, 3456)
    a("s_lshr_b32 s18, s13, 1")
    a("s_and_b32 s19, s13, 1")
    a("v_and_b32 v10, 15, v1")
    a("v_lshrrev_b32 v11, 4, v1")
    a("v_lshlrev_b32 v12, 1, v10")
    a("s_lshl_b32 s22, s16, 8")
    a("s_lshl_b32 s23, s19, 7")
    a("s_add_u32 s22, s22, s23")
    for c in range(4):
        a(f"buffer_load_ushort v{vB1+c}, v12, s[32:35], s22 offen offset:{32*c}", tag="b1")
    a("v_lshrrev_b32 v12, 2, v1")
    a("v_and_b32 v13, 7, v12")
    a("s_lshl_b32 s22, s19, 2")
    a("v_xor_b32 v13, s22, v13")
    a("v_lshlrev_b32 v13, 5, v13")
    a("v_lshl_add_u32 v13, v12, 8, v13")
    a("v_and_b32 v12, 3, v1")
    a("v_lshl_add_u32 v13, v12, 3, v13")
    a("v_add_u32 v2, 16384, v13")
    for c in range(1, 4): a(f"v_xor_b32 v{2+c}, {32*c}, v2")
    a("v_lshrrev_b32 v12, 1, v10")
    a("v_xor_b32 v12, v12, v11")
    a("v_lshlrev_b32 v12, 4, v12")
    a("v_and_b32 v13, 7, v10")
    a("v_lshl_add_u32 v12, v13, 7, v12")
    a("v_lshrrev_b32 v13, 3, v10")
    a("v_lshl_add_u32 v12, v13, 12, v12")
    a("s_lshl_b32 s22, s18, 13")
    a("v_add_u32 v8, s22, v12")
    a("v_xor_b32 v9, 64, v8")
    a("v_and_b32 v13, 1, v1")
    a("v_lshlrev_b32 v13, 8, v13")
    a(f"v_add_u32 v13, {L_SY + 6*256}, v13")
    a("v_lshlrev_b32 v14, 4, v1")
    a("v_lshlrev_b32 v15, 3, v10")
    a("s_lshl_b32 s60, s15, 10")
    a("s_lshl_b32 s22, s18, 9")
    a("s_add_u32 s60, s60, s22")
    a(f"s_add_u32 s60, s60, {WS_STATS}")
    for r in range(vACC, vACC+80): a(f"v_mov_b32 v{r}, 0")
    for r in range(4): a(f"v_mov_b32 v{vONE+r}, 0x3f803f80")
    return a

tails = []
def G_tails(a):
    for L, ok, t in tails:
        a(L + ":")
        wait_lds(a, 13, vFL, t+1)
        a(f"s_branch {ok}")
def G_loop(a):
    def reads(s):
        t, ks2 = divmod(s, 2)
        off = (t % 2)*SLOT
        b = vFR + (s % 2)*32
        L = []
        for c in range(4):
            L.append(f"ds_read_b64_tr_b16 v[{b+4*c}:{b+4*c+1}], v{2+c} offset:{off + ks2*8192}")
            L.append(f"ds_read_b64_tr_b16 v[{b+4*c+2}:{b+4*c+3}], v{2+c} offset:{off + ks2*8192 + 4096}")
            L.append(f"ds_read_b128 v[{b+16+4*c}:{b+16+4*c+3}], v{8+ks2} offset:{off + c*1024}")
        return L
    def check_full(t, preread):
        L = newlabel("GF"); ok = newlabel("GFO")
        if preread:
            a(f"v_cmp_gt_u32 vcc, {t+1}, v{vFL}")
            a(f"s_cbranch_vccnz {L}")
            a(ok + ":")
            tails.append((L, ok, t))
        else:
            wait_lds(a, 13, vFL, t+1)
    def toggle():
        for r in (2, 3, 4, 5, 8, 9): a(f"v_xor_b32 v{r}, 0x10000, v{r}")
    stamp(a, 1)
    check_full(0, False)
    stamp(a, 2)
    for x in reads(0): a(x)
    for s in range(20):
        t, ks2 = divmod(s, 2)
        b = vFR + (s % 2)*32
        a("s_waitcnt lgkmcnt(0)")
        if GDBG:
            if s > 0:
                a(f"v_writelane_b32 v180, s76, {s-1}")
                a(f"v_writelane_b32 v181, s72, {s-1}")
            a("s_memtime s[76:77]")
        extra = []
        if ks2 == 1:
            extra.append("ds_add_u32 v254, v255")
            if t + 1 < NST:
                check_full(t+1, True)
                if (t+1) % 2 == 0: toggle()
        if GDBG: a("s_memtime s[72:73]")
        rr = reads(s+1) if s+1 < 20 else []
        if ks2 == 0 and t + 1 < NST: rr = rr + [f"ds_read_b32 v{vFL}, v13"]
        rr = extra + rr
        if s == GRS:
            for rt in range(4):
                rr.append(f"buffer_load_dwordx2 v[{vGRN+2*rt}:{vGRN+1+2*rt}], v15, s[36:39], s60 offen offset:{128*rt} {SC}")
        mm = []
        for c in range(4):
            for rt in range(4):
                acc = vACC + (rt*4+c)*4
                mm.append(f"v_mfma_f32_16x16x32_bf16 v[{acc}:{acc+3}], v[{b+4*c}:{b+4*c+3}], v[{b+16+4*rt}:{b+16+4*rt+3}], v[{acc}:{acc+3}]")
            if not NOCS: mm.append(f"v_mfma_f32_16x16x32_bf16 v[{vCS+4*c}:{vCS+4*c+3}], v[{vONE}:{vONE+3}], v[{b+4*c}:{b+4*c+3}], v[{vCS+4*c}:{vCS+4*c+3}]")
        for i, x in enumerate(mm):
            a(x)
            if i < len(rr): a(rr[i])
        for x in rr[len(mm):]: a(x)
    stamp(a, 3)
    if GDBG:
        a("s_lshl_b32 s22, s2, 2")
        a("s_add_u32 s22, s22, s13")
        a("s_lshl_b32 s22, s22, 8")
        a(f"s_add_u32 s22, s22, {WS_PROF + (2<<18)}")
        a("v_lshlrev_b32 v182, 2, v1")
        a("s_mov_b32 exec_hi, 0")
        a("buffer_store_dword v180, v182, s[36:39], s22 offen")
        a("buffer_store_dword v181, v182, s[36:39], s22 offen offset:128")
        a("s_mov_b64 exec, -1")

def G_gelu():
    a = Stream()
    vA = 96
    vB = 104
    vK = 112
    vT = 124
    vO = 132
    a("s_mov_b32 s65, 0xffff0000")
    a("v_cmp_gt_u32 s[70:71], 16, v1")
    a("s_mov_b32 s66, 0x01000100")
    for c in range(4):
        cs = vCS+4*c
        a(f"v_cvt_pk_bf16_f32 v{cs+1}, v{cs}, v{cs}")
        a(f"v_and_b32 v{cs+1}, s65, v{cs+1}")
        a(f"v_sub_f32 v{cs+1}, v{cs}, v{cs+1}")
        a(f"v_cvt_pk_bf16_f32 v{cs+2}, v{cs}, v{cs+1}")
        a(f"v_cndmask_b32 v{vA+2*c}, 0, v{cs+2}, s[70:71]")
        a(f"v_cndmask_b32 v{vA+2*c+1}, 0, v{vB1+c}, s[70:71]")
    for rt in range(4):
        g = vGRN+2*rt
        a(f"v_perm_b32 v{vB+2*rt}, v{g}, v{g}, s66")
        a(f"v_xor_b32 v{vB+2*rt}, 0x80008000, v{vB+2*rt}")
        a(f"v_lshrrev_b32 v{vB+2*rt+1}, 16, v{g}")
    for rt in range(4):
        for c in range(4):
            acc = vACC + (rt*4+c)*4
            a(f"v_mfma_f32_16x16x16_bf16 v[{acc}:{acc+3}], v[{vA+2*c}:{vA+2*c+1}], v[{vB+2*rt}:{vB+2*rt+1}], v[{acc}:{acc+3}]")
        g = vGRN+2*rt; k = vK+3*rt
        a(f"v_and_b32 v{k+2}, s65, v{g}")
        a(f"v_rcp_f32 v{k}, v{k+2}")
        a(f"v_mul_f32 v{k+1}, v{k}, v{k}")
        a(f"v_mul_f32 v{k+1}, v{k+1}, v{k}")
        a(f"v_mul_f32 v{k+1}, {f32bits(GELU_K2)}, v{k+1}")
        a(f"v_mul_f32 v{k}, {f32bits(GELU_K1)}, v{k}")
    a("s_lshl_b32 s66, s15, 3")
    a("s_lshl_b32 s67, s18, 2")
    a("s_add_u32 s66, s66, s67")
    a(f"s_mul_i32 s66, s66, {HS}")
    a("s_lshl_b32 s67, s16, 12")
    a("s_add_u32 s66, s66, s67")
    a("s_lshl_b32 s67, s19, 11")
    a("s_add_u32 s66, s66, s67")
    for rt in range(4):
        k = vK+3*rt
        for p in range(2):
            accs = [vACC + (rt*4+2*p)*4 + r for r in range(8)]
            ts = [vT + r for r in range(8)]
            for x, t in zip(accs, ts): a(f"v_mul_f32 v{t}, v{x}, v{x}")
            for x, t in zip(accs, ts): a(f"v_fma_f32 v{t}, v{t}, v{k+1}, v{k}")
            for x, t in zip(accs, ts): a(f"v_mul_f32 v{t}, v{x}, v{t}")
            for x, t in zip(accs, ts): a(f"v_exp_f32 v{t}, v{t}")
            for x, t in zip(accs, ts): a(f"v_fma_f32 v{t}, v{t}, v{k+2}, v{k+2}")
            for x, t in zip(accs, ts): a(f"v_rcp_f32 v{t}, v{t}")
            for x, t in zip(accs, ts): a(f"v_mul_f32 v{x}, v{x}, v{t}")
            o = vO + 4*p
            for i in range(4): a(f"v_cvt_pk_bf16_f32 v{o+i}, v{accs[2*i]}, v{accs[2*i+1]}")
            a(f"buffer_store_dwordx4 v[{o}:{o+3}], v14, s[36:39], s66 offen offset:{1024*p} {SC}", tag="hs")
        if rt < 3: a(f"s_add_u32 s66, s66, {HS}")
    return a

vW = 160; vH = 96
def g2_addr(a):
    a("v_lshlrev_b32 v2, 4, v1")
    for dl in range(1, 5): a(f"v_add_u32 v{2+dl}, {dl*HS}, v2")
    for li in range(4):
        a(f"s_add_u32 s22, s13, {li}")
        a("s_and_b32 s22, s22, 3")
        a(f"s_mul_i32 s22, s22, {HS}")
        a(f"v_add_u32 v{7+li}, s22, v2")
    a("s_and_b32 s46, s45, 3")
    a("s_mul_i32 s46, s46, 7")
    a("s_lshr_b32 s46, s46, 1")
    a("s_mov_b32 s47, s46")
    a("s_mul_i32 s22, s13, 14336")
    a(f"s_mul_i32 s56, s44, {4*HS}")
    a("s_add_u32 s56, s56, s22")
    a(f"s_mul_i32 s57, s45, {5*HS}")
    a("s_add_u32 s57, s57, s22")
    a(f"s_add_u32 s57, s57, {WS_W2P}")
    a("s_cmp_eq_u32 s13, 3")
    a("s_cselect_b32 s64, 12, 14")
def issue_w(a, i):
    b = vW + (i % 4)*20
    a("s_lshl_b32 s23, s47, 10")
    a("s_add_u32 s23, s23, s57")
    a("s_cmp_lt_u32 s47, s64")
    a(f"s_cselect_b32 s23, s23, {OOB}")
    for dl in range(5):
        a(f"buffer_load_dwordx4 v[{b+4*dl}:{b+3+4*dl}], v{2+dl}, s[36:39], s23 offen {SC}", tag=("k", i))
    a("s_add_u32 s47, s47, 1")
    a("s_cmp_eq_u32 s47, 14")
    a("s_cselect_b32 s47, 0, s47")
def issue_h(a, i):
    b = vH + (i % 4)*16
    a("s_lshl_b32 s22, s46, 10")
    a("s_add_u32 s22, s22, s56")
    a("s_cmp_lt_u32 s46, s64")
    a(f"s_cselect_b32 s22, s22, {OOB}")
    for li in range(4):
        a(f"buffer_load_dwordx4 v[{b+4*li}:{b+3+4*li}], v{7+li}, s[36:39], s22 offen {SC}", tag=("k", i))
    a("s_add_u32 s46, s46, 1")
    a("s_cmp_eq_u32 s46, 14")
    a("s_cselect_b32 s46, 0, s46")

def emit_G(a):
    a(f"s_setprio {GPRIO}")
    ln = G_ln1()
    ls = G_loop_setup()
    st = Stream()
    for it in ln.items:
        st.items.append(it)
        if isinstance(it[0], tuple) and it[0] == ("mark", "idle"): st.extend(ls)
    resolve(st.items, a)
    a("s_cmp_ge_u32 s14, 28")
    a("s_cbranch_scc1 GC")
    a("s_lshl_b32 s22, s16, 1")
    a("s_add_u32 s22, s22, s19")
    a("s_cmp_eq_u32 s22, 27")
    a("s_cbranch_scc1 G_SKIP")
    G_loop(a)
    a("s_waitcnt vmcnt(0)")
    a("s_branch G_CHK")
    a.label("G_RETRY")
    for rt in range(4):
        a(f"buffer_load_dwordx2 v[{vGRN+2*rt}:{vGRN+1+2*rt}], v15, s[36:39], s60 offen offset:{128*rt} {SC}")
    a("s_waitcnt vmcnt(0)")
    a.label("G_CHK")
    check_tags(a, [vGRN+1, vGRN+3, vGRN+5, vGRN+7], "G_RETRY")
    st = Stream()
    st.extend(G_gelu())
    stamp(st, 4)
    st("s_lshl_b32 s22, s15, 1")
    st("s_add_u32 s22, s22, s18")
    st("s_lshl_b32 s22, s22, 7")
    st("s_lshl_b32 s23, s16, 1")
    st("s_add_u32 s23, s23, s19")
    st("s_lshl_b32 s23, s23, 2")
    st("s_add_u32 s22, s22, s23")
    st(f"s_add_u32 s68, s22, {FL_H}")
    st.waitall("vm")
    resolve(st.items, a)
    flag_store(a, "s68")
    stamp(a, 5)
    a("s_branch G2")
    a.label("G_SKIP")
    a("v_mov_b32 v2, 32")
    a("ds_add_u32 v254, v2")
    a.label("G2")
    a("s_load_dwordx4 s[8:11], s[0:1], 104")
    g2_addr(a)
    a("s_waitcnt lgkmcnt(0)")
    srd(a, 48, 10, 2048*1280)
    srd(a, 52, 8, 1280)
    a("v_lshlrev_b32 v13, 2, v1")
    a(f"s_mov_b32 s59, {FL_W}")
    poll_global(a, [f"buffer_load_dword v15, v13, s[36:39], s59 offen {SC}"], [15])
    st = Stream()
    for i in range(4): issue_w(st, i)
    for r in range(16, 96): st(f"v_mov_b32 v{r}, 0")
    st("v_min_u32 v13, 26, v1")
    st("v_lshlrev_b32 v13, 2, v13")
    st("s_lshl_b32 s59, s44, 7")
    st(f"s_add_u32 s59, s59, {FL_H}")
    resolve(st.items, a)
    poll_global(a, [f"buffer_load_dword v15, v13, s[36:39], s59 offen {SC}"], [15])
    M1.issue_h = issue_h; M1.issue_w = issue_w
    st = Stream()
    st.extend(M1.G_gemm2_main())
    st("v_min_u32 v15, 19, v1")
    st("v_lshlrev_b32 v15, 4, v15")
    st("s_lshl_b32 s59, s45, 9")
    st(f"s_add_u32 s59, s59, {FL_Y}")
    resolve(st.items, a)
    poll_global(a, [f"buffer_load_dwordx4 v[96:99], v15, s[36:39], s59 offen {SC}"], [96, 97, 98, 99])
    st = Stream()
    stamp(st, 8)
    st.extend(M1.G_final())
    if Cfg.PROF: st.waitall("vm")
    stamp(st, 9)
    resolve(st.items, a)
    prof_flush(a, 10, 36, 12)
    if DBGOUT:
        a("s_cmp_lg_u32 s2, 9")
        a("s_cbranch_scc1 DBG_E")
        a("s_cmp_lg_u32 s12, 0")
        a("s_cbranch_scc1 DBG_E")
        a("s_load_dwordx2 s[8:9], s[0:1], 120")
        a("s_waitcnt lgkmcnt(0)")
        srd(a, 40, 8, 256)
        a("v_mov_b32 v1, 0")
        a("s_mov_b64 exec, 1")
        for i in range(1, 10):
            a(f"s_sub_u32 s22, s{80+2*i}, s80")
            a("v_mov_b32 v2, s22")
            a(f"buffer_store_dword v2, v1, s[40:43], 0 offen offset:{4*i}")
        a.label("DBG_E")
    a("s_endpgm")
    G_tails(a)
    a.label("GC")
    a("s_setprio 0")
    a("s_load_dwordx2 s[60:61], s[0:1], 8")
    a("s_sub_u32 s59, s14, 28")
    a("s_lshl_b32 s59, s59, 2")
    a("s_add_u32 s59, s59, s13")
    a("s_add_u32 s59, s59, 64")
    a("s_mul_i32 s46, s13, 8704")
    a("s_add_u32 s46, s46, 73728")
    a("s_waitcnt lgkmcnt(0)")
    a("s_branch KGEN")

def ln2(a):
    a("v_and_b32 v2, 3, v1")
    a("v_lshlrev_b32 v2, 8, v2")
    a(f"v_add_u32 v2, {L_SY}, v2")
    a("v_bfe_u32 v6, v1, 2, 2")
    a("v_mul_u32_u24 v3, 1344, v6")
    a("v_lshrrev_b32 v6, 4, v1")
    a("v_lshl_add_u32 v3, v6, 5, v3")
    a("v_and_b32 v6, 3, v1")
    a("v_lshl_add_u32 v3, v6, 3, v3")
    a(f"v_add_u32 v3, {L_LN}, v3")
    a("v_lshlrev_b32 v4, 4, v1")
    a("s_mul_i32 s22, s101, 10240")
    a(f"s_add_u32 s22, s22, {WS_XNT}")
    wait_lds(a, 2, 5, 1)
    st = Stream()
    for c in range(10):
        b = 8+4*c
        st(f"ds_read_b64_tr_b16 v[{b}:{b+1}], v3 offset:{c*128}", tag=("l2", c))
        st(f"ds_read_b64_tr_b16 v[{b+2}:{b+3}], v3 offset:{c*128+4*1344}", tag=("l2", c))
    for c in range(10):
        b = 8+4*c
        st.wait("lg", ("l2", c))
        st(f"buffer_store_dwordx4 v[{b}:{b+3}], v4, s[36:39], s22 offen offset:{1024*(c%4)} {SC}")
        if c % 4 == 3: st("s_add_u32 s22, s22, 4096")
    resolve(st.items, a)

KSPLIT1 = 120; KSPLIT2 = 420
def emit_K(a):
    a("s_lshl_b32 s59, s14, 1")
    a("s_add_u32 s59, s59, s13")
    a("s_mul_i32 s46, s13, 8704")
    a(f"s_add_u32 s46, s46, {L_KG}")
    if CPREF:
        a("s_cmp_lt_u32 s14, 28")
        a("s_cbranch_scc1 PFE")
        a("s_getpc_b64 s[10:11]")
        a.label("PCREF")
        a("s_sub_u32 s10, s10, PCREF-KSTART")
        a("s_subb_u32 s11, s11, 0")
        a("v_lshlrev_b32 v5, 7, v1")
        a("s_mul_i32 s22, s13, 24576")
        a("v_add_u32 v5, s22, v5")
        for k in range(3):
            a("v_min_u32 v2, M_END-KSTART, v5")
            a("v_mov_b32 v3, s11")
            a("v_add_co_u32 v2, vcc, s10, v2")
            a("v_addc_co_u32 v3, vcc, 0, v3, vcc")
            a("global_load_dword v4, v[2:3], off")
            a("v_add_u32 v5, 8192, v5")
        a.label("PFE")
    ptr_ready(a)
    ptr_rest(a)
    tag_ready(a)
    a("s_barrier")
    a.label("KGEN")
    a("s_mul_i32 s47, s3, 80")
    a("s_add_u32 s47, s47, s59")
    ld, kg, vO = M1.kgen()
    st = Stream(); st.extend(ld); st.items.extend(kg.items[:KSPLIT1]); st.waitall("lg")
    resolve(st.items, a)
    a("s_cmp_lg_u32 s12, 4")
    a("s_cbranch_scc1 K_A")
    ln2(a)
    a.label("K_A")
    if KDELAY:
        a("s_cmp_ge_u32 s14, 28")
        a("s_cbranch_scc1 K_A2")
        a("s_cmp_lg_u32 s12, 4")
        a("s_cbranch_scc1 K_A3")
        a("s_waitcnt vmcnt(0)")
        a("s_lshl_b32 s22, s2, 2")
        a(f"s_add_u32 s22, s22, {FL_X}")
        flag_store(a, "s22", 2)
        a.label("K_A3")
        a("v_and_b32 v2, 3, v1")
        a("v_lshlrev_b32 v2, 8, v2")
        a(f"v_add_u32 v2, {L_SY}, v2")
        a.label("K_A4")
        a("s_sleep 8")
        a("ds_read_b32 v5, v2")
        a("s_waitcnt lgkmcnt(0)")
        a("v_cmp_gt_u32 vcc, 11, v5")
        spin_tail(a, "K_A4")
        a.label("K_A2")
    st = Stream(); st.items.extend(kg.items[KSPLIT1:KSPLIT2]); st.waitall("lg")
    resolve(st.items, a)
    a("s_cmp_lg_u32 s12, 4")
    a("s_cbranch_scc1 K_B")
    a("s_waitcnt vmcnt(0)")
    a("s_lshl_b32 s22, s2, 2")
    a(f"s_add_u32 s22, s22, {FL_X}")
    flag_store(a, "s22", 2)
    a.label("K_B")
    st = Stream(); st.items.extend(kg.items[KSPLIT2:])
    stamp(st, 1)
    resolve(st.items, a)
    a("s_cmp_ge_u32 s12, 4")
    a("s_cbranch_scc1 CONV")
    a("v_lshlrev_b32 v2, 4, v1")
    a("s_lshl_b32 s23, s3, 4")
    a("s_add_u32 s23, s23, s59")
    a("s_sub_u32 s23, s23, 64")
    a("s_lshl_b32 s22, s23, 12")
    a(f"s_add_u32 s22, s22, {WS_KR}")
    for it in range(4):
        a(f"buffer_store_dwordx4 v[{vO+4*it}:{vO+3+4*it}], v2, s[36:39], s22 offen offset:{it*1024} {SC}")
    a("s_lshl_b32 s22, s23, 2")
    a(f"s_add_u32 s22, s22, {FL_K}")
    a("s_waitcnt vmcnt(0) lgkmcnt(0)")
    flag_store(a, "s22", 2)
    a("s_setprio 3")
    a("s_branch G_SKIP")
    a.label("CONV")
    a("v_and_b32 v4, 7, v1")
    a("v_lshlrev_b32 v5, 8, v4")
    a(f"v_add_u32 v5, {L_SY}, v5")
    a("v_cmp_gt_u32 vcc, 4, v4")
    a("v_cndmask_b32 v6, 0, 11, vcc")
    a("v_cmp_lt_u32 vcc, 5, v4")
    a("v_cndmask_b32 v6, v6, 10, vcc")
    L = newlabel("RF")
    a(L + ":")
    a("s_sleep 1")
    a("ds_read_b32 v7, v5")
    a("s_waitcnt lgkmcnt(0)")
    a("v_cmp_gt_u32 vcc, v6, v7")
    spin_tail(a, L)
    a("v_lshlrev_b32 v15, 4, v1")
    a(f"s_mov_b32 s22, {FL_X}")
    poll_global(a, [f"buffer_load_dwordx4 v[44:47], v15, s[36:39], s22 offen {SC}"], [44, 45, 46, 47])
    a("s_cmp_lg_u32 s2, 0")
    a("s_cbranch_scc1 C_NOR")
    a("s_cmp_lg_u32 s12, 4")
    a("s_cbranch_scc1 C_NOR")
    a(f"s_mov_b32 s22, {FL_R}")
    flag_store(a, "s22", 2)
    a("s_waitcnt vmcnt(0)")
    a.label("C_NOR")
    stamp(a, 6)
    st = Stream()
    st.extend(conv.conv_uload(SC=SC, vU=208))
    st(f"s_mul_i32 s46, s13, {CONV_LDS}")
    st.extend(conv.conv_main(SC=SC, vK=vO, vU=208))
    stamp(st, 4)
    st("s_lshl_b32 s22, s3, 9")
    st("s_lshl_b32 s23, s59, 2")
    st("s_add_u32 s22, s22, s23")
    st(f"s_add_u32 s22, s22, {FL_Y}")
    st.waitall("vm")
    resolve(st.items, a)
    flag_store(a, "s22", 5)
    stamp(a, 5)
    prof_flush(a, 7, 36, 12)
    a("s_endpgm")
    return vO

def emit_L(a, vO):
    a("s_cmp_ge_u32 s14, 28")
    a("s_cbranch_scc1 LC")
    a("s_cmp_eq_u32 s12, 7")
    a("s_cbranch_scc1 L_W1")
    a("v_lshrrev_b32 v6, 3, v1")
    a("v_and_b32 v7, 7, v1")
    a("v_lshrrev_b32 v8, 4, v1")
    a("v_xor_b32 v7, v7, v8")
    a("v_mul_u32_u24 v2, 1280, v6")
    a("v_lshl_add_u32 v2, v7, 4, v2")
    a("v_xor_b32 v3, 64, v2")
    a("v_mov_b32 v4, v2")
    a("v_mov_b32 v5, v3")
    a("s_mul_i32 s18, s15, 163840")
    a("s_mov_b32 s19, 0")
    a("s_mov_b32 s20, 10240")
    a("s_mov_b32 s21, 128")
    a("s_waitcnt lgkmcnt(0)")
    srd(a, 28, 4, 2048*1280)
    a("s_branch L_GO")
    a.label("L_W1")
    a("v_lshrrev_b32 v6, 4, v1")
    a("v_bfe_u32 v7, v1, 1, 3")
    a("v_xor_b32 v7, v7, v6")
    a("v_and_b32 v8, 1, v1")
    a("v_lshl_add_u32 v7, v7, 1, v8")
    a("v_mul_u32_u24 v2, 3456, v6")
    a("v_lshl_add_u32 v2, v7, 4, v2")
    a("v_xor_b32 v9, 8, v7")
    a("v_mul_u32_u24 v4, 3456, v6")
    a("v_lshl_add_u32 v4, v9, 4, v4")
    a("s_cmp_eq_u32 s16, 13")
    a("s_cselect_b32 s22, 8, 16")
    a(f"v_mov_b32 v10, {OOB}")
    a("v_cmp_gt_u32 vcc, s22, v7")
    a("v_cndmask_b32 v2, v10, v2, vcc")
    a("v_cmp_gt_u32 vcc, s22, v9")
    a("v_cndmask_b32 v4, v10, v4, vcc")
    a("v_mov_b32 v3, v2")
    a("v_mov_b32 v5, v4")
    a("s_lshl_b32 s18, s16, 8")
    a("s_mov_b32 s19, 16384")
    a(f"s_mov_b32 s20, {4*3456}")
    a(f"s_mov_b32 s21, {64*3456}")
    a("s_waitcnt lgkmcnt(0)")
    srd(a, 28, 48, 640*3456)
    a.label("L_GO")
    ptr_rest(a)
    a(f"s_setprio {LPRIO}")
    def acc(k):
        if LDBG == 2:
            a("s_memtime s[42:43]"); a("s_waitcnt lgkmcnt(0)")
            a("s_mov_b32 m0, s40")
            a(f"v_writelane_b32 v{100+k}, s42, m0")
    a("v_and_b32 v11, 3, v1")
    a("v_lshlrev_b32 v11, 8, v11")
    a(f"v_add_u32 v11, {L_SY}, v11")
    a("v_mov_b32 v12, 0")
    a("s_mov_b32 s40, 0")
    a.label("L_LOOP")
    a("s_mov_b32 s64, 2")
    a("s_cmp_lt_u32 s40, 4")
    a("s_cbranch_scc1 L_ISS")
    a("s_sub_u32 s41, s40, 2")
    a("s_waitcnt lgkmcnt(0)")
    a("v_cmp_gt_u32 vcc, s41, v12")
    a("s_cbranch_vccz L_ISS")
    a("s_waitcnt vmcnt(16)")
    bump(a)
    a("s_mov_b32 s64, 99")
    wait_lds(a, 11, 12, "s41")
    a.label("L_ISS")
    acc(1)
    a("s_mul_i32 s22, s17, s21")
    a("s_add_u32 s22, s22, s18")
    for j in range(16):
        pi = (j >> 3)*8 + (j & 1)*4 + ((j >> 1) & 3)
        if j == LJ0:
            sk = newlabel("LS")
            a("s_cmp_lt_u32 s40, s64")
            a(f"s_cbranch_scc1 {sk}")
            a(f"s_waitcnt vmcnt({16+LJ0})")
            bump(a)
            acc(0)
            a(sk + ":")
        if j == 13: a("ds_read_b32 v12, v11")
        a(f"s_add_u32 m0, s19, {pi*1024}")
        if j > 0: a("s_add_u32 s22, s22, s20")
        else: a("s_nop 0")
        a(f"buffer_load_dwordx4 v{2 + (j & 3)}, s[28:31], s22 offen lds")
    a("s_add_u32 s17, s17, 1")
    a("s_cmp_eq_u32 s17, 10")
    a("s_cselect_b32 s17, 0, s17")
    a(f"s_add_u32 s19, s19, {SLOT}")
    a("s_and_b32 s19, s19, 0x1ffff")
    acc(2)
    a("s_cmp_lg_u32 s40, 0")
    a("s_cbranch_scc1 L_NB")
    tag_ready(a)
    a("s_barrier")
    a.label("L_NB")
    a("s_add_u32 s40, s40, 1")
    a("s_cmp_lt_u32 s40, 10")
    a("s_cbranch_scc1 L_LOOP")
    a("s_waitcnt vmcnt(16)")
    bump(a)
    a("s_waitcnt vmcnt(0)")
    bump(a)
    stamp(a, 1)
    if LDBG == 2:
        a("s_lshl_b32 s22, s2, 1")
        a("s_and_b32 s23, s12, 1")
        a("s_add_u32 s22, s22, s23")
        a("s_lshl_b32 s22, s22, 8")
        a(f"s_add_u32 s22, s22, {WS_PROF + (1<<18)}")
        a("v_lshlrev_b32 v2, 2, v1")
        a("s_mov_b64 exec, 0xffff")
        for k in range(3): a(f"buffer_store_dword v{100+k}, v2, s[36:39], s22 offen offset:{64*k}")
        a("s_mov_b64 exec, -1")
    a("s_branch L_END")
    return
def emit_L2(a, vO):
    a.label("LC")
    ptr_ready(a)
    ptr_rest(a)
    tag_ready(a)
    a("s_barrier")
    srd(a, 40, 52, 1728*1280)
    a("s_lshl_b32 s18, s3, 2")
    a("s_add_u32 s18, s18, s14")
    a("s_sub_u32 s18, s18, 28")
    a("s_lshl_b32 s18, s18, 1")
    a("s_and_b32 s22, s12, 1")
    a("s_add_u32 s18, s18, s22")
    a("s_mul_i32 s19, s22, 36864")
    a("v_lshrrev_b32 v6, 3, v1")
    a("v_and_b32 v7, 7, v1")
    a("v_mul_u32_u24 v2, 1280, v6")
    a("v_lshl_add_u32 v2, v7, 4, v2")
    st = Stream()
    for i in range(9):
        st(f"s_add_u32 s20, s18, {64*i}")
        st("s_mul_i32 s21, s20, 6554")
        st("s_lshr_b32 s21, s21, 16")
        st("s_mul_i32 s22, s21, 10")
        st("s_sub_u32 s22, s20, s22")
        st(f"s_mul_i32 s{64+i}, s22, {4*HS}")
        st("s_lshl_b32 s23, s21, 10")
        st(f"s_add_u32 s{64+i}, s{64+i}, s23")
        st(f"s_add_u32 s{64+i}, s{64+i}, {WS_W2P}")
        st("s_lshl_b32 s22, s22, 7")
        st("s_mul_i32 s23, s21, 40960")
        st("s_add_u32 s22, s22, s23")
        if i == 8:
            st("s_cmp_lt_u32 s20, 540")
            st(f"s_cselect_b32 s{64+i}, s{64+i}, {OOB}")
        for k in range(4):
            st(f"s_add_u32 m0, s19, {i*4096 + k*1024}")
            st("s_nop 0")
            st("buffer_load_dwordx4 v2, s[40:43], s22 offen lds", tag=("wl", i))
            if k < 3: st("s_add_u32 s22, s22, 10240")
    st("v_lshrrev_b32 v6, 2, v1")
    st("v_lshlrev_b32 v3, 7, v6")
    st("v_and_b32 v6, 3, v1")
    st("v_lshl_add_u32 v3, v6, 3, v3")
    st("v_add_u32 v3, s19, v3")
    st("v_lshlrev_b32 v4, 4, v1")
    for dl in range(1, 4): st(f"v_add_u32 v{4+dl}, {dl*HS}, v4")
    for i in range(9):
        st.wait("vm", ("wl", i))
        b = 16 + (i % 4)*16
        for dl in range(4):
            st(f"ds_read_b64_tr_b16 v[{b+4*dl}:{b+4*dl+1}], v3 offset:{i*4096 + 32*dl}", tag=("wr", i, dl))
            st(f"ds_read_b64_tr_b16 v[{b+4*dl+2}:{b+4*dl+3}], v3 offset:{i*4096 + 32*dl + 2048}", tag=("wr", i, dl))
        for dl in range(4):
            st.wait("lg", ("wr", i, dl))
            st(f"buffer_store_dwordx4 v[{b+4*dl}:{b+4*dl+3}], v{4+dl}, s[36:39], s{64+i} offen {SC}", tag=("ws", i))
        if i >= 3: pass
    st("s_lshl_b32 s22, s18, 2")
    st(f"s_add_u32 s22, s22, {FL_W}")
    st("v_mov_b32 v2, 32")
    st("ds_add_u32 v254, v2")
    st.waitall("vm")
    resolve(st.items, a)
    flag_store(a, "s22", 2)
    stamp(a, 1)
    a("s_branch L_END2")
    a.label("L_END")
    a.label("L_END2")
    a("s_cmp_lg_u32 s12, 6")
    a("s_cbranch_scc1 L_EXIT")
    a("s_cmp_lt_u32 s14, 16")
    a("s_cbranch_scc1 L_EXIT")
    a("s_add_u32 s59, s14, 48")
    a("s_mul_i32 s47, s3, 80")
    a("s_add_u32 s47, s47, s59")
    a("s_lshl_b32 s23, s3, 4")
    a("s_add_u32 s23, s23, s14")
    a("s_sub_u32 s23, s23, 16")
    a("s_lshl_b32 s22, s23, 2")
    a(f"s_add_u32 s22, s22, {FL_K}")
    a("v_mov_b32 v2, 0")
    a("s_load_dwordx2 s[74:75], s[0:1], 64")
    poll_global(a, [f"buffer_load_dword v3, v2, s[36:39], s22 offen {SC}"], [3])
    a("v_lshlrev_b32 v2, 4, v1")
    a("s_lshl_b32 s22, s23, 12")
    a(f"s_add_u32 s22, s22, {WS_KR}")
    for it in range(4):
        a(f"buffer_load_dwordx4 v[{vO+4*it}:{vO+3+4*it}], v2, s[36:39], s22 offen offset:{it*1024} {SC}")
    a("s_lshl_b32 s22, s47, 1")
    a("v_mov_b32 v3, s22")
    a("s_waitcnt lgkmcnt(0)")
    a("global_load_ushort v4, v3, s[74:75]")
    a("s_waitcnt vmcnt(0)")
    a("v_lshlrev_b32 v4, 16, v4")
    a("v_readfirstlane_b32 s58, v4")
    a("s_branch CONV")
    a.label("L_EXIT")
    prof_flush(a, 5, 36, 12)
    a("s_endpgm")

def mega():
    a = Asm()
    a.label("KSTART")
    setup(a)
    a("s_cmp_lt_u32 s12, 4")
    a("s_cbranch_scc1 M_G")
    a("s_cmp_lt_u32 s12, 6")
    a("s_cbranch_scc1 M_K")
    emit_L(a, 0)
    a.label("M_G")
    emit_G(a)
    a.label("M_K")
    vO = emit_K(a)
    emit_L2(a, vO)
    a.label("M_END")
    a("s_endpgm")
    return a.finish(True)

if __name__ == "__main__":
    Cfg.PROF = "--noprof" not in sys.argv
    Cfg.CYC = "--cyc" in sys.argv
    for x in sys.argv[2:]:
        if "=" in x:
            k, v = x.split("="); globals()[k] = int(v)
    name = "parallel_sum__ssm_conv_s4__dense_activation_gelu__prompt_kernel"
    body = mega()
    code, kd = kernel_text(name, body, 256)
    hdr = f"; @launch grid=(256,1,1) block=(512,1,1) lds={LDS_TOTAL}\n.amdgcn_target \"amdgcn-amd-amdhsa--gfx950\"\n"
    open(sys.argv[1], "w").write(hdr + code + kd)
```

```python
import sys, math
from common import *
from asmlib import Stream, resolve, interleave
import mega as M1
import mega2 as M2
from mega2 import (SC, NST, SLOT, HS, WS_FL, FL_R, FL_X, FL_W, FL_H, FL_Y, OOB, newlabel, spin_tail, check_tags, poll_global,
                   flag_store, ptr_ready, ptr_rest, tag_ready, vACC, vCS, vFR, vONE, vGRN, vB1, issue_w, issue_h)
import conv, kgen2
CONV_LDS = conv.CONV_LDS
L_LN = 98304
L_W = 113664
L_WF = 163328
WS_STATS2 = WS_STATS + 65536
LDS_TOTAL = 163840
GRS = 12; GPRIO = 2; LPRIO = 3; KPRE = 40; KSL = 64; CPREF = 1; GDBG = 0; DBGOUT = 0; NOW2 = 0; NOXB = 0; FL_T = WS_FL + 3072; LOCAL = 1; FB = 4; WTOUCH = 1; WROT = 1; MAP = 1; XROT = 1; NOPOLL = 0; PREWARM = 0; KSLEEP = 4
M2.L_LN = L_LN

def setup(a):
    if MAP == 0:
        M2.L_SY = 0
        b = Asm(); M2.setup(b)
        for l in b.lines:
            if "v254" in l or "v255" in l: continue
            a(l)
        return
    a("s_cmp_ge_u32 s2, 256")
    a("s_cbranch_scc1 M_END")
    stamp(a, 0)
    a("s_load_dwordx2 s[6:7], s[0:1], 128")
    a("s_load_dwordx2 s[4:5], s[0:1], 0")
    a("s_load_dwordx8 s[48:55], s[0:1], 80")
    a("s_load_dwordx16 s[60:75], s[0:1], 8")
    a("s_mov_b32 s79, 0")
    a("v_and_b32 v1, 63, v0")
    a("v_lshrrev_b32 v6, 6, v0")
    a("v_readfirstlane_b32 s12, v6")
    a("s_and_b32 s3, s2, 7")
    a("s_lshr_b32 s14, s2, 3")
    a("s_lshl_b32 s101, s3, 5")
    a("s_add_u32 s101, s101, s14")
    a("s_and_b32 s17, s14, 1")
    a("s_lshl_b32 s15, s3, 1")
    a("s_add_u32 s15, s15, s17")
    a("s_lshr_b32 s16, s14, 1")
    a("s_mul_i32 s17, s17, 5")
    a("s_add_u32 s17, s17, s16")
    a(f"s_mul_i32 s22, s3, {XROT}")
    a("s_add_u32 s17, s17, s22")
    a("s_mul_i32 s22, s17, 6554")
    a("s_lshr_b32 s22, s22, 16")
    a("s_mul_i32 s22, s22, 10")
    a("s_sub_u32 s17, s17, s22")
    a("s_and_b32 s22, s14, 3")
    a("s_lshl_b32 s44, s3, 2")
    a("s_add_u32 s44, s44, s22")
    a("s_lshr_b32 s45, s14, 2")
    a("s_and_b32 s13, s12, 3")

def G_loop(a):
    def reads(s):
        t, ks2 = divmod(s, 2)
        off = ((t % 3) % 2)*SLOT
        b = vFR + (s % 2)*32
        L = []
        for c in range(4):
            L.append(f"ds_read_b64_tr_b16 v[{b+4*c}:{b+4*c+1}], v{2+c} offset:{off + ks2*8192}")
            L.append(f"ds_read_b64_tr_b16 v[{b+4*c+2}:{b+4*c+3}], v{2+c} offset:{off + ks2*8192 + 4096}")
            L.append(f"ds_read_b128 v[{b+16+4*c}:{b+16+4*c+3}], v{8+ks2} offset:{off + c*1024}")
        return L
    stamp(a, 2)
    for x in reads(0): a(x)
    a("v_and_b32 v13, 31, v1")
    a("v_lshlrev_b32 v13, 2, v13")
    a("s_lshl_b32 s61, s3, 7")
    a(f"s_add_u32 s61, s61, {FL_T}")
    a("s_add_u32 s62, s60, 65536")
    for s in range(20):
        t, ks2 = divmod(s, 2)
        b = vFR + (s % 2)*32
        a("s_waitcnt lgkmcnt(0)")
        if GDBG:
            if s > 0:
                a(f"v_writelane_b32 v180, s76, {s-1}")
                a(f"v_writelane_b32 v181, s72, {s-1}")
            a("s_memtime s[76:77]")
        pre = []
        if ks2 == 1:
            a("s_barrier")
            if (t+1) % 3 != 1 and t+1 < NST:
                pre = [f"v_xor_b32 v{r}, 0x10000, v{r}" for r in (2, 8, 3, 4, 5, 9)]
        if GDBG: a("s_memtime s[72:73]")
        rr = reads(s+1) if s+1 < 20 else []
        if s == GRS:
            for rt in range(4):
                rr.append(f"buffer_load_dwordx2 v[{vGRN+2*rt}:{vGRN+1+2*rt}], v15, s[36:39], s62 offen offset:{128*rt} {SC}")
            rr.append(f"buffer_load_dword v176, v13, s[36:39], s61 offen {SC}")
        mm = []
        for c in range(4):
            for rt in range(4):
                acc = vACC + (rt*4+c)*4
                mm.append(f"v_mfma_f32_16x16x32_bf16 v[{acc}:{acc+3}], v[{b+4*c}:{b+4*c+3}], v[{b+16+4*rt}:{b+16+4*rt+3}], v[{acc}:{acc+3}]")
            mm.append(f"v_mfma_f32_16x16x32_bf16 v[{vCS+4*c}:{vCS+4*c+3}], v[{vONE}:{vONE+3}], v[{b+4*c}:{b+4*c+3}], v[{vCS+4*c}:{vCS+4*c+3}]")
        fill = [pre[i:i+2] for i in range(0, len(pre), 2)] + [[x] for x in rr]
        for i, x in enumerate(mm):
            a(x)
            if i < len(fill):
                for y in fill[i]: a(y)
        assert len(fill) <= len(mm)
    stamp(a, 3)
    if GDBG:
        a("s_lshl_b32 s22, s2, 2")
        a("s_add_u32 s22, s22, s13")
        a("s_lshl_b32 s22, s22, 8")
        a(f"s_add_u32 s22, s22, {WS_PROF + (2<<18)}")
        a("v_lshlrev_b32 v182, 2, v1")
        a("s_mov_b32 exec_hi, 0")
        a("buffer_store_dword v180, v182, s[36:39], s22 offen")
        a("buffer_store_dword v181, v182, s[36:39], s22 offen offset:128")
        a("s_mov_b64 exec, -1")

def G_gelu():
    a = Stream()
    vA = 96
    vB = 104
    vK = 112
    vT = 124
    vO = 132
    a("s_mov_b32 s65, 0xffff0000")
    a("v_cmp_gt_u32 s[70:71], 16, v1")
    a("s_mov_b32 s66, 0x01000100")
    for c in range(4):
        cs = vCS+4*c
        a(f"v_cvt_pk_bf16_f32 v{cs+1}, v{cs}, v{cs}")
        a(f"v_and_b32 v{cs+1}, s65, v{cs+1}")
        a(f"v_sub_f32 v{cs+1}, v{cs}, v{cs+1}")
        a(f"v_cvt_pk_bf16_f32 v{cs+2}, v{cs}, v{cs+1}")
        a(f"v_cndmask_b32 v{vA+2*c}, 0, v{cs+2}, s[70:71]")
        a(f"v_cndmask_b32 v{vA+2*c+1}, 0, v{vB1+c}, s[70:71]")
    for rt in range(4):
        g = vGRN+2*rt
        a(f"v_perm_b32 v{vB+2*rt}, v{g}, v{g}, s66")
        a(f"v_xor_b32 v{vB+2*rt}, 0x80008000, v{vB+2*rt}")
        a(f"v_lshrrev_b32 v{vB+2*rt+1}, 16, v{g}")
    for rt in range(4):
        for c in range(4):
            acc = vACC + (rt*4+c)*4
            a(f"v_mfma_f32_16x16x16_bf16 v[{acc}:{acc+3}], v[{vA+2*c}:{vA+2*c+1}], v[{vB+2*rt}:{vB+2*rt+1}], v[{acc}:{acc+3}]")
        g = vGRN+2*rt; k = vK+3*rt
        a(f"v_and_b32 v{k+2}, s65, v{g}")
        a(f"v_rcp_f32 v{k}, v{k+2}")
        a(f"v_mul_f32 v{k+1}, v{k}, v{k}")
        a(f"v_mul_f32 v{k+1}, v{k+1}, v{k}")
        a(f"v_mul_f32 v{k+1}, {f32bits(GELU_K2)}, v{k+1}")
        a(f"v_mul_f32 v{k}, {f32bits(GELU_K1)}, v{k}")
    a("s_lshl_b32 s66, s15, 3")
    a("s_lshl_b32 s67, s18, 2")
    a("s_add_u32 s66, s66, s67")
    a(f"s_mul_i32 s66, s66, {HS}")
    a("s_lshl_b32 s67, s16, 12")
    a("s_add_u32 s66, s66, s67")
    a("s_lshl_b32 s67, s19, 11")
    a("s_add_u32 s66, s66, s67")
    a("s_cmp_lg_u32 s69, 0")
    a(f"s_cselect_b32 s67, s66, {OOB}")
    a(f"s_cselect_b32 s66, {OOB}, s66")
    for rt in range(4):
        k = vK+3*rt
        for p in range(2):
            accs = [vACC + (rt*4+2*p)*4 + r for r in range(8)]
            ts = [vT + r for r in range(8)]
            for x, t in zip(accs, ts): a(f"v_mul_f32 v{t}, v{x}, v{x}")
            for x, t in zip(accs, ts): a(f"v_fma_f32 v{t}, v{t}, v{k+1}, v{k}")
            for x, t in zip(accs, ts): a(f"v_mul_f32 v{t}, v{x}, v{t}")
            for x, t in zip(accs, ts): a(f"v_exp_f32 v{t}, v{t}")
            for x, t in zip(accs, ts): a(f"v_fma_f32 v{t}, v{t}, v{k+2}, v{k+2}")
            for x, t in zip(accs, ts): a(f"v_rcp_f32 v{t}, v{t}")
            for x, t in zip(accs, ts): a(f"v_mul_f32 v{x}, v{x}, v{t}")
            o = vO + 4*p
            for i in range(4): a(f"v_cvt_pk_bf16_f32 v{o+i}, v{accs[2*i]}, v{accs[2*i+1]}")
            a(f"buffer_store_dwordx4 v[{o}:{o+3}], v14, s[36:39], s66 offen offset:{1024*p}", tag="hs")
            a(f"buffer_store_dwordx4 v[{o}:{o+3}], v14, s[36:39], s67 offen offset:{1024*p} {SC}", tag="hs")
        if rt < 3: a(f"s_add_u32 s66, s66, {HS}"); a(f"s_add_u32 s67, s67, {HS}")
    return a


def g2_addr(a):
    a("v_lshlrev_b32 v2, 4, v1")
    for dl in range(1, 5): a(f"v_add_u32 v{2+dl}, {dl*HS}, v2")
    for li in range(4):
        a(f"s_add_u32 s22, s13, {li}")
        a("s_and_b32 s22, s22, 3")
        a(f"s_mul_i32 s22, s22, {HS}")
        a(f"v_add_u32 v{7+li}, s22, v2")
    a("s_and_b32 s46, s44, 3")
    a("s_mul_i32 s46, s46, 7")
    a(f"s_mul_i32 s22, s3, {WROT}")
    a("s_add_u32 s46, s46, s22")
    a("s_lshr_b32 s46, s46, 1")
    a("s_mul_i32 s22, s46, 4682")
    a("s_lshr_b32 s22, s22, 16")
    a("s_mul_i32 s22, s22, 14")
    a("s_sub_u32 s46, s46, s22")
    a("s_mov_b32 s47, s46")
    a("s_mul_i32 s22, s13, 14336")
    a(f"s_mul_i32 s56, s44, {4*HS}")
    a("s_add_u32 s56, s56, s22")
    a(f"s_mul_i32 s57, s45, {5*HS}")
    a("s_add_u32 s57, s57, s22")
    a(f"s_add_u32 s57, s57, {WS_W2P}")
    a("s_cmp_eq_u32 s13, 3")
    a("s_cselect_b32 s64, 12, 14")

def barrier_loop(a, n):
    L = newlabel("BL")
    a(f"s_mov_b32 s22, {n}")
    a(L + ":")
    a("s_barrier")
    a("s_sub_u32 s22, s22, 1")
    a("s_cmp_lg_u32 s22, 0")
    a(f"s_cbranch_scc1 {L}")

def w2_piece():
    ld = Stream(); st = Stream()
    srd(ld, 40, 52, 1728*1280)
    ld("s_lshl_b32 s18, s3, 2")
    ld("s_add_u32 s18, s18, s14")
    ld("s_sub_u32 s18, s18, 28")
    ld("s_lshl_b32 s18, s18, 2")
    ld("s_add_u32 s18, s18, s13")
    ld("s_mul_i32 s19, s13, 20480")
    ld("v_lshrrev_b32 v8, 3, v1")
    ld("v_and_b32 v9, 7, v1")
    ld("v_mul_u32_u24 v8, 1280, v8")
    ld("v_lshl_add_u32 v8, v9, 4, v8")
    NB = 5
    for i in range(NB):
        ld(f"s_add_u32 s20, s18, {128*i}")
        ld("s_mul_i32 s21, s20, 6554")
        ld("s_lshr_b32 s21, s21, 16")
        ld("s_mul_i32 s22, s21, 10")
        ld("s_sub_u32 s22, s20, s22")
        ld(f"s_mul_i32 s{64+i}, s22, {4*HS}")
        ld("s_lshl_b32 s23, s21, 10")
        ld(f"s_add_u32 s{64+i}, s{64+i}, s23")
        ld(f"s_add_u32 s{64+i}, s{64+i}, {WS_W2P}")
        ld("s_lshl_b32 s22, s22, 7")
        ld("s_mul_i32 s23, s21, 40960")
        ld("s_add_u32 s22, s22, s23")
        if i == NB-1:
            ld("s_cmp_lt_u32 s20, 540")
            ld(f"s_cselect_b32 s{64+i}, s{64+i}, {OOB}")
        for k in range(4):
            ld(f"s_add_u32 m0, s19, {i*4096 + k*1024}")
            ld("s_nop 0")
            ld("buffer_load_dwordx4 v8, s[40:43], s22 offen lds", tag=("wl", i))
            if k < 3: ld("s_add_u32 s22, s22, 10240")
    ld("v_lshrrev_b32 v9, 2, v1")
    ld("v_lshlrev_b32 v10, 7, v9")
    ld("v_and_b32 v9, 3, v1")
    ld("v_lshl_add_u32 v10, v9, 3, v10")
    ld("v_add_u32 v10, s19, v10")
    ld("v_lshlrev_b32 v12, 4, v1")
    for dl in range(1, 4): ld(f"v_add_u32 v{12+dl}, {dl*HS}, v12")
    for i in range(NB):
        st.wait("vm", ("wl", i))
        b = 16 + i*16
        for dl in range(4):
            st(f"ds_read_b64_tr_b16 v[{b+4*dl}:{b+4*dl+1}], v10 offset:{i*4096 + 32*dl}", tag=("wr", i, dl))
            st(f"ds_read_b64_tr_b16 v[{b+4*dl+2}:{b+4*dl+3}], v10 offset:{i*4096 + 32*dl + 2048}", tag=("wr", i, dl))
        for dl in range(4):
            st.wait("lg", ("wr", i, dl))
            st(f"buffer_store_dwordx4 v[{b+4*dl}:{b+4*dl+3}], v{12+dl}, s[36:39], s{64+i} offen {SC}", tag=("ws", i))
    return ld, st

def arrive(a, srdc, soff, count, flag_soff, v0, top=None, part=3):
    L = newlabel("AR")
    if part & 1:
        a(f"v_mov_b32 v{v0}, 1")
        a(f"v_mov_b32 v{v0+1}, 0")
        a("s_mov_b64 exec, 1")
        a(f"buffer_atomic_add v{v0}, v{v0+1}, s[{srdc}:{srdc+3}], {soff} offen sc0 sc1")
    if part == 1:
        a("s_mov_b64 exec, -1"); return
    a("s_mov_b64 exec, 1")
    a("s_waitcnt vmcnt(0)")
    a(f"v_cmp_ne_u32 vcc, {count-1}, v{v0}")
    a(f"s_cbranch_vccnz {L}")
    if top:
        a(f"v_mov_b32 v{v0}, 1")
        a(f"buffer_atomic_add v{v0}, v{v0+1}, s[{srdc}:{srdc+3}], {top[0]} offen sc0 sc1")
        a("s_waitcnt vmcnt(0)")
        a(f"v_cmp_ne_u32 vcc, {top[1]-1}, v{v0}")
        a(f"s_cbranch_vccnz {L}")
    a(f"v_mov_b32 v{v0}, s100")
    a(f"buffer_store_dword v{v0}, v{v0+1}, s[36:39], {flag_soff} offen {SC}")
    a(L + ":")
    a("s_mov_b64 exec, -1")

vW = 160; vH = 96
def G2_main_final(a):
    vX = 240; vB2 = 128
    st = Stream()
    for i in range(4): issue_h(st, i)
    stamp(st, 6)
    st("v_and_b32 v11, 15, v1")
    st("v_lshrrev_b32 v12, 4, v1")
    st("v_mul_u32_u24 v13, 1280, v11")
    st("v_lshl_add_u32 v13, v12, 3, v13")
    st("s_lshl_b32 s58, s44, 2")
    st("s_add_u32 s58, s58, s13")
    st("s_mul_i32 s58, s58, 20480")
    st("s_mul_i32 s22, s45, 160")
    st("s_add_u32 s58, s58, s22")
    st("v_mov_b32 v15, 0")
    st("s_lshl_b32 s59, s45, 8")
    st(f"s_add_u32 s59, s59, {FL_Y+128}")
    st("v_lshrrev_b32 v11, 1, v1")
    st("v_lshlrev_b32 v11, 12, v11")
    st("v_and_b32 v14, 1, v1")
    st("v_lshl_add_u32 v11, v14, 4, v11")
    st(f"s_mul_i32 s61, s45, {80*4096}")
    st("s_lshl_b32 s23, s44, 2")
    st("s_add_u32 s23, s23, s13")
    st("s_lshl_b32 s23, s23, 5")
    st("s_add_u32 s61, s61, s23")
    st(f"s_add_u32 s61, s61, {WS_AT}")
    st("v_lshlrev_b32 v14, 3, v12")
    st("s_mul_i32 s22, s13, 10240")
    st(f"s_add_u32 s22, s22, {L_W}")
    st("v_add_u32 v250, s22, v2")
    def step(st, i):
        bw = vW + (i % 4)*20; bh = vH + (i % 4)*16
        st.wait("vm", ("k", i))
        st.wait("lg", ("kl", i))
        for dl in range(5):
            for li in range(4):
                c = vACC + (li*5+dl)*4
                st(f"v_mfma_f32_16x16x32_bf16 v[{c}:{c+3}], v[{bw+4*dl}:{bw+3+4*dl}], v[{bh+4*li}:{bh+3+4*li}], v[{c}:{c+3}]")
        if i + 4 < 14:
            issue_h(st, i + 4)
            if i + 4 in (4, 5):
                for dl in range(5):
                    st(f"ds_read_b128 v[{bw+4*dl}:{bw+3+4*dl}], v250 offset:{i*5120 + dl*1024}", tag=("kl", i+4))
                st("s_add_u32 s47, s47, 1")
                st("s_cmp_eq_u32 s47, 14")
                st("s_cselect_b32 s47, 0, s47")
            else:
                issue_w(st, i + 4)
    ypoll = f"buffer_load_dword v140, v15, s[36:39], s59 offen {SC}"
    for i in range(13):
        step(st, i)
        if i == 10:
            st(ypoll, tag="y")
            st("s_mul_i32 s22, s45, 160")
            for dl in range(5):
                st(f"buffer_load_dwordx2 v[{vB2+2*dl}:{vB2+1+2*dl}], v14, s[52:55], s22 offen offset:{32*dl}", tag="x")
            for dl in range(5):
                st(f"buffer_load_dwordx2 v[{vX+2*dl}:{vX+1+2*dl}], v13, s[24:27], s58 offen offset:{32*dl}", tag="x")
    st.wait("vm", "y")
    resolve(st.items, a)
    a("s_branch Y_CHK")
    a.label("Y_RETRY")
    a("s_sleep 2")
    a(ypoll)
    a("s_waitcnt vmcnt(0)")
    a.label("Y_CHK")
    check_tags(a, [140], "Y_RETRY")
    st = Stream()
    stamp(st, 7)
    AT = 144
    for i in range(3):
        if i == 2: st("s_mov_b32 exec_hi, 0")
        st(f"buffer_load_dwordx4 v[{AT+4*i}:{AT+3+4*i}], v11, s[36:39], s61 offen {SC}", tag="at")
        if i < 2: st(f"s_add_u32 s61, s61, {32*4096}")
    st("s_mov_b64 exec, -1")
    step(st, 13)
    st("s_barrier")
    stamp(st, 8)
    ATOFF = 61440
    for li in range(1, 4):
        st(f"s_add_u32 s22, s13, {li}")
        st("s_and_b32 s22, s22, 3")
        st("s_mul_i32 s22, s22, 15360")
        st(f"s_add_u32 s22, s22, {(li-1)*5120}")
        st("v_add_u32 v15, s22, v2")
        for dl in range(5):
            c = vACC + (li*5+dl)*4
            st(f"ds_write_b128 v15, v[{c}:{c+3}] offset:{dl*1024}")
    st("s_mul_i32 s22, s13, 3072")
    st(f"s_add_u32 s22, s22, {ATOFF}")
    st("v_add_u32 v14, s22, v2")
    st("v_lshlrev_b32 v12, 3, v1")
    st("v_add_u32 v12, s22, v12")
    st("s_mov_b32 s59, 0xffff0000")
    def unpack(dst, src):
        st(f"v_lshlrev_b32 v{dst}, 16, v{src}")
        st(f"v_and_b32 v{dst+1}, s59, v{src}")
        st(f"v_lshlrev_b32 v{dst+2}, 16, v{src+1}")
        st(f"v_and_b32 v{dst+3}, s59, v{src+1}")
    st.waitall("lg")
    st("s_barrier")
    st("s_mul_i32 s22, s13, 15360")
    st("v_add_u32 v15, s22, v2")
    RB = 36
    for k in range(15):
        st(f"ds_read_b128 v[{RB+4*k}:{RB+3+4*k}], v15 offset:{k*1024}", tag=("r", k))
    st.waitall("vm")
    for i in range(3):
        st(f"ds_write_b128 v14, v[{AT+4*i}:{AT+3+4*i}] offset:{i*1024}", tag="atw")
    for dl in range(5):
        st(f"ds_read_b64_tr_b16 v[{110+2*dl}:{111+2*dl}], v12 offset:{dl*512}", tag=("atr", dl))
    XU = 160; BU = 180; AU = 200
    for dl in range(5):
        unpack(XU+4*dl, vX+2*dl); unpack(BU+4*dl, vB2+2*dl)
    for k in range(15):
        st.wait("lg", ("r", k))
        c = vACC + (k % 5)*4
        for r in range(4): st(f"v_add_f32 v{c+r}, v{c+r}, v{RB+4*k+r}")
    for dl in range(5):
        c = vACC + dl*4; t = 96 + 2*dl
        st(f"v_cvt_pk_bf16_f32 v{t}, v{c}, v{c+1}")
        st(f"v_cvt_pk_bf16_f32 v{t+1}, v{c+2}, v{c+3}")
    for dl in range(5):
        st.wait("lg", ("atr", dl))
        unpack(AU+4*dl, 110+2*dl)
        unpack(vACC+4*dl, 96+2*dl)
    for r in range(20):
        st(f"v_add_f32 v{XU+r}, v{XU+r}, v{AU+r}")
        st(f"v_add_f32 v{vACC+r}, v{vACC+r}, v{BU+r}")
    for i in range(10):
        st(f"v_cvt_pk_bf16_f32 v{96+i}, v{vACC+2*i}, v{vACC+2*i+1}")
        st(f"v_cvt_pk_bf16_f32 v{110+i}, v{XU+2*i}, v{XU+2*i+1}")
    for dl in range(5):
        unpack(vACC+4*dl, 96+2*dl); unpack(XU+4*dl, 110+2*dl)
        for r in range(4): st(f"v_add_f32 v{vACC+4*dl+r}, v{vACC+4*dl+r}, v{XU+4*dl+r}")
        st(f"v_cvt_pk_bf16_f32 v{220+2*dl}, v{vACC+4*dl}, v{vACC+4*dl+1}")
        st(f"v_cvt_pk_bf16_f32 v{221+2*dl}, v{vACC+4*dl+2}, v{vACC+4*dl+3}")
        st(f"buffer_store_dwordx2 v[{220+2*dl}:{221+2*dl}], v13, s[48:51], s58 offen offset:{32*dl}")
    if Cfg.PROF: st.waitall("vm")
    stamp(st, 9)
    resolve(st.items, a)

def prewarm(a):
    a("s_sub_u32 s18, s14, 28")
    a("s_lshl_b32 s18, s18, 2")
    a("s_add_u32 s18, s18, s13")
    a("v_lshlrev_b32 v13, 3, v1")
    a(f"s_mov_b32 s59, {FL_W}")
    M2.PSLEEP = 16
    poll_global(a, [f"buffer_load_dwordx2 v[14:15], v13, s[36:39], s59 offen {SC}"], [14, 15])
    a("v_lshlrev_b32 v2, 7, v1")
    a("s_and_b32 s22, s3, 1")
    a(f"s_mul_i32 s22, s22, {20*HS}")
    a(f"s_mul_i32 s23, s18, {540*128}")
    a("s_add_u32 s22, s22, s23")
    a(f"s_add_u32 s22, s22, {WS_W2P}")
    for k in range(9):
        if k == 8: a("s_mov_b32 exec_lo, 0x0fffffff"); a("s_mov_b32 exec_hi, 0")
        a(f"buffer_load_dword v{16+k}, v2, s[36:39], s22 offen {SC}")
        a("s_add_u32 s22, s22, 8192")
    a("s_mov_b64 exec, -1")
    a("v_lshlrev_b32 v13, 4, v1")
    a(f"s_mov_b32 s59, {FL_X}")
    poll_global(a, [f"buffer_load_dwordx4 v[28:31], v13, s[36:39], s59 offen {SC}"], [28, 29, 30, 31])
    M2.PSLEEP = 8
    a("v_lshrrev_b32 v3, 2, v1")
    a("v_mul_u32_u24 v3, 10240, v3")
    a("v_and_b32 v4, 3, v1")
    a("v_lshl_add_u32 v3, v4, 7, v3")
    a("s_mul_i32 s22, s18, 163840")
    a("s_mul_i32 s23, s3, 1280")
    a("s_add_u32 s22, s22, s23")
    a(f"s_add_u32 s22, s22, {WS_XNT}")
    a(f"buffer_load_dword v16, v3, s[36:39], s22 offen {SC}")
    a(f"buffer_load_dword v17, v3, s[36:39], s22 offen offset:512 {SC}")
    a(f"buffer_load_dword v18, v3, s[36:39], s22 offen offset:768 {SC}")
    a("s_lshr_b32 s22, s3, 1")
    a("s_lshl_b32 s22, s22, 12")
    a(f"s_add_u32 s22, s22, {WS_STATS}")
    a("s_mov_b32 exec_hi, 0")
    a(f"buffer_load_dword v19, v2, s[36:39], s22 offen {SC}")
    a("s_mov_b64 exec, -1")

def emit_G(a):
    a(f"s_setprio {GPRIO}")
    def pre(idle, post):
        ln = M2.G_ln1()
        st = Stream()
        for it in ln.items:
            if it[0] == "s_barrier" or (isinstance(it[0], str) and "v254" in it[0]): continue
            st.items.append(it)
            if isinstance(it[0], str) and it[0].startswith("buffer_store_dwordx2"):
                st("s_add_u32 s22, s22, 65536")
                st(it[0].replace(" sc1", ""), tag="st")
            if isinstance(it[0], tuple) and it[0] == ("mark", "idle"): st.extend(idle)
        st.waitall("lg")
        stamp(st, 1)
        st("s_barrier")
        if post: st.extend(post)
        resolve(st.items, a)
    a("s_cmp_ge_u32 s14, 28")
    a("s_cbranch_scc1 GC")
    pre(M2.G_loop_setup(), None)
    a("s_lshl_b32 s22, s16, 1")
    a("s_add_u32 s22, s22, s19")
    a("s_cmp_eq_u32 s22, 27")
    a("s_cbranch_scc1 G_SKIP")
    G_loop(a)
    a("s_waitcnt vmcnt(0)")
    a("s_branch G_CHK")
    a.label("G_RETRY")
    for rt in range(4):
        a(f"buffer_load_dwordx2 v[{vGRN+2*rt}:{vGRN+1+2*rt}], v15, s[36:39], s60 offen offset:{128*rt} {SC}")
    a("s_waitcnt vmcnt(0)")
    a.label("G_CHK")
    check_tags(a, [vGRN+1, vGRN+3, vGRN+5, vGRN+7], "G_RETRY")
    a("s_getreg_b32 s22, hwreg(HW_REG_XCC_ID, 0, 4)")
    a("s_add_u32 s22, s22, 1")
    a("s_xor_b32 s22, s22, s100")
    a("v_cmp_ne_u32 vcc, s22, v176")
    a("s_or_b32 s69, vcc_lo, vcc_hi")
    if not LOCAL: a("s_mov_b32 s69, 1")
    st = Stream()
    st.extend(G_gelu())
    stamp(st, 4)
    st("s_lshl_b32 s22, s15, 1")
    st("s_add_u32 s22, s22, s18")
    st("s_lshl_b32 s22, s22, 7")
    st("s_lshl_b32 s23, s16, 1")
    st("s_add_u32 s23, s23, s19")
    st("s_lshl_b32 s23, s23, 2")
    st("s_add_u32 s22, s22, s23")
    st(f"s_add_u32 s68, s22, {FL_H}")
    st.waitall("vm")
    resolve(st.items, a)
    a("s_cmp_lg_u32 s69, 0")
    a(f"s_cselect_b32 s67, s68, {OOB}")
    a(f"s_cselect_b32 s68, {OOB}, s68")
    a("v_mov_b32 v250, s100")
    a("v_mov_b32 v251, 0")
    a("s_mov_b64 exec, 1")
    a("buffer_store_dword v250, v251, s[36:39], s68 offen")
    a(f"buffer_store_dword v250, v251, s[36:39], s67 offen {SC}")
    a("s_mov_b64 exec, -1")
    stamp(a, 5)
    a.label("G2")
    a("s_load_dwordx4 s[8:11], s[0:1], 104")
    g2_addr(a)
    a("s_waitcnt lgkmcnt(0)")
    srd(a, 48, 10, 2048*1280)
    srd(a, 52, 8, 1280)
    a(f"v_mov_b32 v13, {L_WF}")
    a.label("GW_SPIN")
    a("ds_read_b32 v15, v13")
    a("s_waitcnt lgkmcnt(0)")
    a("v_cmp_ne_u32 vcc, s100, v15")
    a("s_cbranch_vccz GW_OK")
    a("s_sleep 2")
    a("s_add_u32 s79, s79, 1")
    a("s_cmp_lt_u32 s79, 200000")
    a("s_cbranch_scc1 GW_SPIN")
    a.label("GW_OK")
    st = Stream()
    for i in range(4): issue_w(st, i)
    for r in range(16, 96): st(f"v_mov_b32 v{r}, 0")
    st("v_min_u32 v13, 26, v1")
    st("v_lshlrev_b32 v13, 2, v13")
    st("s_lshl_b32 s59, s44, 7")
    st(f"s_add_u32 s59, s59, {FL_H}")
    resolve(st.items, a)
    poll_global(a, [f"buffer_load_dword v15, v13, s[36:39], s59 offen {SC}"], [15])
    G2_main_final(a)
    prof_flush(a, 10, 36, 12)
    if DBGOUT:
        a("s_cmp_lg_u32 s2, 9"); a("s_cbranch_scc1 DBG_E")
        a("s_cmp_lg_u32 s12, 0"); a("s_cbranch_scc1 DBG_E")
        a("s_load_dwordx2 s[8:9], s[0:1], 120"); a("s_waitcnt lgkmcnt(0)")
        srd(a, 40, 8, 256)
        a("v_mov_b32 v1, 0"); a("s_mov_b64 exec, 1")
        for i in range(1, 10):
            a(f"s_sub_u32 s22, s{80+2*i}, s80"); a("v_mov_b32 v2, s22")
            a(f"buffer_store_dword v2, v1, s[40:43], 0 offen offset:{4*i}")
        a.label("DBG_E")
    a("s_endpgm")
    a.label("G_SKIP")
    a("s_waitcnt vmcnt(0)")
    barrier_loop(a, 10)
    a("s_branch G2")
    a.label("GC")
    wl, wc = w2_piece()
    pre(wl, wc)
    a("s_waitcnt vmcnt(0)")
    a("s_barrier")
    a("s_barrier")
    a("s_branch G2")

def ln2(a):
    a("v_bfe_u32 v6, v1, 2, 2")
    a("v_mul_u32_u24 v3, 1344, v6")
    a("v_lshrrev_b32 v6, 4, v1")
    a("v_lshl_add_u32 v3, v6, 5, v3")
    a("v_and_b32 v6, 3, v1")
    a("v_lshl_add_u32 v3, v6, 3, v3")
    a(f"v_add_u32 v3, {L_LN}, v3")
    a("v_lshlrev_b32 v4, 4, v1")
    a("s_mul_i32 s22, s101, 10240")
    a(f"s_add_u32 s22, s22, {WS_XNT}")
    st = Stream()
    if NOXB: return
    for c in range(10):
        b = 8+4*c
        st(f"ds_read_b64_tr_b16 v[{b}:{b+1}], v3 offset:{c*128}", tag=("l2", c))
        st(f"ds_read_b64_tr_b16 v[{b+2}:{b+3}], v3 offset:{c*128+4*1344}", tag=("l2", c))
    for c in range(10):
        b = 8+4*c
        st.wait("lg", ("l2", c))
        st(f"buffer_store_dwordx4 v[{b}:{b+3}], v4, s[36:39], s22 offen offset:{1024*(c%4)} {SC}")
        if c % 4 == 3: st("s_add_u32 s22, s22, 4096")
    resolve(st.items, a)

def cbar(a):
    L = newlabel("CB")
    a("s_cmp_ge_u32 s14, 28")
    a(f"s_cbranch_scc1 {L}")
    a("s_barrier")
    a(L + ":")

def emit_K(a):
    a("s_lshl_b32 s59, s14, 1")
    a("s_add_u32 s59, s59, s13")
    a("s_add_u32 s22, s14, 48")
    a("s_cmp_eq_u32 s13, 2")
    a("s_cselect_b32 s59, s22, s59")
    a(f"s_mul_i32 s46, s13, {CONV_LDS}")
    a("s_mul_i32 s47, s3, 80")
    a("s_add_u32 s47, s47, s59")
    ptr_ready(a)
    ptr_rest(a)
    a("s_cmp_eq_u32 s13, 2")
    a("s_cselect_b32 s22, 16, 0")
    a("s_cmp_lt_u32 s14, s22")
    a("s_cbranch_scc1 K_IDLE")
    ld, kv, km, vO = kgen2.kgen()
    print("kgen V items", len(kv.items), "M items", len(km.items))
    resolve(ld.items, a)
    tag_ready(a)
    a("s_cmp_lg_u32 s12, 5")
    a("s_cbranch_scc1 K_T")
    a("s_getreg_b32 s22, hwreg(HW_REG_XCC_ID, 0, 4)")
    a("s_add_u32 s22, s22, 1")
    a("s_xor_b32 s22, s22, s100")
    a("v_mov_b32 v2, s22")
    a("v_mov_b32 v3, 0")
    a("s_lshl_b32 s22, s101, 2")
    a(f"s_add_u32 s22, s22, {FL_T}")
    a("s_mov_b64 exec, 1")
    a(f"buffer_store_dword v2, v3, s[36:39], s22 offen")
    a("s_mov_b64 exec, -1")
    a.label("K_T")
    pos = KPRE
    resolve(kv.items[:pos], a)
    a("s_barrier")
    a("s_cmp_lg_u32 s12, 4")
    a("s_cbranch_scc1 K_A")
    ln2(a)
    a("s_lshl_b32 s22, s3, 8")
    a(f"s_add_u32 s22, s22, {FL_Y}")
    a("s_cmp_eq_u32 s14, 0")
    a(f"s_cselect_b32 s22, s22, {OOB}")
    a("v_mov_b32 v2, 0")
    a("s_mov_b64 exec, 1")
    a(f"buffer_store_dword v2, v2, s[36:39], s22 offen {SC}")
    a("s_mov_b64 exec, -1")
    a.label("K_A")
    for t in range(1, 10):
        n = KSL if t > 1 else KSL//2
        resolve(kv.items[pos:pos+n], a); pos += n
        if t == FB:
            a("s_barrier")
            a("s_cmp_lg_u32 s12, 4")
            a("s_cbranch_scc1 K_B")
            a("s_load_dwordx2 s[8:9], s[0:1], 120")
            a("s_waitcnt vmcnt(0) lgkmcnt(0)")
            srd(a, 40, 8, 256)
            a("s_lshl_b32 s22, s3, 4")
            a(f"s_mov_b32 s23, {FL_X}")
            arrive(a, 40, "s22", 32, "s23", 2, part=1)
            a.label("K_B")
        else:
            cbar(a)
        if t == FB+2:
            a("s_cmp_lg_u32 s12, 4")
            a("s_cbranch_scc1 K_C")
            a("s_load_dwordx2 s[8:9], s[0:1], 120")
            a("s_waitcnt lgkmcnt(0)")
            srd(a, 40, 8, 256)
            a("v_mov_b32 v3, 0")
            a("s_mov_b32 s10, 128")
            a(f"s_mov_b32 s23, {FL_X}")
            arrive(a, 40, "s22", 32, "s23", 2, top=("s10", 8), part=2)
            a.label("K_C")
    n = KSL
    resolve(kv.items[pos:pos+n], a); pos += n
    stamp(a, 1)
    a("s_barrier")
    print("kgen V left after B_10:", max(0, len(kv.items) - pos))
    resolve(kv.items[pos:], a)
    a("v_mov_b32 v7, 0")
    a(f"s_mov_b32 s22, {FL_X}")
    a(f"buffer_load_dword v44, v7, s[36:39], s22 offen {SC}")
    nsplit = 60
    st = Stream(); st.items.extend(km.items[:nsplit]); st.waitall("lg")
    resolve(st.items, a)
    a("s_waitcnt vmcnt(0)")
    a("s_branch K_CHK")
    a.label("K_RETRY")
    a(f"s_sleep {KSLEEP}")
    a(f"buffer_load_dword v44, v7, s[36:39], s22 offen {SC}")
    a("s_waitcnt vmcnt(0)")
    a.label("K_CHK")
    check_tags(a, [44], "K_RETRY")
    a("s_cmp_lg_u32 s2, 0")
    a("s_cbranch_scc1 C_NOR")
    a("s_cmp_lg_u32 s12, 4")
    a("s_cbranch_scc1 C_NOR")
    a(f"s_mov_b32 s22, {FL_R}")
    flag_store(a, "s22", 2)
    a("s_waitcnt vmcnt(0)")
    a.label("C_NOR")
    st = Stream()
    st.extend(conv.conv_uload(SC=SC, vU=120))
    st.items.extend(km.items[nsplit:])
    stamp(st, 6)
    st.extend(conv.conv_main(SC=SC, vK=vO, vU=120))
    stamp(st, 4)
    st("s_lshl_b32 s22, s3, 8")
    st(f"s_add_u32 s22, s22, {FL_Y}")
    st("s_add_u32 s23, s22, 128")
    st.waitall("vm")
    resolve(st.items, a)
    arrive(a, 36, "s22", 80, "s23", 5)
    stamp(a, 5)
    prof_flush(a, 7, 36, 12)
    a.label("K_IDLE")
    a("s_endpgm")

def emit_L(a):
    a("s_cmp_ge_u32 s14, 28")
    a("s_cbranch_scc1 LC")
    a(f"s_setprio {LPRIO}")
    a("v_lshrrev_b32 v20, 3, v1")
    a("v_and_b32 v21, 7, v1")
    a("v_lshrrev_b32 v22, 4, v1")
    a("v_xor_b32 v21, v21, v22")
    a("v_mul_u32_u24 v2, 1280, v20")
    a("v_lshl_add_u32 v2, v21, 4, v2")
    a("v_xor_b32 v6, 64, v2")
    for i in range(1, 4):
        a(f"v_add_u32 v{2+i}, {i*(20480-1024)}, v2")
        a(f"v_add_u32 v{6+i}, {i*(20480-1024)}, v6")
    a("v_bfe_u32 v21, v1, 1, 3")
    a("v_xor_b32 v21, v21, v22")
    a("v_and_b32 v23, 1, v1")
    a("v_lshl_add_u32 v21, v21, 1, v23")
    a("v_xor_b32 v23, 8, v21")
    a("v_mul_u32_u24 v24, 3456, v22")
    a("v_lshl_add_u32 v10, v21, 4, v24")
    a("v_lshl_add_u32 v11, v23, 4, v24")
    a("s_cmp_eq_u32 s16, 13")
    a("s_cselect_b32 s22, 8, 16")
    a(f"v_mov_b32 v25, {OOB}")
    a("v_cmp_gt_u32 vcc, s22, v21")
    a("v_cndmask_b32 v10, v25, v10, vcc")
    a("v_cmp_gt_u32 vcc, s22, v23")
    a("v_cndmask_b32 v11, v25, v11, vcc")
    ws = 8*3456-1024
    a(f"v_add_u32 v12, {2*ws}, v10")
    a(f"v_add_u32 v13, {3*ws}, v11")
    a(f"v_add_u32 v11, {ws}, v11")
    a("s_mul_i32 s18, s15, 163840")
    a("s_lshl_b32 s20, s16, 8")
    a("s_mov_b32 s19, 0")
    a("s_mov_b32 s40, 0")
    a("s_waitcnt lgkmcnt(0)")
    srd(a, 24, 4, 2048*1280)
    srd(a, 28, 48, 640*3456)
    ptr_rest(a)
    a("v_mov_b32 v30, 0")
    a(f"s_mov_b32 s59, {FL_X}")
    a("v_mov_b32 v32, 0")
    a("v_mov_b32 v33, 0")
    a.label("L_LOOP")
    a("s_cmp_lt_u32 s40, 2")
    a("s_cbranch_scc1 L_ISS")
    a("s_waitcnt vmcnt(32) lgkmcnt(0)")
    a("s_barrier")
    a.label("L_ISS")
    a("s_lshl_b32 s22, s17, 7")
    a("s_add_u32 s22, s22, s18")
    a(f"s_mul_i32 s23, s17, {64*3456}")
    a("s_add_u32 s23, s23, s20")
    xo = [0, 10240, 81920, 92160]; wo = [0, 4*3456, 32*3456, 36*3456]
    for g in range(4):
        a(f"s_add_u32 m0, s19, {16384 + g*4096}")
        a(f"s_add_u32 s41, s23, {wo[g]}")
        for i in range(4):
            a(f"buffer_load_dwordx4 v{10+i}, s[28:31], s41 offen offset:{1024*i} lds")
        if g == 3: a("s_waitcnt vmcnt(58)")
        a(f"s_add_u32 m0, s19, {g*4096}")
        a(f"s_add_u32 s41, s22, {xo[g]}")
        for i in range(4):
            a(f"buffer_load_dwordx4 v{2+4*(g&1)+i}, s[24:27], s41 offen offset:{1024*i} lds")
        if g == 3: pass
    a("s_add_u32 s17, s17, 1")
    a("s_cmp_eq_u32 s17, 10")
    a("s_cselect_b32 s17, 0, s17")
    a(f"s_add_u32 s19, s19, {SLOT}")
    a(f"s_cmp_eq_u32 s19, {3*SLOT}")
    a("s_cselect_b32 s19, 0, s19")
    a("s_add_u32 s40, s40, 1")
    a("s_cmp_lt_u32 s40, 10")
    a("s_cbranch_scc1 L_LOOP")
    def wsetup():
        a("s_mov_b32 s13, 0")
        g2_addr(a)
        for dl in range(1, 4): a(f"v_subrev_u32 v{2+dl}, {1024*dl}, v{2+dl}")
    def pos(dst, add):
        a(f"s_add_u32 {dst}, s46, {add}")
        a(f"s_sub_u32 s22, {dst}, 14")
        a(f"s_cmp_ge_u32 {dst}, 14")
        a(f"s_cselect_b32 {dst}, s22, {dst}")
    def wblock(j):
        pos("s40", 4+j)
        for w in range(4):
            a("s_lshl_b32 s41, s40, 10")
            a("s_add_u32 s41, s41, s57")
            a(f"s_add_u32 s41, s41, {w*14336}")
            if w == 3:
                a("s_cmp_lt_u32 s40, 12")
                a(f"s_cselect_b32 s41, s41, {OOB}")
            a(f"s_mov_b32 m0, {L_W + (w*2+j)*5120}")
            for dl in range(4):
                a(f"buffer_load_dwordx4 v{2+dl}, s[36:39], s41 offen offset:{1024*dl} {SC} lds")
            a(f"s_mov_b32 m0, {L_W + (w*2+j)*5120 + 4096}")
            a(f"buffer_load_dwordx4 v6, s[36:39], s41 offen {SC} lds")
    tag_ready(a)
    wsetup()
    a("s_waitcnt vmcnt(32)")
    a("s_barrier")
    a(f"buffer_load_dword v32, v30, s[36:39], s59 offen {SC}")
    a("s_waitcnt vmcnt(1)")
    a("s_barrier")
    stamp(a, 1)
    a("s_waitcnt vmcnt(0)")
    a("v_cmp_ne_u32 vcc, s100, v32")
    a("s_cbranch_vccnz LW_SLOW")
    wblock(0)
    a("s_barrier")
    a.label("LW_B1")
    wblock(1)
    a.label("LW_TAIL")
    if WTOUCH:
        pos("s40", 6); pos("s41", 7)
        a("v_mov_b32 v20, s40"); a("v_mov_b32 v21, s41")
        a("v_cmp_gt_u32 vcc, 32, v1")
        a("v_cndmask_b32 v20, v21, v20, vcc")
        a("v_bfe_u32 v21, v1, 3, 2")
        a("v_mul_u32_u24 v21, 14, v21")
        a("v_add_u32 v20, v20, v21")
        a("v_min_u32 v20, 53, v20")
        a("v_lshlrev_b32 v20, 10, v20")
        a("v_and_b32 v21, 7, v1")
        a("v_lshl_add_u32 v20, v21, 7, v20")
        a("s_mov_b32 s41, s57")
        for dl in range(5):
            a(f"buffer_load_dword v{22+dl}, v20, s[36:39], s41 offen {SC}")
            a(f"s_add_u32 s41, s41, {HS}")
        a("s_waitcnt vmcnt(5)")
    else:
        a("s_waitcnt vmcnt(0)")
    a(f"v_mov_b32 v8, {L_WF}")
    a("v_mov_b32 v9, s100")
    a("s_mov_b64 exec, 1")
    a("ds_write_b32 v8, v9")
    a("s_mov_b64 exec, -1")
    stamp(a, 2)
    prof_flush(a, 3, 36, 12)
    a("s_endpgm")
    a.label("LW_SLOW")
    a("s_barrier")
    a.label("LW_POLL")
    M2.PSLEEP, old = 4, M2.PSLEEP
    poll_global(a, [f"buffer_load_dword v32, v30, s[36:39], s59 offen {SC}"], [32])
    M2.PSLEEP = old
    wblock(0)
    a("s_branch LW_B1")
    a.label("LC")
    if CPREF:
        a("s_getpc_b64 s[10:11]")
        a.label("PCREF")
        a("s_sub_u32 s10, s10, PCREF-KSTART")
        a("s_subb_u32 s11, s11, 0")
        a("v_lshlrev_b32 v5, 7, v1")
        for k in range(5):
            a("v_min_u32 v2, M_END-KSTART, v5")
            a("v_mov_b32 v3, s11")
            a("v_add_co_u32 v2, vcc, s10, v2")
            a("v_addc_co_u32 v3, vcc, 0, v3, vcc")
            a("global_load_dword v40, v[2:3], off")
            a("v_add_u32 v5, 8192, v5")
    a("s_waitcnt lgkmcnt(0)")
    ptr_rest(a)
    tag_ready(a)
    a("v_mov_b32 v30, 0")
    a(f"s_mov_b32 s59, {FL_X}")
    wsetup()
    a("s_barrier")
    a("s_barrier")
    a("s_barrier")
    a("s_branch LW_POLL")

def mega():
    a = Asm()
    a.label("KSTART")
    setup(a)
    a("s_cmp_lt_u32 s12, 4")
    a("s_cbranch_scc1 M_G")
    a("s_cmp_lt_u32 s12, 7")
    a("s_cbranch_scc1 M_K")
    emit_L(a)
    a.label("M_G")
    emit_G(a)
    a.label("M_K")
    emit_K(a)
    a.label("M_END")
    a("s_endpgm")
    return a.finish(True)

if __name__ == "__main__":
    Cfg.PROF = "--noprof" not in sys.argv
    Cfg.CYC = "--cyc" in sys.argv
    for x in sys.argv[2:]:
        if "=" in x:
            k, v = x.split("=")
            if k in globals(): globals()[k] = int(v)
            else: setattr(M2, k, int(v))
    name = "parallel_sum__ssm_conv_s4__dense_activation_gelu__prompt_kernel"
    body = mega()
    code, kd = kernel_text(name, body, 256)
    hdr = f"; @launch grid=(256,1,1) block=(512,1,1) lds={LDS_TOTAL}\n.amdgcn_target \"amdgcn-amd-amdhsa--gfx950\"\n"
    open(sys.argv[1], "w").write(hdr + code + kd)
```

```python
import math
from common import *
from asmlib import Stream
LOG2E = 1.4426950408889634
C1OFF = 4160; UOFF = 10240; KREG = 14848; TB = 8704

def kload(sD=47):
    ld = Stream()
    ld("v_lshlrev_b32 v116, 2, v1")
    ld(f"s_lshl_b32 s76, s{sD}, 8")
    ld("v_add_u32 v116, s76, v116")
    ld(f"s_lshl_b32 s76, s{sD}, 1")
    ld("v_mov_b32 v117, s76")
    ld("s_waitcnt lgkmcnt(0)")
    for k in range(6):
        ld(f"global_load_dword v{48+k}, v116, s[{60+2*k}:{61+2*k}]", tag="kp")
    ld("global_load_ushort v54, v117, s[72:73]", tag="kp")
    ld("global_load_ushort v55, v117, s[74:75]", tag="kp")
    return ld

def kgen(sL=46):
    pre = Stream(); a = Stream()
    vRAW = 48; vP = 56; ZB = 68; vAD = 116; vPK = 120; vF = 124; vG = 156; vACC = 188; t = 200; u = 208; vO = 216
    p_ = pre
    p_(f"v_lshlrev_b32 v{vAD}, 3, v1")
    p_(f"v_add_u32 v{vAD}, s{sL}, v{vAD}")
    p_(f"v_and_b32 v{vAD+2}, 15, v1")
    p_(f"v_lshrrev_b32 v{vAD+3}, 4, v1")
    p_(f"v_mul_u32_u24 v{vAD+1}, 544, v{vAD+2}")
    p_(f"v_lshl_add_u32 v{vAD+1}, v{vAD+3}, 4, v{vAD+1}")
    p_(f"v_add_u32 v{vAD+1}, s{sL}, v{vAD+1}")
    for r in range(12): p_(f"v_mov_b32 v{vACC+r}, 0")
    j = vAD+2; q = vAD+3
    p_(f"v_lshrrev_b32 v{t}, 1, v{q}")
    p_(f"v_lshlrev_b32 v{t}, 8, v{t}")
    p_(f"v_lshl_add_u32 v{t}, v{j}, 4, v{t}")
    p_(f"v_and_b32 v{t+1}, 1, v{q}")
    p_(f"v_lshl_add_u32 v{t}, v{t+1}, 3, v{t}")
    p_(f"v_add_u32 v{t}, s{sL}, v{t}")
    p_(f"v_cmp_gt_u32 s[76:77], 2, v{q}")
    p_(f"v_lshlrev_b32 v{t+2}, 2, v{j}")
    p_(f"v_lshlrev_b32 v{t+3}, 3, v{j}")
    p_(f"v_cndmask_b32 v{t+2}, v{t+2}, v{t+3}, s[76:77]")
    p_(f"v_lshl_add_u32 v{t+2}, v{q}, 7, v{t+2}")
    p_(f"v_add_u32 v{t+2}, s{sL}, v{t+2}")
    p_(f"v_cndmask_b32 v{t+3}, 64, 4, s[76:77]")
    p_(f"v_add_u32 v{t+3}, v{t+2}, v{t+3}")
    p_(f"v_lshlrev_b32 v{t+4}, 5, v{j}")
    p_(f"v_lshl_add_u32 v{t+4}, v{q}, 3, v{t+4}")
    p_(f"v_add_u32 v{t+4}, s{sL}, v{t+4}")
    p_(f"v_lshlrev_b32 v{u}, 4, v1")
    p_(f"v_lshlrev_b32 v{u+1}, 3, v1")
    p_(f"v_add_u32 v{u+1}, 256, v{u+1}")
    p_(f"v_cmp_gt_u32 s[76:77], 32, v1")
    p_(f"v_cndmask_b32 v{u}, v{u+1}, v{u}, s[76:77]")
    p_(f"v_add_u32 v{u}, s{sL}, v{u}")
    p_(f"v_lshlrev_b32 v{u+1}, 2, v1")
    p_(f"v_add_u32 v{u+1}, s{sL}, v{u+1}")
    p_(f"v_add_u32 v{u+1}, {TB}, v{u+1}")
    p_(f"v_lshlrev_b32 v{u+6}, 1, v1")
    p_(f"v_add_u32 v{u+6}, s{sL}, v{u+6}")
    p_(f"v_and_b32 v{u+2}, 1, v1")
    p_(f"v_cmp_eq_u32 s[76:77], 1, v{u+2}")
    p_(f"v_mov_b32 v{u+2}, 0x01000504")
    p_(f"v_mov_b32 v{u+3}, 0x05040504")
    p_(f"v_cndmask_b32 v{u+4}, v{u+2}, v{u+3}, s[76:77]")
    p_(f"v_mov_b32 v{u+5}, 0x03020504")
    p_(f"v_sub_u32 v{t+5}, 63, v1")
    p_(f"v_lshlrev_b32 v{t+5}, 4, v{t+5}")
    p_(f"v_add_u32 v{t+5}, s{sL}, v{t+5}")
    p_(f"v_lshrrev_b32 v240, 1, v{j}")
    p_(f"v_lshl_add_u32 v240, v{q}, 2, v240")
    p_("v_sub_u32 v240, 19, v240")
    p_("v_lshlrev_b32 v240, 2, v240")
    p_(f"v_mov_b32 v241, {C1OFF}")
    p_("v_cndmask_b32 v241, v241, 0, s[76:77]")
    p_(f"v_add3_u32 v235, v240, v241, s{sL}")
    for g in range(3): p_(f"v_add_u32 v{232+g}, {(3-g)*1024}, v235")
    p_(f"v_lshlrev_b32 v236, 1, v{j}")
    p_(f"v_sub_u32 v236, v236, v{q}")
    p_("v_add_u32 v236, 3, v236")
    p_("v_lshlrev_b32 v236, 4, v236")
    p_(f"v_add_u32 v236, s{sL}, v236")
    p_(f"v_lshlrev_b32 v237, 5, v{j}")
    p_(f"v_lshl_add_u32 v237, v{q}, 3, v237")
    p_(f"v_add_u32 v237, s{sL}, v237")
    p_("v_lshlrev_b32 v239, 4, v1")
    p_(f"v_add_u32 v238, s{sL}, v239")
    for r in range(244, 248): p_(f"v_mov_b32 v{r}, 0")
    p_("s_mov_b64 exec, 0x3fffffff")
    p_(f"ds_write_b128 v238, v[244:247] offset:{UOFF}")
    p_("s_mov_b64 exec, -1")
    dt = vRAW+6; T0 = ZB+22
    a(f"v_lshlrev_b32 v{dt}, 16, v{dt}")
    a(f"v_lshlrev_b32 v{vRAW+7}, 16, v{vRAW+7}")
    hi = struct.unpack("<f", struct.pack("<f", LOG2E))[0]; lo = LOG2E - hi
    a(f"s_mov_b32 s76, {f32bits(hi)}")
    a(f"s_mov_b32 s77, {f32bits(lo)}")
    a(f"v_mul_f32 v{T0}, s76, v{dt}")
    a(f"v_readfirstlane_b32 s58, v{vRAW+7}")
    a(f"v_fma_f32 v{T0+1}, v{dt}, s76, -v{T0}")
    a(f"v_exp_f32 v{T0}, v{T0}")
    a(f"v_fma_f32 v{T0+1}, v{dt}, s77, v{T0+1}")
    a(f"v_mul_f32 v{T0+1}, {f32bits(math.log(2))}, v{T0+1}")
    for k in range(6):
        a(f"v_lshlrev_b32 v{vP+k}, 16, v{vRAW+k}")
        a(f"v_and_b32 v{vP+6+k}, 0xffff0000, v{vRAW+k}")
    a(f"v_fma_f32 v{dt}, v{T0}, v{T0+1}, v{T0}")
    a(f"v_cvt_pk_bf16_f32 v{dt}, v{dt}, v{dt}")
    a(f"v_lshlrev_b32 v{dt}, 16, v{dt}")
    a("s_mov_b32 s76, 0x01000100")
    a("s_mov_b32 s77, 0x03020302")
    def R(c, x):
        if isinstance(x, tuple): return vP + 6*c + x[1]
        return ZB + 24*c + x
    def both(fmt, *regs):
        for c in range(2):
            a(fmt.format(*[R(c, x) for x in regs]))
    def z(k): return 2*(k-1)
    Z8 = 14; Z128 = 16; CUR = 18; W0 = 20; T = 22
    def inc(x): return ("p", x[1]+1) if isinstance(x, tuple) else x+1
    pend = []
    def flush():
        while pend: a(pend.pop(0))
    def cmul(d, x, y):
        assert d != x and d != y
        both("v_mul_f32 v{0}, v{1}, v{2}", T, inc(x), inc(y))
        flush()
        both("v_mul_f32 v{0}, v{1}, v{2}", T+1, inc(x), y)
        both("v_fma_f32 v{0}, v{1}, v{2}, -v{3}", d, x, y, T)
        both("v_fma_f32 v{0}, v{1}, v{2}, v{3}", d+1, x, inc(y), T+1)
    def csq(d, x):
        both("v_mul_f32 v{0}, v{1}, v{1}", T, x+1)
        flush()
        both("v_add_f32 v{0}, v{1}, v{1}", T+1, x)
        both("v_fma_f32 v{0}, v{1}, v{1}, -v{2}", d, x, T)
        both("v_mul_f32 v{0}, v{1}, v{2}", d+1, T+1, x+1)
    pk = [0]
    defer = []
    dregs = list(range(156, 188, 2)) + [248, 250] + list(range(2, 48, 2))
    def putd(tile, row, x):
        r = dregs[len(defer)]; defer.append((tile, row, r))
        for c in range(2):
            a(f"v_cvt_pk_bf16_f32 v{r+c}, v{R(c,x)}, v{R(c,x+1)}")
    def put(row, x, neg=False):
        r = vPK + 2*(pk[0] % 2); pk[0] += 1
        for c in range(2):
            a(f"v_cvt_pk_bf16_f32 v{r+c}, v{R(c,x)}, {'-' if neg else ''}v{R(c,x+1)}")
        flush()
        pend.append(f"ds_write_b64 v{vAD}, v[{r}:{r+1}] offset:{row*544}")
    def direct(d, e):
        if e != 1:
            both(f"v_mul_f32 v{{0}}, {f32bits(float(e))}, v{{1}}", T, ("p", 0))
            both(f"v_mul_f32 v{{0}}, {f32bits(float(e))}, v{{1}}", T+1, ("p", 1))
            both("v_exp_f32 v{0}, v{0}", T)
            both("v_fract_f32 v{0}, v{0}", T+1)
        else:
            both("v_exp_f32 v{0}, v{1}", T, ("p", 0))
            both("v_fract_f32 v{0}, v{1}", T+1, ("p", 1))
        both("v_cos_f32 v{0}, v{1}", d, T+1)
        both("v_sin_f32 v{0}, v{1}", d+1, T+1)
        both("v_mul_f32 v{0}, v{1}, v{0}", d, T)
        both("v_mul_f32 v{0}, v{1}, v{0}", d+1, T)
    def rd(dst, tag):
        flush()
        for k in range(8):
            a(f"ds_read_b128 v[{dst+4*k}:{dst+3+4*k}], v{vAD+1} offset:{64*k}", tag=tag)
    def mm(acc, swap, tag):
        a.wait("lg", [tag, "kb"])
        for k in range(8):
            A = f"v[{vG+4*k}:{vG+3+4*k}]"; B = f"v[{vF+4*k}:{vF+3+4*k}]"
            if swap: A, B = B, A
            a(f"v_mfma_f32_16x16x32_bf16 v[{acc}:{acc+3}], {A}, {B}, v[{acc}:{acc+3}]")
    for k in range(4):
        for c in range(2): a(f"v_mul_f32 v{vP+6*c+k}, v{dt}, v{vP+6*c+k}")
    both(f"v_mul_f32 v{{0}}, {f32bits(LOG2E)}, v{{0}}", ("p", 0))
    both("v_mul_f32 v{0}, 0.15915494, v{0}", ("p", 1))
    cmul(CUR, ("p", 4), ("p", 2))
    direct(z(1), 1)
    direct(Z128, 128)
    csq(z(2), z(1)); csq(z(4), z(2)); csq(Z8, z(4))
    cur, oth = CUR, W0
    for b in range(16):
        if b < 15: cmul(oth, cur, Z8)
        put(b, cur, neg=True)
        cur, oth = oth, cur
    cmul(z(3), z(2), z(1))
    rd(vF, "kb")
    a.mark("early_end")
    cmul(z(5), z(4), z(1)); cmul(z(6), z(4), z(2)); cmul(z(7), z(4), z(3))
    a(f"v_mov_b32 v{vPK}, 0x3f80"); a(f"v_mov_b32 v{vPK+1}, 0x3f80")
    for k in range(1, 8): putd(0, k, z(k))
    putd(0, 8, Z128)
    tmp = [W0, CUR]
    for k in range(1, 8):
        cmul(tmp[k % 2], Z128, z(k))
        if k > 1: putd(0, 8+k-1, tmp[(k-1) % 2])
    csq(z(1), Z128)
    putd(0, 15, tmp[1])
    cur, oth = z(1), z(3)
    for half in range(2):
        cmul(tmp[1], cur, z(2))
        putd(1, 4*half, cur)
        if half == 0: a.mark("low_regs")
        for k in range(2, 4):
            cmul(tmp[k % 2], cur, z(2*k))
            putd(1, 4*half+k-1, tmp[(k-1) % 2])
        cmul(oth, cur, Z128)
        putd(1, 4*half+3, tmp[1])
        cur, oth = oth, cur
    for al in range(4):
        cmul(W0, cur, z(4))
        putd(1, 8+2*al, cur)
        cmul(oth, cur, Z128)
        putd(1, 9+2*al, W0)
        cur, oth = oth, cur
    for i in range(9):
        if i < 8: cmul(oth, cur, Z128)
        putd(2, i, cur)
        cur, oth = oth, cur
    a.mark("tail")
    def wr(tl):
        for tile, row, r in defer:
            if tile == tl: a(f"ds_write_b64 v{vAD}, v[{r}:{r+1}] offset:{row*544}")
    a(f"ds_write_b64 v{vAD}, v[{vPK}:{vPK+1}]")
    wr(0); rd(48, "k0")
    wr(1); rd(80, "k1")
    vG = 48; mm(vACC, False, "k0")
    wr(2); rd(156, "k2")
    vG = 80; mm(vACC+4, False, "k1")
    for r in range(16, 48): a(f"v_mov_b32 v{r}, 0")
    vG = 156; mm(vACC+8, True, "k2")
    c = 56
    for k in range(2):
        a(f"v_cvt_pk_bf16_f32 v{c+2*k}, v{vACC+4*k}, v{vACC+4*k+1}")
        a(f"v_cvt_pk_bf16_f32 v{c+1+2*k}, v{vACC+4*k+2}, v{vACC+4*k+3}")
    a(f"ds_write_b64 v{t}, v[{c}:{c+1}] offset:{TB}")
    a(f"ds_write_b32 v{t+2}, v{c+2} offset:{TB+512}")
    a(f"ds_write_b32 v{t+3}, v{c+3} offset:{TB+512}")
    a(f"v_cvt_pk_bf16_f32 v{c+4}, v{vACC+8}, v{vACC+9}")
    a(f"v_cvt_pk_bf16_f32 v{c+5}, v{vACC+10}, v{vACC+11}")
    a(f"ds_write_b64 v{t+4}, v[{c+4}:{c+5}] offset:{TB+1024}")
    p = 68
    a(f"ds_read_b64 v[{p}:{p+1}], v{u} offset:{TB}", tag="e0")
    a(f"ds_read_b64 v[{p+2}:{p+3}], v{u} offset:{TB+8}", tag="e0")
    a(f"ds_read2_b32 v[{p+4}:{p+5}], v{u+1} offset0:192 offset1:193", tag="e1")
    for it in (2, 3):
        a(f"ds_read_u16 v{p+2+2*it}, v{u+6} offset:{TB+1024+128*(it-2)}", tag=("e", it))
        a(f"ds_read_u16 v{p+3+2*it}, v{u+6} offset:{TB+1026+128*(it-2)}", tag=("e", it))
    a.atomic([("s_mov_b64 exec, 3", None), ("ds_write_b128 v238, v[244:247] offset:4096", None),
              (f"ds_write_b128 v238, v[244:247] offset:{C1OFF+4096}", None), ("s_mov_b64 exec, -1", None)])
    a.wait("lg", "e0")
    o = vO
    for k in range(4): a(f"v_alignbit_b32 v{o+k}, v{p+3-k}, v{p+3-k}, 16")
    a.atomic([("s_mov_b32 exec_lo, 0", None),
              (f"v_perm_b32 v{o}, v{p+2}, v{p+1}, v{u+5}", None),
              (f"v_perm_b32 v{o+1}, v{p+1}, v{p+1}, s76", None),
              (f"v_perm_b32 v{o+2}, v{p+1}, v{p}, v{u+5}", None),
              (f"v_perm_b32 v{o+3}, v{p}, v{p}, s76", None),
              ("s_mov_b32 exec_lo, -1", None)])
    a.wait("lg", "e1")
    o = vO+4
    a(f"v_perm_b32 v{o}, v{p+5}, v{p+5}, s76")
    a(f"v_perm_b32 v{o+1}, v{p+4}, v{p+4}, s77")
    a(f"v_alignbit_b32 v{o+2}, v{p+4}, v{p+4}, 16")
    a(f"v_perm_b32 v{o+3}, v{p+4}, v{p+4}, s76")
    for it in (2, 3):
        a.wait("lg", ("e", it))
        o = vO+4*it; sa = p+2+2*it; se = sa+1
        a(f"v_perm_b32 v{o}, v{se}, v{se}, s76")
        a(f"v_perm_b32 v{o+1}, v{se}, v{sa}, v{u+4}")
        a(f"v_perm_b32 v{o+2}, v{sa}, v{sa}, s76")
        a(f"v_mov_b32 v{o+3}, v{o+2}")
    for it in range(4):
        a(f"ds_write_b128 v{t+5}, v[{vO+4*it}:{vO+3+4*it}] offset:{(3-it)*1024}")
    for it in range(4):
        a(f"ds_read_b32 v{80+it}, v{t+5} offset:{(3-it)*1024+16}", tag=("nb", it))
    for it in range(4):
        w = vO+4*it; o = 84+4*it
        for k in range(3): a(f"v_alignbit_b32 v{o+k}, v{w+k+1}, v{w+k}, 16")
        a.wait("lg", ("nb", it))
        a(f"v_alignbit_b32 v{o+3}, v{80+it}, v{w+3}, 16")
        a(f"ds_write_b128 v{t+5}, v[{o}:{o+3}] offset:{C1OFF+(3-it)*1024}")
    return pre, a

def u_dma(a, SC, sD=47, sL=46):
    a("v_mul_u32_u24 v243, 10240, v1")
    a(f"s_lshl_b32 s22, s{sD}, 4")
    a(f"s_add_u32 s22, s22, {WS_XNT}")
    a(f"s_add_u32 m0, s{sL}, {UOFF+480}")
    for k in range(4):
        a(f"buffer_load_dwordx4 v243, s[36:39], s22 offen offset:{1024*k} {SC} lds")
        if k < 3: a(f"s_add_u32 s22, s22, {655360-1024}")

def conv(SC, sD=47, sDk=58):
    a = Stream()
    ACC = 16; FR = 48
    def rdA(ph, x):
        b = FR + (ph % 2)*64 + 8*x
        o = 16*(7-ph) + 128*(1 - (x & 1))
        return [(f"ds_read2_b32 v[{b}:{b+1}], v{232 + x//2} offset0:{o} offset1:{o+1}", ("fa", ph, x)),
                (f"ds_read2_b32 v[{b+2}:{b+3}], v{232 + x//2} offset0:{o+2} offset1:{o+3}", ("fa", ph, x)),
                (f"ds_read_b128 v[{b+4}:{b+7}], v236 offset:{UOFF + 512*x + 64*(7-ph)}", ("fa", ph, x))]
    for x in range(8):
        for l, tg in rdA(0, x): a(l, tag=tg)
    pairs = sorted([(x, y) for x in range(8) for y in range(8) if x+y <= 7], key=lambda p: (max(p), p))
    for ph in range(8):
        base = FR + (ph % 2)*64
        seen = -1
        nxt = [r for x in range(8) for r in rdA(ph+1, x)] if ph < 7 else []
        for n, (x, y) in enumerate(pairs):
            mx = max(x, y)
            if ph == 0:
                if mx > seen: a.wait("lg", ("fa", ph, mx)); seen = mx
            elif n == 0:
                a.waitall("lg")
            c = ACC + 4*(x+y)
            a(f"v_mfma_f32_16x16x32_bf16 v[{c}:{c+3}], v[{base+8*x}:{base+8*x+3}], v[{base+8*y+4}:{base+8*y+7}], v[{c}:{c+3}]")
            k = n if ph > 0 else n - 8
            if 0 <= k < len(nxt): a(nxt[k][0], tag=nxt[k][1])
            if ph == 7 and n < 8:
                a(f"ds_read_b64 v[{48+2*n}:{49+2*n}], v237 offset:{UOFF + 480 + 512*n}", tag=("xu", n))
    stamp(a, 3)
    a("v_mov_b32 v15, 0xffff0000")
    a.waitall("lg")
    for c in range(8):
        y = ACC + 4*c; t = 64 + (c % 2)*8; u = 48+2*c
        a(f"v_lshlrev_b32 v{t+2}, 16, v{u}")
        a(f"v_and_b32 v{t+3}, v15, v{u}")
        a(f"v_lshlrev_b32 v{t+4}, 16, v{u+1}")
        a(f"v_and_b32 v{t+5}, v15, v{u+1}")
        a(f"v_cvt_pk_bf16_f32 v{t}, v{y}, v{y+1}")
        a(f"v_cvt_pk_bf16_f32 v{t+1}, v{y+2}, v{y+3}")
        for r in range(4): a(f"v_mul_f32 v{t+2+r}, s{sDk}, v{t+2+r}")
        a(f"v_lshlrev_b32 v{y}, 16, v{t}")
        a(f"v_and_b32 v{y+1}, v15, v{t}")
        a(f"v_lshlrev_b32 v{y+2}, 16, v{t+1}")
        a(f"v_and_b32 v{y+3}, v15, v{t+1}")
        a(f"v_cvt_pk_bf16_f32 v{t}, v{t+2}, v{t+3}")
        a(f"v_cvt_pk_bf16_f32 v{t+1}, v{t+4}, v{t+5}")
        a(f"v_lshlrev_b32 v{t+2}, 16, v{t}")
        a(f"v_and_b32 v{t+3}, v15, v{t}")
        a(f"v_lshlrev_b32 v{t+4}, 16, v{t+1}")
        a(f"v_and_b32 v{t+5}, v15, v{t+1}")
        for r in range(4): a(f"v_add_f32 v{y+r}, v{y+r}, v{t+2+r}")
        a(f"v_cvt_pk_bf16_f32 v{t+6}, v{y}, v{y+1}")
        a(f"v_cvt_pk_bf16_f32 v{t+7}, v{y+2}, v{y+3}")
        a(f"ds_write_b64 v237, v[{t+6}:{t+7}] offset:{512*c}")
        if c % 2 == 1:
            k = c//2
            a(f"ds_read_b128 v[{80+4*k}:{83+4*k}], v238 offset:{1024*k}", tag=("o", k))
    a(f"s_lshl_b32 s22, s{sD}, 12")
    a(f"s_add_u32 s22, s22, {WS_AT}")
    for k in range(4):
        a.wait("lg", ("o", k))
        a(f"buffer_store_dwordx4 v[{80+4*k}:{83+4*k}], v239, s[36:39], s22 offen offset:{1024*k} {SC}", tag="st")
    return a
```

```python
import sys, math
from common import *
from asmlib import Stream, resolve
import kconv

SC = "sc1"
NST = 10; SLOT = 32768; HS = 55296
WS_FL = 26 << 20
FL_R = WS_FL; FL_X = WS_FL + 1024; FL_T = WS_FL + 3072; FL_H = WS_FL + 4096; FL_Y = WS_FL + 8192
FL_P = WS_FL + 16384
OOB = "0x7f000000"
L_K = 98304; L_X = L_K + 3*kconv.KREG
L_LN = L_X
L_WF = 163328; L_CS = 163584
LDS_TOTAL = 163840
P = dict(GRS=12, GPRIO=2, LPRIO=3, KPRE=200, KSL=56, CPREF=1, LOCAL=1, WROT=1, XROT=1, PSLEEP=4, WWIN=24, NL=4, LDBG=0, FB=3, SPIN_MAX=20000, DBGOUT=0)
_l = [0]
def newlabel(p):
    _l[0] += 1; return f"{p}_{_l[0]}"

def spin_tail(a, again):
    out = newlabel("CT")
    a(f"s_cbranch_vccz {out}")
    a("s_add_u32 s79, s79, 1")
    a(f"s_cmp_lt_u32 s79, {P['SPIN_MAX']}")
    a(f"s_cbranch_scc1 {again}")
    a(out + ":")
def check_tags(a, regs, again):
    a(f"v_cmp_ne_u32 vcc, s100, v{regs[0]}")
    for r in regs[1:]:
        a(f"v_cmp_ne_u32 s[62:63], s100, v{r}")
        a("s_or_b64 vcc, vcc, s[62:63]")
    spin_tail(a, again)
def poll_global(a, loads, regs, preissued=False):
    L = newlabel("PG"); F = newlabel("PF")
    a(f"s_branch {F}")
    a(L + ":")
    a(f"s_sleep {P['PSLEEP']}")
    if not preissued: a(F + ":")
    for l in loads: a(l)
    if preissued: a(F + ":")
    a("s_waitcnt vmcnt(0)")
    check_tags(a, regs, L)
def spin_lds(a, vaddr, vtmp, sval):
    L = newlabel("SL"); O = newlabel("SO")
    a(L + ":")
    a(f"ds_read_b32 v{vtmp}, v{vaddr}")
    a("s_waitcnt lgkmcnt(0)")
    a(f"v_cmp_ne_u32 vcc, {sval}, v{vtmp}")
    a(f"s_cbranch_vccz {O}")
    a("s_sleep 1")
    a("s_add_u32 s79, s79, 1")
    a(f"s_cmp_lt_u32 s79, {10*P['SPIN_MAX']}")
    a(f"s_cbranch_scc1 {L}")
    a(O + ":")
def store1(a, val, soff, v0, fl):
    a(f"v_mov_b32 v{v0}, {val}")
    a(f"v_mov_b32 v{v0+1}, 0")
    a("s_mov_b64 exec, 1")
    a(f"buffer_store_dword v{v0}, v{v0+1}, s[36:39], {soff} offen {fl}")
    a("s_mov_b64 exec, -1")
def arrive(a, srdc, soff, count, flag_soff, v0):
    L = newlabel("AR")
    a(f"v_mov_b32 v{v0}, 1")
    a(f"v_mov_b32 v{v0+1}, 0")
    a("s_mov_b64 exec, 1")
    a(f"buffer_atomic_add v{v0}, v{v0+1}, s[{srdc}:{srdc+3}], {soff} offen sc0 sc1")
    a("s_waitcnt vmcnt(0)")
    if count & (count-1) == 0: a(f"v_and_b32 v{v0}, {count-1}, v{v0}")
    a(f"v_cmp_ne_u32 vcc, {count-1}, v{v0}")
    a(f"s_cbranch_vccnz {L}")
    a(f"v_mov_b32 v{v0}, s100")
    a(f"buffer_store_dword v{v0}, v{v0+1}, s[36:39], {flag_soff} offen {SC}")
    a(L + ":")
    a("s_mov_b64 exec, -1")
def ptr_rest(a):
    a(f"s_add_u32 s8, s6, {FL_R}")
    a("s_addc_u32 s9, s7, 0")
    a("s_load_dword s100, s[8:9], 0")
    srd(a, 36, 6, WS_SIZE)
def tag_ready(a):
    a("s_waitcnt lgkmcnt(0)")
    a("s_mul_i32 s100, s100, 1664525")
    a("s_add_u32 s100, s100, 1013904223")
    a("s_or_b32 s100, s100, 0x100")
def xcc_val(a, d):
    a(f"s_getreg_b32 {d}, hwreg(HW_REG_XCC_ID, 0, 4)")
    a(f"s_add_u32 {d}, {d}, 1")
    a(f"s_xor_b32 {d}, {d}, s100")

def setup(a):
    a("s_cmp_ge_u32 s2, 256")
    a("s_cbranch_scc1 M_END")
    stamp(a, 0)
    a("s_load_dwordx2 s[6:7], s[0:1], 128")
    a("s_load_dwordx2 s[4:5], s[0:1], 0")
    a("s_load_dwordx8 s[48:55], s[0:1], 80")
    a("s_load_dwordx16 s[60:75], s[0:1], 8")
    a("s_mov_b32 s79, 0")
    a("v_and_b32 v1, 63, v0")
    a("v_lshrrev_b32 v6, 6, v0")
    a("v_readfirstlane_b32 s12, v6")
    a("s_and_b32 s3, s2, 7")
    a("s_lshr_b32 s14, s2, 3")
    a("s_lshl_b32 s101, s3, 5")
    a("s_add_u32 s101, s101, s14")
    a("s_and_b32 s17, s14, 1")
    a("s_lshl_b32 s15, s3, 1")
    a("s_add_u32 s15, s15, s17")
    a("s_lshr_b32 s16, s14, 1")
    a("s_and_b32 s22, s14, 3")
    a("s_lshl_b32 s44, s3, 2")
    a("s_add_u32 s44, s44, s22")
    a("s_lshr_b32 s45, s14, 2")
    a("s_and_b32 s13, s12, 3")

vACC = 16; vCS = 80; vFR = 96; vONE = 160; vGRN = 164; vB1 = 172; vTB = 176
def G_setup(a):
    a("s_lshr_b32 s18, s13, 1")
    a("s_and_b32 s19, s13, 1")
    a("v_and_b32 v10, 15, v1")
    a("v_lshrrev_b32 v11, 4, v1")
    a("v_lshlrev_b32 v12, 1, v10")
    a("s_lshl_b32 s22, s16, 8")
    a("s_lshl_b32 s23, s19, 7")
    a("s_add_u32 s22, s22, s23")
    srd(a, 32, 50, 3456)
    for c in range(4):
        a(f"buffer_load_ushort v{vB1+c}, v12, s[32:35], s22 offen offset:{32*c}")
    ptr_rest(a)
    a("v_lshrrev_b32 v12, 2, v1")
    a("v_and_b32 v13, 7, v12")
    a("s_lshl_b32 s22, s19, 2")
    a("v_xor_b32 v13, s22, v13")
    a("v_lshlrev_b32 v13, 5, v13")
    a("v_lshl_add_u32 v13, v12, 8, v13")
    a("v_and_b32 v12, 3, v1")
    a("v_lshl_add_u32 v13, v12, 3, v13")
    a("v_add_u32 v2, 16384, v13")
    for c in range(1, 4): a(f"v_xor_b32 v{2+c}, {32*c}, v2")
    a("v_lshrrev_b32 v12, 1, v10")
    a("v_xor_b32 v12, v12, v11")
    a("v_lshlrev_b32 v12, 4, v12")
    a("v_and_b32 v13, 7, v10")
    a("v_lshl_add_u32 v12, v13, 7, v12")
    a("v_lshrrev_b32 v13, 3, v10")
    a("v_lshl_add_u32 v12, v13, 12, v12")
    a("s_lshl_b32 s22, s18, 13")
    a("v_add_u32 v8, s22, v12")
    a("v_xor_b32 v9, 64, v8")
    a("v_lshlrev_b32 v14, 4, v1")
    a("v_lshlrev_b32 v15, 3, v10")
    a("s_lshl_b32 s60, s15, 10")
    a("s_lshl_b32 s22, s18, 9")
    a("s_add_u32 s60, s60, s22")
    a(f"s_add_u32 s60, s60, {WS_STATS}")
    a("s_add_u32 s62, s60, 65536")
    a("v_and_b32 v13, 31, v1")
    a("v_lshlrev_b32 v13, 2, v13")
    a("s_lshl_b32 s61, s3, 7")
    a(f"s_add_u32 s61, s61, {FL_T}")
    for r in range(vACC, vACC+80): a(f"v_mov_b32 v{r}, 0")
    for r in range(4): a(f"v_mov_b32 v{vONE+r}, 0x3f803f80")
    tag_ready(a)

def G_loop(a):
    def reads(s):
        t, ks2 = divmod(s, 2)
        off = ((t % 3) % 2)*SLOT
        b = vFR + (s % 2)*32
        L = []
        for c in range(4):
            L.append(f"ds_read_b64_tr_b16 v[{b+4*c}:{b+4*c+1}], v{2+c} offset:{off + ks2*8192}")
            L.append(f"ds_read_b64_tr_b16 v[{b+4*c+2}:{b+4*c+3}], v{2+c} offset:{off + ks2*8192 + 4096}")
            L.append(f"ds_read_b128 v[{b+16+4*c}:{b+16+4*c+3}], v{8+ks2} offset:{off + c*1024}")
        return L
    stamp(a, 2)
    for x in reads(0): a(x)
    for s in range(20):
        t, ks2 = divmod(s, 2)
        b = vFR + (s % 2)*32
        a("s_waitcnt lgkmcnt(0)")
        pre = []
        if ks2 == 1 and t+1 < NST:
            a("s_barrier")
            if (t+1) % 3 != 1 and t+1 < NST:
                pre = [f"v_xor_b32 v{r}, 0x10000, v{r}" for r in (2, 8, 3, 4, 5, 9)]
        rr = reads(s+1) if s+1 < 20 else []
        if s == P["GRS"]:
            for rt in range(4):
                rr.append(f"buffer_load_dwordx2 v[{vGRN+2*rt}:{vGRN+1+2*rt}], v15, s[36:39], s62 offen offset:{128*rt} {SC}")
            rr.append(f"buffer_load_dword v{vTB}, v13, s[36:39], s61 offen {SC}")
        mm = []
        for c in range(4):
            for rt in range(4):
                acc = vACC + (rt*4+c)*4
                mm.append(f"v_mfma_f32_16x16x32_bf16 v[{acc}:{acc+3}], v[{b+4*c}:{b+4*c+3}], v[{b+16+4*rt}:{b+16+4*rt+3}], v[{acc}:{acc+3}]")
            mm.append(f"v_mfma_f32_16x16x32_bf16 v[{vCS+4*c}:{vCS+4*c+3}], v[{vONE}:{vONE+3}], v[{b+4*c}:{b+4*c+3}], v[{vCS+4*c}:{vCS+4*c+3}]")
        fill = [pre[i:i+2] for i in range(0, len(pre), 2)] + [[x] for x in rr]
        assert len(fill) <= len(mm)
        for i, x in enumerate(mm):
            a(x)
            if i < len(fill):
                for y in fill[i]: a(y)
    stamp(a, 3)

def G_gelu(a):
    vA = 96; vB = 104; vK = 112; vT = 124; vO = 132
    a("s_mov_b32 s65, 0xffff0000")
    a("v_cmp_gt_u32 s[70:71], 16, v1")
    a("s_mov_b32 s66, 0x01000100")
    for rt in range(4):
        g = vGRN+2*rt
        a(f"v_perm_b32 v{vB+2*rt}, v{g}, v{g}, s66")
        a(f"v_xor_b32 v{vB+2*rt}, 0x80008000, v{vB+2*rt}")
        a(f"v_lshrrev_b32 v{vB+2*rt+1}, 16, v{g}")
    for c in range(4):
        cs = vCS+4*c
        a(f"v_cvt_pk_bf16_f32 v{cs+1}, v{cs}, v{cs}")
        a(f"v_and_b32 v{cs+1}, s65, v{cs+1}")
        a(f"v_sub_f32 v{cs+1}, v{cs}, v{cs+1}")
        a(f"v_cvt_pk_bf16_f32 v{cs+2}, v{cs}, v{cs+1}")
        a(f"v_cndmask_b32 v{vA+2*c}, 0, v{cs+2}, s[70:71]")
        a(f"v_cndmask_b32 v{vA+2*c+1}, 0, v{vB1+c}, s[70:71]")
    for rt in range(4):
        for c in range(4):
            acc = vACC + (rt*4+c)*4
            a(f"v_mfma_f32_16x16x16_bf16 v[{acc}:{acc+3}], v[{vA+2*c}:{vA+2*c+1}], v[{vB+2*rt}:{vB+2*rt+1}], v[{acc}:{acc+3}]")
        g = vGRN+2*rt; k = vK+3*rt
        a(f"v_and_b32 v{k+2}, s65, v{g}")
        a(f"v_rcp_f32 v{k}, v{k+2}")
        a(f"v_mul_f32 v{k+1}, v{k}, v{k}")
        a(f"v_mul_f32 v{k+1}, v{k+1}, v{k}")
        a(f"v_mul_f32 v{k+1}, {f32bits(GELU_K2)}, v{k+1}")
        a(f"v_mul_f32 v{k}, {f32bits(GELU_K1)}, v{k}")
    a("s_lshl_b32 s66, s15, 3")
    a("s_lshl_b32 s67, s18, 2")
    a("s_add_u32 s66, s66, s67")
    a(f"s_mul_i32 s66, s66, {HS}")
    a("s_lshl_b32 s67, s16, 12")
    a("s_add_u32 s66, s66, s67")
    a("s_lshl_b32 s67, s19, 11")
    a("s_add_u32 s66, s66, s67")
    a("s_cmp_lg_u32 s69, 0")
    a(f"s_cselect_b32 s67, s66, {OOB}")
    a(f"s_cselect_b32 s66, {OOB}, s66")
    for rt in range(4):
        k = vK+3*rt
        for p in range(2):
            accs = [vACC + (rt*4+2*p)*4 + r for r in range(8)]
            ts = [vT + r for r in range(8)]
            for x, t in zip(accs, ts): a(f"v_mul_f32 v{t}, v{x}, v{x}")
            for x, t in zip(accs, ts): a(f"v_fma_f32 v{t}, v{t}, v{k+1}, v{k}")
            for x, t in zip(accs, ts): a(f"v_mul_f32 v{t}, v{x}, v{t}")
            for x, t in zip(accs, ts): a(f"v_exp_f32 v{t}, v{t}")
            for x, t in zip(accs, ts): a(f"v_fma_f32 v{t}, v{t}, v{k+2}, v{k+2}")
            for x, t in zip(accs, ts): a(f"v_rcp_f32 v{t}, v{t}")
            for x, t in zip(accs, ts): a(f"v_mul_f32 v{x}, v{x}, v{t}")
            o = vO + 4*p
            for i in range(4): a(f"v_cvt_pk_bf16_f32 v{o+i}, v{accs[2*i]}, v{accs[2*i+1]}")
            a(f"buffer_store_dwordx4 v[{o}:{o+3}], v14, s[36:39], s66 offen offset:{1024*p}")
            a(f"buffer_store_dwordx4 v[{o}:{o+3}], v14, s[36:39], s67 offen offset:{1024*p} {SC}")
        if rt < 3: a(f"s_add_u32 s66, s66, {HS}"); a(f"s_add_u32 s67, s67, {HS}")

vW = 160; vH = 96
def g2_rot(a):
    a("s_and_b32 s46, s44, 3")
    a("s_mul_i32 s46, s46, 7")
    a(f"s_mul_i32 s22, s3, {P['WROT']}")
    a("s_add_u32 s46, s46, s22")
    a("s_lshr_b32 s46, s46, 1")
    a("s_mul_i32 s22, s46, 4682")
    a("s_lshr_b32 s22, s22, 16")
    a("s_mul_i32 s22, s22, 14")
    a("s_sub_u32 s46, s46, s22")
    a(f"s_mul_i32 s57, s45, {5*HS}")
    a(f"s_add_u32 s57, s57, {WS_W2P}")
def g2_addr(a):
    a("v_lshlrev_b32 v2, 4, v1")
    for dl in range(1, 5): a(f"v_add_u32 v{2+dl}, {dl*HS}, v2")
    for li in range(4):
        a(f"s_add_u32 s22, s13, {li}")
        a("s_and_b32 s22, s22, 3")
        a(f"s_mul_i32 s22, s22, {HS}")
        a(f"v_add_u32 v{7+li}, s22, v2")
    g2_rot(a)
    a("s_mov_b32 s47, s46")
    a("s_mul_i32 s22, s13, 14336")
    a(f"s_mul_i32 s56, s44, {4*HS}")
    a("s_add_u32 s56, s56, s22")
    a("s_add_u32 s57, s57, s22")
    a("s_cmp_eq_u32 s13, 3")
    a("s_cselect_b32 s64, 12, 14")
def adv(a, s):
    a(f"s_add_u32 {s}, {s}, 1")
    a(f"s_cmp_eq_u32 {s}, 14")
    a(f"s_cselect_b32 {s}, 0, {s}")
def issue_w(a, i):
    b = vW + (i % 4)*20
    a("s_lshl_b32 s23, s47, 10")
    a("s_add_u32 s23, s23, s57")
    a("s_cmp_lt_u32 s47, s64")
    a(f"s_cselect_b32 s23, s23, {OOB}")
    for dl in range(5):
        a(f"buffer_load_dwordx4 v[{b+4*dl}:{b+3+4*dl}], v{2+dl}, s[36:39], s23 offen {SC}", tag=("k", i))
    adv(a, "s47")
def issue_h(a, i):
    b = vH + (i % 4)*16
    a("s_lshl_b32 s22, s46, 10")
    a("s_add_u32 s22, s22, s56")
    a("s_cmp_lt_u32 s46, s64")
    a(f"s_cselect_b32 s22, s22, {OOB}")
    for li in range(4):
        a(f"buffer_load_dwordx4 v[{b+4*li}:{b+3+4*li}], v{7+li}, s[36:39], s22 offen {SC}", tag=("k", i))
    adv(a, "s46")

def G2(a):
    NL = P["NL"]
    a("s_load_dwordx4 s[8:11], s[0:1], 104")
    a("s_load_dwordx2 s[4:5], s[0:1], 0")
    g2_addr(a)
    a("s_waitcnt lgkmcnt(0)")
    srd(a, 48, 10, 2048*1280)
    srd(a, 52, 8, 1280)
    srd(a, 24, 4, 2048*1280)
    a("v_and_b32 v13, 7, v1")
    a("v_lshlrev_b32 v13, 7, v13")
    a(f"s_mov_b32 s59, {FL_X+1024}")
    poll_global(a, [f"buffer_load_dword v15, v13, s[36:39], s59 offen {SC}"], [15])
    st = Stream()
    for i in range(4): issue_w(st, i)
    for r in range(16, 96): st(f"v_mov_b32 v{r}, 0")
    st("v_min_u32 v13, 26, v1")
    st("v_lshlrev_b32 v13, 2, v13")
    st("s_lshl_b32 s59, s44, 7")
    st(f"s_add_u32 s59, s59, {FL_H}")
    resolve(st.items, a)
    poll_global(a, [f"buffer_load_dword v15, v13, s[36:39], s59 offen {SC}"], [15])
    vX = 240; vB2 = 128
    st = Stream()
    for i in range(4): issue_h(st, i)
    stamp(st, 6)
    st("v_and_b32 v11, 15, v1")
    st("v_lshrrev_b32 v12, 4, v1")
    st("v_mul_u32_u24 v13, 1280, v11")
    st("v_lshl_add_u32 v13, v12, 3, v13")
    st("s_lshl_b32 s58, s44, 2")
    st("s_add_u32 s58, s58, s13")
    st("s_mul_i32 s58, s58, 20480")
    st("s_mul_i32 s22, s45, 160")
    st("s_add_u32 s58, s58, s22")
    st("v_mov_b32 v15, 0")
    st("s_lshl_b32 s59, s45, 7")
    st(f"s_add_u32 s59, s59, {FL_Y}")
    st("v_lshrrev_b32 v11, 1, v1")
    st("v_lshlrev_b32 v11, 12, v11")
    st("v_and_b32 v14, 1, v1")
    st("v_lshl_add_u32 v11, v14, 4, v11")
    st(f"s_mul_i32 s61, s45, {80*4096}")
    st("s_lshl_b32 s23, s44, 2")
    st("s_add_u32 s23, s23, s13")
    st("s_lshl_b32 s23, s23, 5")
    st("s_add_u32 s61, s61, s23")
    st(f"s_add_u32 s61, s61, {WS_AT}")
    st("v_lshlrev_b32 v14, 3, v12")
    st("s_mul_i32 s22, s13, 15360")
    st(f"s_add_u32 s22, s22, {SLOT}")
    st("v_add_u32 v250, s22, v2")
    st("s_mul_i32 s22, s13, 5120")
    st(f"s_add_u32 s22, s22, {L_X}")
    st("v_add_u32 v253, s22, v2")
    st(f"v_mov_b32 v251, {L_WF}")
    def step(st, i):
        bw = vW + (i % 4)*20; bh = vH + (i % 4)*16
        st.wait("vm", ("k", i))
        st.wait("lg", ("kl", i))
        for dl in range(5):
            for li in range(4):
                c = vACC + (li*5+dl)*4
                st(f"v_mfma_f32_16x16x32_bf16 v[{c}:{c+3}], v[{bw+4*dl}:{bw+3+4*dl}], v[{bh+4*li}:{bh+3+4*li}], v[{c}:{c+3}]")
        if i + 4 < 14:
            issue_h(st, i + 4)
            if i < NL:
                if i == 0: spin_lds(st, 251, 252, "s100")
                for dl in range(5):
                    if i == 0: st(f"ds_read_b128 v[{bw+4*dl}:{bw+3+4*dl}], v253 offset:{dl*1024}", tag=("kl", i+4))
                    else: st(f"ds_read_b128 v[{bw+4*dl}:{bw+3+4*dl}], v250 offset:{(i-1)*5120 + dl*1024}", tag=("kl", i+4))
                adv(st, "s47")
            else:
                issue_w(st, i + 4)
    ypoll = f"buffer_load_dword v140, v15, s[36:39], s59 offen {SC}"
    for i in range(13):
        step(st, i)
        if i == 10:
            st(ypoll, tag="y")
            st("s_mul_i32 s22, s45, 160")
            for dl in range(5):
                st(f"buffer_load_dwordx2 v[{vB2+2*dl}:{vB2+1+2*dl}], v14, s[52:55], s22 offen offset:{32*dl}", tag="x")
            for dl in range(5):
                st(f"buffer_load_dwordx2 v[{vX+2*dl}:{vX+1+2*dl}], v13, s[24:27], s58 offen offset:{32*dl}", tag="x")
    st.wait("vm", "y")
    resolve(st.items, a)
    a("v_cmp_ne_u32 vcc, s100, v140")
    a("s_cbranch_vccz Y_OK")
    poll_global(a, [ypoll], [140])
    a.label("Y_OK")
    st = Stream()
    stamp(st, 7)
    AT = 144
    for i in range(3):
        if i == 2: st("s_mov_b32 exec_hi, 0")
        st(f"buffer_load_dwordx4 v[{AT+4*i}:{AT+3+4*i}], v11, s[36:39], s61 offen {SC}", tag="at")
        if i < 2: st(f"s_add_u32 s61, s61, {32*4096}")
    st("s_mov_b64 exec, -1")
    step(st, 13)
    st("s_barrier")
    stamp(st, 8)
    ATOFF = 61440
    for li in range(1, 4):
        st(f"s_add_u32 s22, s13, {li}")
        st("s_and_b32 s22, s22, 3")
        st("s_mul_i32 s22, s22, 15360")
        st(f"s_add_u32 s22, s22, {(li-1)*5120}")
        st("v_add_u32 v15, s22, v2")
        for dl in range(5):
            c = vACC + (li*5+dl)*4
            st(f"ds_write_b128 v15, v[{c}:{c+3}] offset:{dl*1024}")
    st("s_mul_i32 s22, s13, 3072")
    st(f"s_add_u32 s22, s22, {ATOFF}")
    st("v_add_u32 v14, s22, v2")
    st("v_lshlrev_b32 v12, 3, v1")
    st("v_add_u32 v12, s22, v12")
    st("s_mov_b32 s59, 0xffff0000")
    def unpack(dst, src):
        st(f"v_lshlrev_b32 v{dst}, 16, v{src}")
        st(f"v_and_b32 v{dst+1}, s59, v{src}")
        st(f"v_lshlrev_b32 v{dst+2}, 16, v{src+1}")
        st(f"v_and_b32 v{dst+3}, s59, v{src+1}")
    st.waitall("lg")
    st("s_barrier")
    st("s_mul_i32 s22, s13, 15360")
    st("v_add_u32 v15, s22, v2")
    RB = 36
    for k in range(15):
        st(f"ds_read_b128 v[{RB+4*k}:{RB+3+4*k}], v15 offset:{k*1024}", tag=("r", k))
    st.waitall("vm")
    for i in range(3):
        st(f"ds_write_b128 v14, v[{AT+4*i}:{AT+3+4*i}] offset:{i*1024}", tag="atw")
    for dl in range(5):
        st(f"ds_read_b64_tr_b16 v[{110+2*dl}:{111+2*dl}], v12 offset:{dl*512}", tag=("atr", dl))
    XU = 160; BU = 180; AU = 200
    for dl in range(5):
        unpack(XU+4*dl, vX+2*dl); unpack(BU+4*dl, vB2+2*dl)
    for k in range(15):
        st.wait("lg", ("r", k))
        c = vACC + (k % 5)*4
        for r in range(4): st(f"v_add_f32 v{c+r}, v{c+r}, v{RB+4*k+r}")
    for dl in range(5):
        c = vACC + dl*4; t = 96 + 2*dl
        st(f"v_cvt_pk_bf16_f32 v{t}, v{c}, v{c+1}")
        st(f"v_cvt_pk_bf16_f32 v{t+1}, v{c+2}, v{c+3}")
    for dl in range(5):
        st.wait("lg", ("atr", dl))
        unpack(AU+4*dl, 110+2*dl)
        unpack(vACC+4*dl, 96+2*dl)
    for r in range(20):
        st(f"v_add_f32 v{XU+r}, v{XU+r}, v{AU+r}")
        st(f"v_add_f32 v{vACC+r}, v{vACC+r}, v{BU+r}")
    for i in range(10):
        st(f"v_cvt_pk_bf16_f32 v{96+i}, v{vACC+2*i}, v{vACC+2*i+1}")
        st(f"v_cvt_pk_bf16_f32 v{110+i}, v{XU+2*i}, v{XU+2*i+1}")
    for dl in range(5):
        unpack(vACC+4*dl, 96+2*dl); unpack(XU+4*dl, 110+2*dl)
        for r in range(4): st(f"v_add_f32 v{vACC+4*dl+r}, v{vACC+4*dl+r}, v{XU+4*dl+r}")
        st(f"v_cvt_pk_bf16_f32 v{220+2*dl}, v{vACC+4*dl}, v{vACC+4*dl+1}")
        st(f"v_cvt_pk_bf16_f32 v{221+2*dl}, v{vACC+4*dl+2}, v{vACC+4*dl+3}")
        st(f"buffer_store_dwordx2 v[{220+2*dl}:{221+2*dl}], v13, s[48:51], s58 offen offset:{32*dl}")
    if Cfg.PROF: st.waitall("vm")
    stamp(st, 9)
    resolve(st.items, a)
    a("s_or_b32 s22, s2, s12")
    a("s_cmp_lg_u32 s22, 0")
    a("s_cbranch_scc1 G_NOR")
    a("v_and_b32 v3, 7, v1")
    a("v_lshlrev_b32 v3, 7, v3")
    a(f"s_mov_b32 s59, {FL_Y}")
    poll_global(a, [f"buffer_load_dword v4, v3, s[36:39], s59 offen {SC}"], [4])
    a(f"s_mov_b32 s22, {FL_R}")
    store1(a, "s100", "s22", 4, SC)
    a.label("G_NOR")
    prof_flush(a, 10, 36, 12)
    if P["DBGOUT"]:
        a("s_cmp_lg_u32 s2, 9"); a("s_cbranch_scc1 DBG_E")
        a("s_cmp_lg_u32 s12, 0"); a("s_cbranch_scc1 DBG_E")
        a("s_load_dwordx2 s[8:9], s[0:1], 120"); a("s_waitcnt lgkmcnt(0)")
        srd(a, 40, 8, 256)
        a("v_mov_b32 v1, 0"); a("s_mov_b64 exec, 1")
        for i, slot in zip(range(1, 10), [1, 2, 3, 5, 6, 7, 9, 10, 11]):
            a(f"s_sub_u32 s22, s{80+2*i}, s80"); a("v_mov_b32 v2, s22")
            a(f"buffer_store_dword v2, v1, s[40:43], 0 offen offset:{4*slot}")
        a.label("DBG_E")
    a("s_endpgm")

vR = 200; vT = 212
def G_stub(a):
    a("v_lshrrev_b32 v6, 5, v1")
    a("v_and_b32 v7, 31, v1")
    a("v_mul_u32_u24 v2, 1280, v6")
    a("v_lshl_add_u32 v2, v7, 3, v2")
    a("s_mul_i32 s22, s101, 10240")
    a("s_mul_i32 s23, s13, 2560")
    a("s_add_u32 s22, s22, s23")
    a("s_waitcnt lgkmcnt(0)")
    srd(a, 24, 4, 2048*1280)
    for k in range(5):
        a(f"buffer_load_dwordx2 v[{vR+2*k}:{vR+1+2*k}], v2, s[24:27], s22 offen offset:{256*k}")
    a("s_cmp_lt_u32 s14, 28")
    a("s_cbranch_scc1 M_G")
    a("s_branch M_CS")
def LN1(a, younger):
    a(f"v_mov_b32 v{vT+8}, 0x3f803f80")
    a(f"v_mov_b32 v{vT+9}, 0xffff0000")
    for k in range(4): a(f"v_mov_b32 v{vT+k}, 0")
    a("s_mul_i32 s22, s13, 2688")
    a(f"s_add_u32 s22, s22, {L_LN}")
    a(f"v_mul_u32_u24 v{vT+14}, 1344, v6")
    a(f"v_lshl_add_u32 v{vT+14}, v7, 3, v{vT+14}")
    a(f"v_add_u32 v{vT+14}, s22, v{vT+14}")
    a(f"v_lshlrev_b32 v{vT+15}, 3, v6")
    a("s_lshl_b32 s22, s101, 6")
    a("s_lshl_b32 s23, s13, 4")
    a("s_add_u32 s22, s22, s23")
    a(f"s_add_u32 s22, s22, {WS_STATS}")
    a("s_add_u32 s23, s22, 65536")
    a(f"s_waitcnt vmcnt({younger})")
    for k in range(10):
        a(f"v_dot2_f32_bf16 v{vT+(k&1)}, v{vR+k}, v{vT+8}, v{vT+(k&1)}")
        a(f"v_dot2_f32_bf16 v{vT+2+(k&1)}, v{vR+k}, v{vR+k}, v{vT+2+(k&1)}")
    m = vT; q = vT+2
    a(f"v_add_f32 v{m}, v{m}, v{m+1}")
    a(f"v_add_f32 v{q}, v{q}, v{q+1}")
    for dpp in ("quad_perm:[1,0,3,2]", "quad_perm:[2,3,0,1]", "row_half_mirror", "row_mirror"):
        a(f"v_add_f32_dpp v{m}, v{m}, v{m} {dpp} row_mask:0xf bank_mask:0xf")
        a(f"v_add_f32_dpp v{q}, v{q}, v{q} {dpp} row_mask:0xf bank_mask:0xf")
    a(f"v_mov_b32 v{m+1}, v{m}")
    a(f"v_mov_b32 v{q+1}, v{q}")
    a(f"v_permlane16_swap_b32 v{m}, v{m+1}")
    a(f"v_permlane16_swap_b32 v{q}, v{q+1}")
    a(f"v_add_f32 v{m}, v{m}, v{m+1}")
    a(f"v_add_f32 v{q}, v{q}, v{q+1}")
    def rbf(r):
        a(f"v_cvt_pk_bf16_f32 v{r}, v{r}, v{r}")
        a(f"v_lshlrev_b32 v{r}, 16, v{r}")
    a(f"v_mul_f32 v{m}, {f32bits(1/640.)}, v{m}")
    a(f"v_mul_f32 v{q}, {f32bits(1/640.)}, v{q}")
    a(f"v_fma_f32 v{q}, -v{m}, v{m}, v{q}")
    a(f"v_max_f32 v{q}, 0, v{q}")
    rbf(q)
    a(f"v_add_f32 v{q}, {f32bits(1e-5)}, v{q}")
    rbf(q)
    a(f"v_sqrt_f32 v{q}, v{q}")
    a(f"v_mov_b32 v{vT+5}, s100")
    a(f"v_cvt_pk_bf16_f32 v{vT+4}, v{m}, v{q}")
    a("s_mov_b32 exec_lo, 1")
    a("s_mov_b32 exec_hi, 1")
    a(f"buffer_store_dwordx2 v[{vT+4}:{vT+5}], v{vT+15}, s[36:39], s22 offen {SC}")
    a(f"buffer_store_dwordx2 v[{vT+4}:{vT+5}], v{vT+15}, s[36:39], s23 offen")
    a("s_mov_b64 exec, -1")
    a(f"v_and_b32 v{q}, v{vT+9}, v{vT+4}")
    a(f"v_lshlrev_b32 v{m}, 16, v{vT+4}")
    a(f"v_rcp_f32 v{q}, v{q}")
    for k2 in range(5):
        xs = [vR+2*k2, vR+2*k2+1]; ts = [(vT+10, vT+11), (vT+12, vT+13)]
        def two(fmt):
            for x, (t0, t1) in zip(xs, ts): a(fmt.format(x=x, t0=t0, t1=t1, m=m, q=q, k=vT+9))
        two("v_lshlrev_b32 v{t0}, 16, v{x}")
        two("v_and_b32 v{t1}, v{k}, v{x}")
        two("v_sub_f32 v{t0}, v{t0}, v{m}")
        two("v_sub_f32 v{t1}, v{t1}, v{m}")
        two("v_cvt_pk_bf16_f32 v{x}, v{t0}, v{t1}")
        two("v_lshlrev_b32 v{t0}, 16, v{x}")
        two("v_and_b32 v{t1}, v{k}, v{x}")
        two("v_mul_f32 v{t0}, v{t0}, v{q}")
        two("v_mul_f32 v{t1}, v{t1}, v{q}")
        two("v_cvt_pk_bf16_f32 v{x}, v{t0}, v{t1}")
        a(f"ds_write_b64 v{vT+14}, v[{xs[0]}:{xs[1]}] offset:{256*k2}")
    a("s_waitcnt lgkmcnt(0)")
def LN2(a, vb):
    a(f"v_bfe_u32 v{vb}, v1, 2, 2")
    a(f"v_mul_u32_u24 v{vb+1}, 1344, v{vb}")
    a(f"v_lshrrev_b32 v{vb}, 4, v1")
    a(f"v_lshl_add_u32 v{vb+1}, v{vb}, 5, v{vb+1}")
    a(f"v_and_b32 v{vb}, 3, v1")
    a(f"v_lshl_add_u32 v{vb+1}, v{vb}, 3, v{vb+1}")
    a(f"v_add_u32 v{vb+1}, {L_LN}, v{vb+1}")
    a(f"v_lshlrev_b32 v{vb+2}, 4, v1")
    a("s_mul_i32 s22, s101, 10240")
    a(f"s_add_u32 s22, s22, {WS_XNT}")
    st = Stream()
    for c in range(10):
        b = vb+4+4*c
        st(f"ds_read_b64_tr_b16 v[{b}:{b+1}], v{vb+1} offset:{c*128}", tag=("l2", c))
        st(f"ds_read_b64_tr_b16 v[{b+2}:{b+3}], v{vb+1} offset:{c*128+4*1344}", tag=("l2", c))
    for c in range(10):
        b = vb+4+4*c
        st.wait("lg", ("l2", c))
        st(f"buffer_store_dwordx4 v[{b}:{b+3}], v{vb+2}, s[36:39], s22 offen offset:{1024*(c%4)} {SC}")
        if c % 4 == 3: st("s_add_u32 s22, s22, 4096")
    resolve(st.items, a)
def p_signal(a, sidx, off, v0):
    a("s_lshl_b32 s22, s3, 10")
    a(f"s_lshl_b32 s23, {sidx}, 2")
    a("s_add_u32 s22, s22, s23")
    a(f"s_add_u32 s22, s22, {FL_P + off}")
    a("s_add_u32 s23, s22, 8192")
    a(f"v_mov_b32 v{v0}, s100")
    a(f"v_mov_b32 v{v0+1}, 0")
    a("s_mov_b64 exec, 1")
    a("s_waitcnt vmcnt(0)")
    a(f"buffer_store_dword v{v0}, v{v0+1}, s[36:39], s22 offen")
    a(f"buffer_store_dword v{v0}, v{v0+1}, s[36:39], s23 offen {SC}")
    a("s_mov_b64 exec, -1")
def leader(a, off, n4, gflag, v0, sleep=2):
    L = newlabel("LD")
    a(f"v_min_u32 v{v0}, {n4-1}, v1")
    a(f"v_lshlrev_b32 v{v0}, 4, v{v0}")
    a("s_lshl_b32 s20, s3, 10")
    a(f"s_add_u32 s20, s20, {FL_P + off}")
    a("s_mov_b32 s21, 0")
    a(L + ":")
    a(f"s_sleep {sleep}")
    a("s_add_u32 s21, s21, 1")
    a("s_and_b32 s22, s21, 31")
    a("s_cmp_eq_u32 s22, 0")
    a("s_cselect_b32 s22, 8192, 0")
    a("s_add_u32 s22, s22, s20")
    a(f"buffer_load_dwordx4 v[{v0+2}:{v0+5}], v{v0}, s[36:39], s22 offen {SC}")
    a("s_waitcnt vmcnt(0)")
    check_tags(a, [v0+2, v0+3, v0+4, v0+5], L)
    a("s_lshl_b32 s22, s3, 7")
    a(f"s_add_u32 s22, s22, {gflag}")
    store1(a, "s100", "s22", v0, SC)

def C_stub(a):
    st = Stream()
    srd(st, 40, 52, 1728*1280)
    st("s_lshl_b32 s18, s44, 2")
    st("s_add_u32 s18, s18, s13")
    st("s_mul_i32 s19, s13, 20480")
    st("v_lshrrev_b32 v8, 3, v1")
    st("v_and_b32 v9, 7, v1")
    st("v_mul_u32_u24 v8, 1280, v8")
    st("v_lshl_add_u32 v8, v9, 4, v8")
    NB = 5
    st("s_lshr_b32 s21, s18, 1")
    st("s_and_b32 s20, s18, 1")
    st("s_mul_i32 s22, s20, 640")
    st("s_mul_i32 s23, s21, 40960")
    st("s_add_u32 s22, s22, s23")
    for k in range(4):
        for i in range(NB):
            st(f"s_add_u32 m0, s19, {i*4096 + k*1024 - 128*i}")
            st("s_nop 0")
            st(f"buffer_load_dwordx4 v8, s[40:43], s22 offen offset:{128*i} lds")
        if k < 3: st("s_add_u32 s22, s22, 10240")
    st(f"s_mul_i32 s64, s20, {20*HS}")
    st("s_lshl_b32 s23, s21, 10")
    st("s_add_u32 s64, s64, s23")
    st(f"s_add_u32 s64, s64, {WS_W2P}")
    st("s_cmp_lt_u32 s21, 54")
    st(f"s_cselect_b32 s64, s64, {OOB}")
    for i in range(1, NB): st(f"s_add_u32 s{64+i}, s64, {i*4*HS}")
    resolve(st.items, a)
    a("s_branch GC")
def C_work(a):
    st = Stream()
    NB = 5
    ptr_rest(st)
    st("v_lshrrev_b32 v9, 2, v1")
    st("v_lshlrev_b32 v10, 7, v9")
    st("v_and_b32 v9, 3, v1")
    st("v_lshl_add_u32 v10, v9, 3, v10")
    st("v_add_u32 v10, s19, v10")
    st("v_lshlrev_b32 v12, 4, v1")
    for dl in range(1, 4): st(f"v_add_u32 v{12+dl}, {dl*HS}, v12")
    tag_ready(st)
    LN1(st, 20)
    st("s_barrier")
    for i in range(NB):
        st.wait("vm", ("wl", i))
        b = 16 + i*16
        for dl in range(4):
            st(f"ds_read_b64_tr_b16 v[{b+4*dl}:{b+4*dl+1}], v10 offset:{i*4096 + 32*dl}", tag=("wr", i, dl))
            st(f"ds_read_b64_tr_b16 v[{b+4*dl+2}:{b+4*dl+3}], v10 offset:{i*4096 + 32*dl + 2048}", tag=("wr", i, dl))
        for dl in range(4):
            st.wait("lg", ("wr", i, dl))
            st(f"buffer_store_dwordx4 v[{b+4*dl}:{b+4*dl+3}], v{12+dl}, s[36:39], s{64+i} offen {SC}")
    stamp(st, 1)
    resolve(st.items, a, vmq=[("wl", i) for k in range(4) for i in range(NB)])
    a("s_and_b32 s21, s18, 15")
    p_signal(a, "s21", 128, 204)
    stamp(a, 2)

def emit_G(a):
    a(f"s_setprio {P['GPRIO']}")
    G_setup(a)
    LN1(a, 4)
    stamp(a, 1)
    a("s_barrier")
    a("s_lshl_b32 s22, s16, 1")
    a("s_add_u32 s22, s22, s19")
    a("s_cmp_eq_u32 s22, 27")
    a("s_cbranch_scc1 G_SKIP")
    G_loop(a)
    poll_global(a, [f"buffer_load_dwordx2 v[{vGRN+2*rt}:{vGRN+1+2*rt}], v15, s[36:39], s60 offen offset:{128*rt} {SC}" for rt in range(4)],
                [vGRN+1, vGRN+3, vGRN+5, vGRN+7], preissued=True)
    xcc_val(a, "s22")
    a(f"v_cmp_ne_u32 vcc, s22, v{vTB}")
    a("s_or_b32 s69, vcc_lo, vcc_hi")
    if not P["LOCAL"]: a("s_mov_b32 s69, 1")
    G_gelu(a)
    stamp(a, 4)
    a("s_lshl_b32 s22, s15, 1")
    a("s_add_u32 s22, s22, s18")
    a("s_lshl_b32 s22, s22, 7")
    a("s_lshl_b32 s23, s16, 1")
    a("s_add_u32 s23, s23, s19")
    a("s_lshl_b32 s23, s23, 2")
    a("s_add_u32 s22, s22, s23")
    a(f"s_add_u32 s68, s22, {FL_H}")
    a("s_cmp_lg_u32 s69, 0")
    a(f"s_cselect_b32 s67, s68, {OOB}")
    a(f"s_cselect_b32 s68, {OOB}, s68")
    a("v_mov_b32 v250, s100")
    a("v_mov_b32 v251, 0")
    a("s_mov_b64 exec, 1")
    a("s_waitcnt vmcnt(0)")
    a("buffer_store_dword v250, v251, s[36:39], s68 offen")
    a(f"buffer_store_dword v250, v251, s[36:39], s67 offen {SC}")
    a("s_mov_b64 exec, -1")
    stamp(a, 5)
    a.label("G2")
    G2(a)
    a.label("G_SKIP")
    a("s_waitcnt vmcnt(0)")
    a("s_mov_b32 s22, 9")
    a.label("G_BL")
    a("s_barrier")
    a("s_sub_u32 s22, s22, 1")
    a("s_cmp_lg_u32 s22, 0")
    a("s_cbranch_scc1 G_BL")
    a("s_branch G2")
    a.label("GC")
    a(f"s_setprio {P['GPRIO']}")
    C_work(a)
    a("s_branch G2")

def cbar(a):
    L = newlabel("CB")
    a("s_cmp_ge_u32 s14, 28")
    a(f"s_cbranch_scc1 {L}")
    a("s_barrier")
    a(L + ":")
def K_stub(a):
    a("s_cmp_ge_u32 s14, 28")
    a("s_cbranch_scc1 KC")
    a("s_lshl_b32 s59, s14, 1")
    a("s_add_u32 s59, s59, s13")
    a("s_add_u32 s22, s14, 56")
    a("s_cmp_eq_u32 s13, 2")
    a("s_cselect_b32 s59, s22, s59")
    a("s_cmp_ge_u32 s59, 80")
    a("s_cbranch_scc1 M_END")
    a("s_mul_i32 s47, s3, 80")
    a("s_add_u32 s47, s47, s59")
    resolve(kconv.kload().items, a)
    a("s_branch M_K")
def xcc_publish(a):
    xcc_val(a, "s23")
    a("s_lshl_b32 s22, s101, 2")
    a(f"s_add_u32 s22, s22, {FL_T}")
    a("s_cmp_eq_u32 s12, 5")
    a(f"s_cselect_b32 s22, s22, {OOB}")
    store1(a, "s23", "s22", 2, "")
def emit_KC(a):
    a.label("KC")
    a("s_waitcnt lgkmcnt(0)")
    ptr_rest(a)
    tag_ready(a)
    xcc_publish(a)
    a("s_barrier")
    a("s_cmp_lg_u32 s12, 4")
    a("s_cbranch_scc1 KC_A")
    LN2(a, 4)
    p_signal(a, "s14", 0, 2)
    a("s_endpgm")
    a.label("KC_A")
    a("s_cmp_lg_u32 s12, 5")
    a("s_cbranch_scc1 M_END")
    a("s_cmp_lg_u32 s14, 31")
    a("s_cbranch_scc1 LD_N1")
    leader(a, 0, 8, FL_X, 34)
    stamp(a, 1)
    a.label("LD_N1")
    a("s_cmp_lg_u32 s14, 29")
    a("s_cbranch_scc1 LD_N2")
    leader(a, 128, 4, FL_X+1024, 34)
    stamp(a, 1)
    a.label("LD_N2")
    a("s_cmp_lg_u32 s14, 30")
    a("s_cbranch_scc1 LD_N3")
    leader(a, 256, 20, FL_Y, 34, sleep=8)
    stamp(a, 1)
    a.label("LD_N3")
    prof_flush(a, 2, 36, 12)
    a("s_endpgm")
def emit_K(a):
    ptr_rest(a)
    a(f"s_mul_i32 s46, s13, {kconv.KREG}")
    a(f"s_add_u32 s46, s46, {L_K}")
    pre, kg = kconv.kgen()
    items = kg.items
    itail = [i for i, it in enumerate(items) if it[0] == ("mark", "tail")][0]
    iearly = [i for i, it in enumerate(items) if it[0] == ("mark", "early_end")][0]
    print("kgen items", len(items), "early_end", iearly, "tail at", itail)
    resolve(pre.items, a)
    tag_ready(a)
    xcc_publish(a)
    a("s_waitcnt vmcnt(1)")
    stamp(a, 6)
    if Cfg.PROF: a("s_waitcnt lgkmcnt(0)")
    lgq = []; pos = 0
    def sl(n):
        nonlocal pos
        e = min(pos+n, itail)
        resolve(items[pos:e], a, lgq=lgq); pos = e
    sl(P["KPRE"])
    ilow = [i for i, it in enumerate(items) if it[0] == ("mark", "low_regs")][0]
    assert P["KPRE"] < ilow
    a("s_barrier")
    a("s_cmp_lg_u32 s12, 4")
    a("s_cbranch_scc1 K_A")
    LN2(a, 4)
    a.label("K_A")
    for t in range(1, 10):
        sl(P["KSL"] if t > 1 else P["KSL"]//2)
        a("s_barrier")
        if t == P["FB"]:
            a("s_cmp_lg_u32 s12, 4")
            a("s_cbranch_scc1 K_B")
            p_signal(a, "s14", 0, 252)
            a.label("K_B")
    assert pos >= itail, "kgen V part unfinished: %d" % (itail-pos)
    resolve(items[itail:], a, lgq=lgq)
    stamp(a, 1)
    a(f"v_mov_b32 v252, {L_WF+4}")
    spin_lds(a, 252, 253, "s100")
    st = Stream()
    stamp(st, 2)
    if Cfg.PROF: st("s_waitcnt lgkmcnt(0)")
    st.extend(kconv.conv(SC))
    stamp(st, 4)
    resolve(st.items, a)
    p_signal(a, "s59", 256, 4)
    stamp(a, 5)
    prof_flush(a, 7, 36, 12)
    a("s_endpgm")

def lstamp(a, k=None):
    if not P["LDBG"]: return
    a("s_memrealtime s[76:77]"); a("s_waitcnt lgkmcnt(0)")
    if k is None:
        a("s_sub_u32 m0, s40, 2"); a("v_writelane_b32 v100, s76, m0")
    else: a(f"v_writelane_b32 v100, s76, {k}")
def emit_L(a):
    NL = P["NL"]
    a(f"v_mov_b32 v26, {L_WF}")
    a("v_mov_b32 v28, 0")
    a("v_mov_b32 v29, 0")
    a("ds_write_b64 v26, v[28:29]")
    a("s_cmp_ge_u32 s14, 28")
    a("s_cbranch_scc1 LC")
    a(f"s_setprio {P['LPRIO']}")
    a("s_mul_i32 s17, s17, 5")
    a("s_add_u32 s17, s17, s16")
    a(f"s_mul_i32 s22, s3, {P['XROT']}")
    a("s_add_u32 s17, s17, s22")
    a("s_mul_i32 s22, s17, 6554")
    a("s_lshr_b32 s22, s22, 16")
    a("s_mul_i32 s22, s22, 10")
    a("s_sub_u32 s17, s17, s22")
    a("v_lshrrev_b32 v22, 4, v1")
    a("v_bfe_u32 v21, v1, 1, 3")
    a("v_xor_b32 v21, v21, v22")
    a("v_and_b32 v23, 1, v1")
    a("v_lshl_add_u32 v21, v21, 1, v23")
    a("v_xor_b32 v23, 8, v21")
    a("v_mul_u32_u24 v24, 3456, v22")
    a("v_lshl_add_u32 v10, v21, 4, v24")
    a("v_lshl_add_u32 v11, v23, 4, v24")
    a("s_cmp_eq_u32 s16, 13")
    a("s_cselect_b32 s22, 8, 16")
    a(f"v_mov_b32 v25, {OOB}")
    a("v_cmp_gt_u32 vcc, s22, v21")
    a("v_cndmask_b32 v10, v25, v10, vcc")
    a("v_cmp_gt_u32 vcc, s22, v23")
    a("v_cndmask_b32 v11, v25, v11, vcc")
    ws = 8*3456-1024
    a(f"v_add_u32 v12, {2*ws}, v10")
    a(f"v_add_u32 v13, {3*ws}, v11")
    a(f"v_add_u32 v11, {ws}, v11")
    a("v_lshrrev_b32 v20, 3, v1")
    a("v_and_b32 v21, 7, v1")
    a("v_xor_b32 v21, v21, v22")
    a("v_mul_u32_u24 v2, 1280, v20")
    a("v_lshl_add_u32 v2, v21, 4, v2")
    a("v_xor_b32 v6, 64, v2")
    for i in range(1, 4):
        a(f"v_add_u32 v{2+i}, {i*(20480-1024)}, v2")
        a(f"v_add_u32 v{6+i}, {i*(20480-1024)}, v6")
    a("s_mul_i32 s18, s15, 163840")
    a("s_lshl_b32 s20, s16, 8")
    a("s_mov_b32 s19, 0")
    a("s_mov_b32 s40, 0")
    a("s_waitcnt lgkmcnt(0)")
    srd(a, 24, 4, 2048*1280)
    srd(a, 28, 48, 640*3456)
    ptr_rest(a)
    a.label("L_LOOP")
    a("s_cmp_lt_u32 s40, 2")
    a("s_cbranch_scc1 L_ISS")
    a("s_waitcnt vmcnt(32) lgkmcnt(0)")
    a("s_barrier")
    lstamp(a)
    a.label("L_ISS")
    a("s_lshl_b32 s22, s17, 7")
    a("s_add_u32 s22, s22, s18")
    a(f"s_mul_i32 s23, s17, {64*3456}")
    a("s_add_u32 s23, s23, s20")
    xo = [0, 10240, 81920, 92160]; wo = [0, 4*3456, 32*3456, 36*3456]
    for g in range(4):
        a(f"s_add_u32 m0, s19, {16384 + g*4096}")
        a(f"s_add_u32 s41, s23, {wo[g]}")
        for i in range(4):
            a(f"buffer_load_dwordx4 v{10+i}, s[28:31], s41 offen offset:{1024*i} lds")
        if g == 3: a("s_waitcnt vmcnt(59)")
        a(f"s_add_u32 m0, s19, {g*4096}")
        a(f"s_add_u32 s41, s22, {xo[g]}")
        for i in range(4):
            a(f"buffer_load_dwordx4 v{2+4*(g&1)+i}, s[24:27], s41 offen offset:{1024*i} lds")
    a("s_add_u32 s17, s17, 1")
    a("s_cmp_eq_u32 s17, 10")
    a("s_cselect_b32 s17, 0, s17")
    a(f"s_add_u32 s19, s19, {SLOT}")
    a(f"s_cmp_eq_u32 s19, {3*SLOT}")
    a("s_cselect_b32 s19, 0, s19")
    a("s_add_u32 s40, s40, 1")
    a("s_cmp_lt_u32 s40, 10")
    a("s_cbranch_scc1 L_LOOP")
    a("s_branch L_TAIL")
    a.label("LC")
    if P["CPREF"]:
        a("s_getpc_b64 s[10:11]")
        a.label("PCREF")
        a("s_sub_u32 s10, s10, PCREF-KSTART")
        a("s_subb_u32 s11, s11, 0")
        a("v_lshlrev_b32 v5, 7, v1")
        a("s_and_b32 s22, s14, 3")
        a("s_lshl_b32 s22, s22, 14")
        a("v_add_u32 v5, s22, v5")
        for k in range(2):
            a("v_min_u32 v2, M_END-KSTART, v5")
            a("v_mov_b32 v3, s11")
            a("v_add_co_u32 v2, vcc, s10, v2")
            a("v_addc_co_u32 v3, vcc, 0, v3, vcc")
            a("global_load_dword v40, v[2:3], off")
            a("v_add_u32 v5, 8192, v5")
    a("s_waitcnt lgkmcnt(0)")
    ptr_rest(a)
    a("s_branch L_TAIL")

def emit_L_tail(a):
    NL = P["NL"]
    xpoll = f"buffer_load_dword v32, v30, s[36:39], s59 offen {SC}"
    a.label("L_TAIL")
    tag_ready(a)
    a("v_lshlrev_b32 v14, 4, v1")
    for dl in range(1, 4): a(f"v_add_u32 v{14+dl}, {dl*(HS-1024)}, v14")
    a(f"v_add_u32 v18, {4*HS}, v14")
    g2_rot(a)
    a("v_and_b32 v30, 7, v1")
    a("v_lshlrev_b32 v30, 7, v30")
    a(f"s_mov_b32 s59, {FL_X}")
    a("v_mul_u32_u24 v31, 10240, v1")
    a(f"v_mov_b32 v8, {L_WF}")
    a("v_mov_b32 v9, s100")
    a("s_mov_b32 s42, 0")
    a("s_cmp_lt_u32 s14, 28")
    a("s_cbranch_scc1 LW_REG")
    a("s_barrier")
    a("s_branch LW_POLL")
    a.label("LW_REG")
    a("s_waitcnt vmcnt(32)")
    a("s_barrier")
    lstamp(a, 8)
    a(xpoll)
    a("s_waitcnt vmcnt(1)")
    a("s_barrier")
    lstamp(a, 9)
    stamp(a, 1)
    a("s_waitcnt vmcnt(0)")
    a("v_cmp_ne_u32 vcc, s100, v32")
    a("s_cbranch_vccz LW_U")
    a.label("LW_POLL")
    poll_global(a, [xpoll], [32])
    a.label("LW_U")
    wpoll = f"buffer_load_dword v33, v30, s[36:39], s59 offen offset:1024 {SC}"
    a(wpoll)
    for w in range(3):
        if w < 2:
            a("s_lshl_b32 s22, s14, 1")
            a(f"s_add_u32 s22, s22, {w}")
        else:
            a("s_add_u32 s22, s14, 56")
        a("s_mul_i32 s23, s3, 80")
        a("s_add_u32 s22, s22, s23")
        a("s_lshl_b32 s22, s22, 4")
        a(f"s_add_u32 s22, s22, {WS_XNT}")
        a(f"s_cmp_lt_u32 s14, {24 if w == 2 else 28}")
        a(f"s_cselect_b32 s22, s22, {OOB}")
        a(f"s_mov_b32 m0, {L_K + w*kconv.KREG + kconv.UOFF + 480}")
        for k in range(4):
            a(f"buffer_load_dwordx4 v31, s[36:39], s22 offen offset:{1024*k} {SC} lds")
            if k < 3: a(f"s_add_u32 s22, s22, {655360-1024}")
    a("s_waitcnt vmcnt(12)")
    a("v_cmp_ne_u32 vcc, s100, v33")
    a("s_cbranch_vccz LW_LOOP")
    a("s_waitcnt vmcnt(0)")
    a("s_mov_b64 exec, 1")
    a("ds_write_b32 v8, v9 offset:4")
    a("s_mov_b64 exec, -1")
    poll_global(a, [wpoll], [33])
    a.label("LW_LOOP")
    a("s_add_u32 s40, s46, s42")
    a("s_add_u32 s40, s40, 4")
    a("s_sub_u32 s22, s40, 14")
    a("s_cmp_ge_u32 s40, 14")
    a("s_cselect_b32 s40, s22, s40")
    a("s_mul_i32 s43, s42, 5120")
    a(f"s_add_u32 s43, s43, {SLOT-5120}")
    a("s_cmp_eq_u32 s42, 0")
    a(f"s_cselect_b32 s43, {L_X}, s43")
    a("s_cselect_b32 s20, 0, 10240")
    a("s_add_u32 s21, s20, 5120")
    for w in range(4):
        a("s_lshl_b32 s41, s40, 10")
        a("s_add_u32 s41, s41, s57")
        a(f"s_add_u32 s41, s41, {w*14336}")
        if w == 3:
            a("s_cmp_lt_u32 s40, 12")
            a(f"s_cselect_b32 s41, s41, {OOB}")
        a(f"s_waitcnt vmcnt({P['WWIN']-5})")
        a("s_mov_b32 m0, s43")
        for dl in range(4):
            a(f"buffer_load_dwordx4 v{14+dl}, s[36:39], s41 offen offset:{1024*dl} {SC} lds")
        a("s_add_u32 m0, s43, 4096")
        a("s_add_u32 s43, s43, s21")
        a(f"buffer_load_dwordx4 v18, s[36:39], s41 offen {SC} lds")
    a("s_cmp_lg_u32 s42, 0")
    a("s_cbranch_scc1 LW_NU")
    a("s_waitcnt vmcnt(20)")
    a("s_mov_b64 exec, 1")
    a("ds_write_b32 v8, v9 offset:4")
    a("s_mov_b64 exec, -1")
    a.label("LW_NU")
    a("s_add_u32 s42, s42, 1")
    a(f"s_cmp_lt_u32 s42, {NL}")
    a("s_cbranch_scc1 LW_LOOP")
    a("s_waitcnt vmcnt(0)")
    a("s_mov_b64 exec, 1")
    a("ds_write_b32 v8, v9")
    a("s_mov_b64 exec, -1")
    stamp(a, 2)
    if P["LDBG"]:
        a("s_lshl_b32 s22, s2, 6"); a(f"s_add_u32 s22, s22, {WS_PROF + (1<<18)}")
        a("v_lshlrev_b32 v2, 2, v1"); a("s_mov_b64 exec, 0xffff")
        a("buffer_store_dword v100, v2, s[36:39], s22 offen"); a("s_mov_b64 exec, -1")
    prof_flush(a, 3, 36, 12)
    a("s_endpgm")

def mega():
    a = Asm()
    a.label("KSTART")
    setup(a)
    a("s_cmp_eq_u32 s12, 7")
    a("s_cbranch_scc1 M_L")
    a("s_cmp_ge_u32 s12, 4")
    a("s_cbranch_scc1 M_KS")
    G_stub(a)
    a.label("M_KS")
    K_stub(a)
    a.label("M_L")
    emit_L(a)
    a.label("M_CS")
    C_stub(a)
    a.label("M_K")
    emit_K(a)
    a.label("M_G")
    emit_G(a)
    emit_L_tail(a)
    emit_KC(a)
    a.label("M_END")
    a("s_endpgm")
    return a.finish(True)

if __name__ == "__main__":
    Cfg.PROF = "--noprof" not in sys.argv
    Cfg.CYC = "--cyc" in sys.argv
    for x in sys.argv[2:]:
        if "=" in x:
            k, v = x.split("="); assert k in P, k; P[k] = int(v)
    name = "parallel_sum__ssm_conv_s4__dense_activation_gelu__prompt_kernel"
    body = mega()
    code, kd = kernel_text(name, body, 256)
    hdr = f"; @launch grid=(256,1,1) block=(512,1,1) lds={LDS_TOTAL}\n.amdgcn_target \"amdgcn-amd-amdhsa--gfx950\"\n"
    open(sys.argv[1], "w").write(hdr + code + kd)
```

```python
import math
from common import *
from asmlib import Stream
LOG2E = 1.4426950408889634
C1OFF = 4160; KREG = 10240; TB = 8704; USIZE = 13824

def kload(sD=47):
    ld = Stream()
    ld("v_lshlrev_b32 v116, 2, v1")
    ld(f"s_lshl_b32 s76, s{sD}, 8")
    ld("v_add_u32 v116, s76, v116")
    ld(f"s_lshl_b32 s76, s{sD}, 1")
    ld("v_mov_b32 v117, s76")
    ld("s_waitcnt lgkmcnt(0)")
    for k in range(6):
        ld(f"global_load_dword v{48+k}, v116, s[{60+2*k}:{61+2*k}]", tag="kp")
    ld("global_load_ushort v54, v117, s[72:73]", tag="kp")
    ld("global_load_ushort v55, v117, s[74:75]", tag="kp")
    return ld

def kgen(sL=46, sU=45):
    pre = Stream(); a = Stream()
    vRAW = 48; vP = 56; ZB = 68; vAD = 116; vPK = 120; vF = 124; vG = 156; vACC = 188; t = 200; u = 208; vO = 216
    p_ = pre
    p_(f"v_lshlrev_b32 v{vAD}, 3, v1")
    p_(f"v_add_u32 v{vAD}, s{sL}, v{vAD}")
    p_(f"v_and_b32 v{vAD+2}, 15, v1")
    p_(f"v_lshrrev_b32 v{vAD+3}, 4, v1")
    p_(f"v_mul_u32_u24 v{vAD+1}, 544, v{vAD+2}")
    p_(f"v_lshl_add_u32 v{vAD+1}, v{vAD+3}, 4, v{vAD+1}")
    p_(f"v_add_u32 v{vAD+1}, s{sL}, v{vAD+1}")
    for r in range(12): p_(f"v_mov_b32 v{vACC+r}, 0")
    j = vAD+2; q = vAD+3
    p_(f"v_lshrrev_b32 v{t}, 1, v{q}")
    p_(f"v_lshlrev_b32 v{t}, 8, v{t}")
    p_(f"v_lshl_add_u32 v{t}, v{j}, 4, v{t}")
    p_(f"v_and_b32 v{t+1}, 1, v{q}")
    p_(f"v_lshl_add_u32 v{t}, v{t+1}, 3, v{t}")
    p_(f"v_add_u32 v{t}, s{sL}, v{t}")
    p_(f"v_cmp_gt_u32 s[76:77], 2, v{q}")
    p_(f"v_lshlrev_b32 v{t+2}, 2, v{j}")
    p_(f"v_lshlrev_b32 v{t+3}, 3, v{j}")
    p_(f"v_cndmask_b32 v{t+2}, v{t+2}, v{t+3}, s[76:77]")
    p_(f"v_lshl_add_u32 v{t+2}, v{q}, 7, v{t+2}")
    p_(f"v_add_u32 v{t+2}, s{sL}, v{t+2}")
    p_(f"v_cndmask_b32 v{t+3}, 64, 4, s[76:77]")
    p_(f"v_add_u32 v{t+3}, v{t+2}, v{t+3}")
    p_(f"v_lshlrev_b32 v{t+4}, 5, v{j}")
    p_(f"v_lshl_add_u32 v{t+4}, v{q}, 3, v{t+4}")
    p_(f"v_add_u32 v{t+4}, s{sL}, v{t+4}")
    p_(f"v_lshlrev_b32 v{u}, 4, v1")
    p_(f"v_lshlrev_b32 v{u+1}, 3, v1")
    p_(f"v_add_u32 v{u+1}, 256, v{u+1}")
    p_(f"v_cmp_gt_u32 s[76:77], 32, v1")
    p_(f"v_cndmask_b32 v{u}, v{u+1}, v{u}, s[76:77]")
    p_(f"v_add_u32 v{u}, s{sL}, v{u}")
    p_(f"v_lshlrev_b32 v{u+1}, 2, v1")
    p_(f"v_add_u32 v{u+1}, s{sL}, v{u+1}")
    p_(f"v_add_u32 v{u+1}, {TB}, v{u+1}")
    p_(f"v_lshlrev_b32 v{u+6}, 1, v1")
    p_(f"v_add_u32 v{u+6}, s{sL}, v{u+6}")
    p_(f"v_and_b32 v{u+2}, 1, v1")
    p_(f"v_cmp_eq_u32 s[76:77], 1, v{u+2}")
    p_(f"v_mov_b32 v{u+2}, 0x01000504")
    p_(f"v_mov_b32 v{u+3}, 0x05040504")
    p_(f"v_cndmask_b32 v{u+4}, v{u+2}, v{u+3}, s[76:77]")
    p_(f"v_mov_b32 v{u+5}, 0x03020504")
    p_(f"v_sub_u32 v{t+5}, 63, v1")
    p_(f"v_lshlrev_b32 v{t+5}, 4, v{t+5}")
    p_(f"v_add_u32 v{t+5}, s{sL}, v{t+5}")
    p_(f"v_lshrrev_b32 v240, 1, v{j}")
    p_(f"v_lshl_add_u32 v240, v{q}, 2, v240")
    p_("v_sub_u32 v240, 19, v240")
    p_("v_lshlrev_b32 v240, 2, v240")
    p_(f"v_mov_b32 v241, {C1OFF}")
    p_("v_cndmask_b32 v241, v241, 0, s[76:77]")
    p_(f"v_add3_u32 v235, v240, v241, s{sL}")
    for g in range(3): p_(f"v_add_u32 v{232+g}, {(3-g)*1024}, v235")
    p_(f"v_lshlrev_b32 v236, 1, v{j}")
    p_(f"v_sub_u32 v236, v236, v{q}")
    p_("v_add_u32 v236, 3, v236")
    p_("v_mul_u32_u24 v236, 48, v236")
    p_(f"v_add_u32 v236, s{sU}, v236")
    p_(f"v_lshrrev_b32 v242, 1, v{q}")
    p_(f"v_lshl_add_u32 v242, v{j}, 1, v242")
    p_("v_mul_u32_u24 v242, 48, v242")
    p_(f"v_and_b32 v243, 1, v{q}")
    p_("v_lshl_add_u32 v242, v243, 3, v242")
    p_(f"v_add_u32 v242, s{sU}, v242")
    p_("v_mul_u32_u24 v243, 48, v1")
    p_(f"v_add_u32 v243, s{sU}, v243")
    p_(f"v_lshlrev_b32 v237, 5, v{j}")
    p_(f"v_lshl_add_u32 v237, v{q}, 3, v237")
    p_(f"v_add_u32 v237, s{sL}, v237")
    p_("v_lshlrev_b32 v239, 4, v1")
    p_(f"v_add_u32 v238, s{sL}, v239")
    for r in range(244, 248): p_(f"v_mov_b32 v{r}, 0")
    p_("s_mov_b64 exec, 0x3fffffff")
    p_("ds_write_b128 v243, v[244:247]")
    p_("s_mov_b64 exec, -1")
    dt = vRAW+6; T0 = ZB+22
    a(f"v_lshlrev_b32 v{dt}, 16, v{dt}")
    a(f"v_lshlrev_b32 v{vRAW+7}, 16, v{vRAW+7}")
    hi = struct.unpack("<f", struct.pack("<f", LOG2E))[0]; lo = LOG2E - hi
    a(f"s_mov_b32 s76, {f32bits(hi)}")
    a(f"s_mov_b32 s77, {f32bits(lo)}")
    a(f"v_mul_f32 v{T0}, s76, v{dt}")
    a(f"v_readfirstlane_b32 s58, v{vRAW+7}")
    a(f"v_fma_f32 v{T0+1}, v{dt}, s76, -v{T0}")
    a(f"v_exp_f32 v{T0}, v{T0}")
    a(f"v_fma_f32 v{T0+1}, v{dt}, s77, v{T0+1}")
    a(f"v_mul_f32 v{T0+1}, {f32bits(math.log(2))}, v{T0+1}")
    for k in range(6):
        a(f"v_lshlrev_b32 v{vP+k}, 16, v{vRAW+k}")
        a(f"v_and_b32 v{vP+6+k}, 0xffff0000, v{vRAW+k}")
    a(f"v_fma_f32 v{dt}, v{T0}, v{T0+1}, v{T0}")
    a(f"v_cvt_pk_bf16_f32 v{dt}, v{dt}, v{dt}")
    a(f"v_lshlrev_b32 v{dt}, 16, v{dt}")
    a("s_mov_b32 s76, 0x01000100")
    a("s_mov_b32 s77, 0x03020302")
    def R(c, x):
        if isinstance(x, tuple): return vP + 6*c + x[1]
        return ZB + 24*c + x
    def both(fmt, *regs):
        for c in range(2):
            a(fmt.format(*[R(c, x) for x in regs]))
    def z(k): return 2*(k-1)
    Z8 = 14; Z128 = 16; CUR = 18; W0 = 20; T = 22
    def inc(x): return ("p", x[1]+1) if isinstance(x, tuple) else x+1
    pend = []
    def flush():
        while pend: a(pend.pop(0))
    def cmul(d, x, y):
        assert d != x and d != y
        both("v_mul_f32 v{0}, v{1}, v{2}", T, inc(x), inc(y))
        flush()
        both("v_mul_f32 v{0}, v{1}, v{2}", T+1, inc(x), y)
        both("v_fma_f32 v{0}, v{1}, v{2}, -v{3}", d, x, y, T)
        both("v_fma_f32 v{0}, v{1}, v{2}, v{3}", d+1, x, inc(y), T+1)
    def csq(d, x):
        both("v_mul_f32 v{0}, v{1}, v{1}", T, x+1)
        flush()
        both("v_add_f32 v{0}, v{1}, v{1}", T+1, x)
        both("v_fma_f32 v{0}, v{1}, v{1}, -v{2}", d, x, T)
        both("v_mul_f32 v{0}, v{1}, v{2}", d+1, T+1, x+1)
    pk = [0]
    defer = []
    dregs = list(range(156, 188, 2)) + [248, 250] + list(range(2, 48, 2))
    def putd(tile, row, x):
        r = dregs[len(defer)]; defer.append((tile, row, r))
        for c in range(2):
            a(f"v_cvt_pk_bf16_f32 v{r+c}, v{R(c,x)}, v{R(c,x+1)}")
    def put(row, x, neg=False):
        r = vPK + 2*(pk[0] % 2); pk[0] += 1
        for c in range(2):
            a(f"v_cvt_pk_bf16_f32 v{r+c}, v{R(c,x)}, {'-' if neg else ''}v{R(c,x+1)}")
        flush()
        pend.append(f"ds_write_b64 v{vAD}, v[{r}:{r+1}] offset:{row*544}")
    def direct(d, e):
        if e != 1:
            both(f"v_mul_f32 v{{0}}, {f32bits(float(e))}, v{{1}}", T, ("p", 0))
            both(f"v_mul_f32 v{{0}}, {f32bits(float(e))}, v{{1}}", T+1, ("p", 1))
            both("v_exp_f32 v{0}, v{0}", T)
            both("v_fract_f32 v{0}, v{0}", T+1)
        else:
            both("v_exp_f32 v{0}, v{1}", T, ("p", 0))
            both("v_fract_f32 v{0}, v{1}", T+1, ("p", 1))
        both("v_cos_f32 v{0}, v{1}", d, T+1)
        both("v_sin_f32 v{0}, v{1}", d+1, T+1)
        both("v_mul_f32 v{0}, v{1}, v{0}", d, T)
        both("v_mul_f32 v{0}, v{1}, v{0}", d+1, T)
    def rd(dst, tag):
        flush()
        for k in range(8):
            a(f"ds_read_b128 v[{dst+4*k}:{dst+3+4*k}], v{vAD+1} offset:{64*k}", tag=tag)
    def mm(acc, swap, tag):
        a.wait("lg", [tag, "kb"])
        for k in range(8):
            A = f"v[{vG+4*k}:{vG+3+4*k}]"; B = f"v[{vF+4*k}:{vF+3+4*k}]"
            if swap: A, B = B, A
            a(f"v_mfma_f32_16x16x32_bf16 v[{acc}:{acc+3}], {A}, {B}, v[{acc}:{acc+3}]")
    for k in range(4):
        for c in range(2): a(f"v_mul_f32 v{vP+6*c+k}, v{dt}, v{vP+6*c+k}")
    both(f"v_mul_f32 v{{0}}, {f32bits(LOG2E)}, v{{0}}", ("p", 0))
    both("v_mul_f32 v{0}, 0.15915494, v{0}", ("p", 1))
    cmul(CUR, ("p", 4), ("p", 2))
    direct(z(1), 1)
    direct(Z128, 128)
    csq(z(2), z(1)); csq(z(4), z(2)); csq(Z8, z(4))
    cur, oth = CUR, W0
    for b in range(16):
        if b < 15: cmul(oth, cur, Z8)
        put(b, cur, neg=True)
        cur, oth = oth, cur
    cmul(z(3), z(2), z(1))
    rd(vF, "kb")
    a.mark("early_end")
    cmul(z(5), z(4), z(1)); cmul(z(6), z(4), z(2)); cmul(z(7), z(4), z(3))
    a(f"v_mov_b32 v{vPK}, 0x3f80"); a(f"v_mov_b32 v{vPK+1}, 0x3f80")
    for k in range(1, 8): putd(0, k, z(k))
    putd(0, 8, Z128)
    tmp = [W0, CUR]
    for k in range(1, 8):
        cmul(tmp[k % 2], Z128, z(k))
        if k > 1: putd(0, 8+k-1, tmp[(k-1) % 2])
    csq(z(1), Z128)
    putd(0, 15, tmp[1])
    cur, oth = z(1), z(3)
    for half in range(2):
        cmul(tmp[1], cur, z(2))
        putd(1, 4*half, cur)
        if half == 0: a.mark("low_regs")
        for k in range(2, 4):
            cmul(tmp[k % 2], cur, z(2*k))
            putd(1, 4*half+k-1, tmp[(k-1) % 2])
        cmul(oth, cur, Z128)
        putd(1, 4*half+3, tmp[1])
        cur, oth = oth, cur
    for al in range(4):
        cmul(W0, cur, z(4))
        putd(1, 8+2*al, cur)
        cmul(oth, cur, Z128)
        putd(1, 9+2*al, W0)
        cur, oth = oth, cur
    for i in range(9):
        if i < 8: cmul(oth, cur, Z128)
        putd(2, i, cur)
        cur, oth = oth, cur
    a.mark("tail")
    def wr(tl):
        for tile, row, r in defer:
            if tile == tl: a(f"ds_write_b64 v{vAD}, v[{r}:{r+1}] offset:{row*544}")
    a(f"ds_write_b64 v{vAD}, v[{vPK}:{vPK+1}]")
    wr(0); rd(48, "k0")
    wr(1); rd(80, "k1")
    vG = 48; mm(vACC, False, "k0")
    wr(2); rd(156, "k2")
    vG = 80; mm(vACC+4, False, "k1")
    vG = 156; mm(vACC+8, True, "k2")
    c = 56
    for k in range(2):
        a(f"v_cvt_pk_bf16_f32 v{c+2*k}, v{vACC+4*k}, v{vACC+4*k+1}")
        a(f"v_cvt_pk_bf16_f32 v{c+1+2*k}, v{vACC+4*k+2}, v{vACC+4*k+3}")
    a(f"ds_write_b64 v{t}, v[{c}:{c+1}] offset:{TB}")
    a(f"ds_write_b32 v{t+2}, v{c+2} offset:{TB+512}")
    a(f"ds_write_b32 v{t+3}, v{c+3} offset:{TB+512}")
    a(f"v_cvt_pk_bf16_f32 v{c+4}, v{vACC+8}, v{vACC+9}")
    a(f"v_cvt_pk_bf16_f32 v{c+5}, v{vACC+10}, v{vACC+11}")
    a(f"ds_write_b64 v{t+4}, v[{c+4}:{c+5}] offset:{TB+1024}")
    p = 68
    a(f"ds_read_b64 v[{p}:{p+1}], v{u} offset:{TB}", tag="e0")
    a(f"ds_read_b64 v[{p+2}:{p+3}], v{u} offset:{TB+8}", tag="e0")
    a(f"ds_read2_b32 v[{p+4}:{p+5}], v{u+1} offset0:192 offset1:193", tag="e1")
    for it in (2, 3):
        a(f"ds_read_u16 v{p+2+2*it}, v{u+6} offset:{TB+1024+128*(it-2)}", tag=("e", it))
        a(f"ds_read_u16 v{p+3+2*it}, v{u+6} offset:{TB+1026+128*(it-2)}", tag=("e", it))
    a.atomic([("s_mov_b64 exec, 3", None), ("ds_write_b128 v238, v[244:247] offset:4096", None),
              (f"ds_write_b128 v238, v[244:247] offset:{C1OFF+4096}", None), ("s_mov_b64 exec, -1", None)])
    a.wait("lg", "e0")
    o = vO
    for k in range(4): a(f"v_alignbit_b32 v{o+k}, v{p+3-k}, v{p+3-k}, 16")
    a.atomic([("s_mov_b32 exec_lo, 0", None),
              (f"v_perm_b32 v{o}, v{p+2}, v{p+1}, v{u+5}", None),
              (f"v_perm_b32 v{o+1}, v{p+1}, v{p+1}, s76", None),
              (f"v_perm_b32 v{o+2}, v{p+1}, v{p}, v{u+5}", None),
              (f"v_perm_b32 v{o+3}, v{p}, v{p}, s76", None),
              ("s_mov_b32 exec_lo, -1", None)])
    a.wait("lg", "e1")
    o = vO+4
    a(f"v_perm_b32 v{o}, v{p+5}, v{p+5}, s76")
    a(f"v_perm_b32 v{o+1}, v{p+4}, v{p+4}, s77")
    a(f"v_alignbit_b32 v{o+2}, v{p+4}, v{p+4}, 16")
    a(f"v_perm_b32 v{o+3}, v{p+4}, v{p+4}, s76")
    for it in (2, 3):
        a.wait("lg", ("e", it))
        o = vO+4*it; sa = p+2+2*it; se = sa+1
        a(f"v_perm_b32 v{o}, v{se}, v{se}, s76")
        a(f"v_perm_b32 v{o+1}, v{se}, v{sa}, v{u+4}")
        a(f"v_perm_b32 v{o+2}, v{sa}, v{sa}, s76")
        a(f"v_mov_b32 v{o+3}, v{o+2}")
    for it in range(4):
        a(f"ds_write_b128 v{t+5}, v[{vO+4*it}:{vO+3+4*it}] offset:{(3-it)*1024}")
    for it in range(4):
        a(f"ds_read_b32 v{80+it}, v{t+5} offset:{(3-it)*1024+16}", tag=("nb", it))
    for it in range(4):
        w = vO+4*it; o = 84+4*it
        for k in range(3): a(f"v_alignbit_b32 v{o+k}, v{w+k+1}, v{w+k}, 16")
        a.wait("lg", ("nb", it))
        a(f"v_alignbit_b32 v{o+3}, v{80+it}, v{w+3}, 16")
        a(f"ds_write_b128 v{t+5}, v[{o}:{o+3}] offset:{C1OFF+(3-it)*1024}")
    return pre, a

def conv(SC, sD=47, sDk=58):
    a = Stream()
    ACC = 16; FR = 48; used = set()
    def rdA(ph, x):
        b = FR + (ph % 2)*64 + 8*x
        o = 16*(7-ph) + 128*(1 - (x & 1))
        return [(f"ds_read2_b32 v[{b}:{b+1}], v{232 + x//2} offset0:{o} offset1:{o+1}", ("fa", ph, x)),
                (f"ds_read2_b32 v[{b+2}:{b+3}], v{232 + x//2} offset0:{o+2} offset1:{o+3}", ("fa", ph, x)),
                (f"ds_read_b128 v[{b+4}:{b+7}], v236 offset:{48*(32*x + 4*(7-ph))}", ("fa", ph, x))]
    for x in range(8):
        for l, tg in rdA(0, x): a(l, tag=tg)
    pairs = sorted([(x, y) for x in range(8) for y in range(8) if x+y <= 7], key=lambda p: (max(p), p))
    for ph in range(8):
        base = FR + (ph % 2)*64
        seen = -1
        nxt = [r for x in range(8) for r in rdA(ph+1, x)] if ph < 7 else []
        for n, (x, y) in enumerate(pairs):
            mx = max(x, y)
            if ph == 0:
                if mx > seen: a.wait("lg", ("fa", ph, mx)); seen = mx
            elif n == 0:
                a.waitall("lg")
            c = ACC + 4*(x+y)
            C = f"v[{c}:{c+3}]" if c in used else "0"
            used.add(c)
            a(f"v_mfma_f32_16x16x32_bf16 v[{c}:{c+3}], v[{base+8*x}:{base+8*x+3}], v[{base+8*y+4}:{base+8*y+7}], {C}")
            k = n if ph > 0 else n - 8
            if 0 <= k < len(nxt): a(nxt[k][0], tag=nxt[k][1])
            if ph == 7 and n < 8:
                a(f"ds_read_b64 v[{48+2*n}:{49+2*n}], v242 offset:{48*(30 + 32*n)}", tag=("xu", n))
    stamp(a, 3)
    a("v_mov_b32 v15, 0xffff0000")
    a.waitall("lg")
    for c in range(8):
        y = ACC + 4*c; t = 64 + (c % 2)*8; u = 48+2*c
        a(f"v_lshlrev_b32 v{t+2}, 16, v{u}")
        a(f"v_and_b32 v{t+3}, v15, v{u}")
        a(f"v_lshlrev_b32 v{t+4}, 16, v{u+1}")
        a(f"v_and_b32 v{t+5}, v15, v{u+1}")
        for r in range(4): a(f"v_fmac_f32 v{y+r}, s{sDk}, v{t+2+r}")
        a(f"v_cvt_pk_bf16_f32 v{t+6}, v{y}, v{y+1}")
        a(f"v_cvt_pk_bf16_f32 v{t+7}, v{y+2}, v{y+3}")
        a(f"ds_write_b64 v237, v[{t+6}:{t+7}] offset:{512*c}")
        if c % 2 == 1:
            k = c//2
            a(f"ds_read_b128 v[{80+4*k}:{83+4*k}], v238 offset:{1024*k}", tag=("o", k))
    a(f"s_lshl_b32 s22, s{sD}, 12")
    a(f"s_add_u32 s22, s22, {WS_AT}")
    for k in range(4):
        a.wait("lg", ("o", k))
        a(f"buffer_store_dwordx4 v[{80+4*k}:{83+4*k}], v239, s[36:39], s22 offen offset:{1024*k} {SC}", tag="st")
    return a
```

```python
import sys, math
from common import *
from asmlib import Stream, resolve
import kconv

SC = "sc1"
NST = 10; SLOT = 32768; HS = 55296
WS_FL = 26 << 20
FL_R = WS_FL; FL_X = WS_FL + 1024; FL_T = WS_FL + 3072; FL_H = WS_FL + 4096; FL_Y = WS_FL + 8192
FL_P = WS_FL + 16384
OOB = "0x7f000000"
L_K = 98304; L_U = L_K + 3*kconv.KREG; L_X = L_U + kconv.USIZE
L_LN = L_X
L_WF = 163328; L_CS = 163584
LDS_TOTAL = 163840
P = dict(GRS=12, GPRIO=2, LPRIO=3, KPRE=200, KSL=56, CPREF=1, LOCAL=1, WROT=1, XROT=1, PSLEEP=4, WWIN=24, NL=4, LDBG=0, FB=3, YI=12, WG0=9, STEND=0, KPRIO=0, OUTFL='', SPIN_MAX=20000, DBGOUT=0)
_l = [0]
def newlabel(p):
    _l[0] += 1; return f"{p}_{_l[0]}"

def spin_tail(a, again):
    out = newlabel("CT")
    a(f"s_cbranch_vccz {out}")
    a("s_add_u32 s79, s79, 1")
    a(f"s_cmp_lt_u32 s79, {P['SPIN_MAX']}")
    a(f"s_cbranch_scc1 {again}")
    a(out + ":")
def check_tags(a, regs, again):
    a(f"v_cmp_ne_u32 vcc, s100, v{regs[0]}")
    for r in regs[1:]:
        a(f"v_cmp_ne_u32 s[62:63], s100, v{r}")
        a("s_or_b64 vcc, vcc, s[62:63]")
    spin_tail(a, again)
def poll_global(a, loads, regs, preissued=False):
    L = newlabel("PG"); F = newlabel("PF")
    a(f"s_branch {F}")
    a(L + ":")
    a(f"s_sleep {P['PSLEEP']}")
    if not preissued: a(F + ":")
    for l in loads: a(l)
    if preissued: a(F + ":")
    a("s_waitcnt vmcnt(0)")
    check_tags(a, regs, L)
def spin_lds(a, vaddr, vtmp, sval):
    L = newlabel("SL"); O = newlabel("SO")
    a(L + ":")
    a(f"ds_read_b32 v{vtmp}, v{vaddr}")
    a("s_waitcnt lgkmcnt(0)")
    a(f"v_cmp_ne_u32 vcc, {sval}, v{vtmp}")
    a(f"s_cbranch_vccz {O}")
    a("s_sleep 1")
    a("s_add_u32 s79, s79, 1")
    a(f"s_cmp_lt_u32 s79, {10*P['SPIN_MAX']}")
    a(f"s_cbranch_scc1 {L}")
    a(O + ":")
def store1(a, val, soff, v0, fl):
    a(f"v_mov_b32 v{v0}, {val}")
    a(f"v_mov_b32 v{v0+1}, 0")
    a("s_mov_b64 exec, 1")
    a(f"buffer_store_dword v{v0}, v{v0+1}, s[36:39], {soff} offen {fl}")
    a("s_mov_b64 exec, -1")
def arrive(a, srdc, soff, count, flag_soff, v0):
    L = newlabel("AR")
    a(f"v_mov_b32 v{v0}, 1")
    a(f"v_mov_b32 v{v0+1}, 0")
    a("s_mov_b64 exec, 1")
    a(f"buffer_atomic_add v{v0}, v{v0+1}, s[{srdc}:{srdc+3}], {soff} offen sc0 sc1")
    a("s_waitcnt vmcnt(0)")
    if count & (count-1) == 0: a(f"v_and_b32 v{v0}, {count-1}, v{v0}")
    a(f"v_cmp_ne_u32 vcc, {count-1}, v{v0}")
    a(f"s_cbranch_vccnz {L}")
    a(f"v_mov_b32 v{v0}, s100")
    a(f"buffer_store_dword v{v0}, v{v0+1}, s[36:39], {flag_soff} offen {SC}")
    a(L + ":")
    a("s_mov_b64 exec, -1")
def ptr_rest(a):
    a(f"s_add_u32 s8, s6, {FL_R}")
    a("s_addc_u32 s9, s7, 0")
    a("s_load_dword s100, s[8:9], 0")
    srd(a, 36, 6, WS_SIZE)
def tag_ready(a):
    a("s_waitcnt lgkmcnt(0)")
    a("s_mul_i32 s100, s100, 1664525")
    a("s_add_u32 s100, s100, 1013904223")
    a("s_or_b32 s100, s100, 0x100")
def xcc_val(a, d):
    a(f"s_getreg_b32 {d}, hwreg(HW_REG_XCC_ID, 0, 4)")
    a(f"s_add_u32 {d}, {d}, 1")
    a(f"s_xor_b32 {d}, {d}, s100")

def setup(a):
    a("s_cmp_ge_u32 s2, 256")
    a("s_cbranch_scc1 M_END")
    stamp(a, 0)
    a("s_load_dwordx2 s[6:7], s[0:1], 128")
    a("s_load_dwordx2 s[4:5], s[0:1], 0")
    a("s_load_dwordx8 s[48:55], s[0:1], 80")
    a("s_load_dwordx16 s[60:75], s[0:1], 8")
    a("s_mov_b32 s79, 0")
    a("v_and_b32 v1, 63, v0")
    a("v_lshrrev_b32 v6, 6, v0")
    a("v_readfirstlane_b32 s12, v6")
    a("s_and_b32 s3, s2, 7")
    a("s_lshr_b32 s14, s2, 3")
    a("s_lshl_b32 s101, s3, 5")
    a("s_add_u32 s101, s101, s14")
    a("s_and_b32 s17, s14, 1")
    a("s_lshl_b32 s15, s3, 1")
    a("s_add_u32 s15, s15, s17")
    a("s_lshr_b32 s16, s14, 1")
    a("s_and_b32 s22, s14, 3")
    a("s_lshl_b32 s44, s3, 2")
    a("s_add_u32 s44, s44, s22")
    a("s_lshr_b32 s45, s14, 2")
    a("s_and_b32 s13, s12, 3")

vACC = 16; vCS = 80; vFR = 96; vONE = 160; vGRN = 164; vB1 = 172; vTB = 176
def G_setup(a):
    a("s_lshr_b32 s18, s13, 1")
    a("s_and_b32 s19, s13, 1")
    a("v_and_b32 v10, 15, v1")
    a("v_lshrrev_b32 v11, 4, v1")
    a("v_lshlrev_b32 v12, 1, v10")
    a("s_lshl_b32 s22, s16, 8")
    a("s_lshl_b32 s23, s19, 7")
    a("s_add_u32 s22, s22, s23")
    srd(a, 32, 50, 3456)
    for c in range(4):
        a(f"buffer_load_ushort v{vB1+c}, v12, s[32:35], s22 offen offset:{32*c}")
    ptr_rest(a)
    a("v_lshrrev_b32 v12, 2, v1")
    a("v_and_b32 v13, 7, v12")
    a("s_lshl_b32 s22, s19, 2")
    a("v_xor_b32 v13, s22, v13")
    a("v_lshlrev_b32 v13, 5, v13")
    a("v_lshl_add_u32 v13, v12, 8, v13")
    a("v_and_b32 v12, 3, v1")
    a("v_lshl_add_u32 v13, v12, 3, v13")
    a("v_add_u32 v2, 16384, v13")
    for c in range(1, 4): a(f"v_xor_b32 v{2+c}, {32*c}, v2")
    a("v_lshrrev_b32 v12, 1, v10")
    a("v_xor_b32 v12, v12, v11")
    a("v_lshlrev_b32 v12, 4, v12")
    a("v_and_b32 v13, 7, v10")
    a("v_lshl_add_u32 v12, v13, 7, v12")
    a("v_lshrrev_b32 v13, 3, v10")
    a("v_lshl_add_u32 v12, v13, 12, v12")
    a("s_lshl_b32 s22, s18, 13")
    a("v_add_u32 v8, s22, v12")
    a("v_xor_b32 v9, 64, v8")
    a("v_lshlrev_b32 v14, 4, v1")
    a("v_lshlrev_b32 v15, 3, v10")
    a("s_lshl_b32 s60, s15, 10")
    a("s_lshl_b32 s22, s18, 9")
    a("s_add_u32 s60, s60, s22")
    a(f"s_add_u32 s60, s60, {WS_STATS}")
    a("s_add_u32 s62, s60, 65536")
    a("v_and_b32 v13, 31, v1")
    a("v_lshlrev_b32 v13, 2, v13")
    a("s_lshl_b32 s61, s3, 7")
    a(f"s_add_u32 s61, s61, {FL_T}")
    a("v_and_b32 v12, 7, v1")
    a("v_lshlrev_b32 v12, 7, v12")
    a(f"s_mov_b32 s63, {FL_X+1024}")
    for r in range(4): a(f"v_mov_b32 v{vONE+r}, 0x3f803f80")
    tag_ready(a)

def G_loop(a):
    def reads(s):
        t, ks2 = divmod(s, 2)
        off = ((t % 3) % 2)*SLOT
        b = vFR + (s % 2)*32
        L = []
        for c in range(4):
            L.append(f"ds_read_b64_tr_b16 v[{b+4*c}:{b+4*c+1}], v{2+c} offset:{off + ks2*8192}")
            L.append(f"ds_read_b64_tr_b16 v[{b+4*c+2}:{b+4*c+3}], v{2+c} offset:{off + ks2*8192 + 4096}")
            L.append(f"ds_read_b128 v[{b+16+4*c}:{b+16+4*c+3}], v{8+ks2} offset:{off + c*1024}")
        return L
    stamp(a, 2)
    for x in reads(0): a(x)
    for s in range(20):
        t, ks2 = divmod(s, 2)
        b = vFR + (s % 2)*32
        a("s_waitcnt lgkmcnt(0)")
        pre = []
        if ks2 == 1 and t+1 < NST:
            a("s_barrier")
            if (t+1) % 3 != 1 and t+1 < NST:
                pre = [f"v_xor_b32 v{r}, 0x10000, v{r}" for r in (2, 8, 3, 4, 5, 9)]
        rr = reads(s+1) if s+1 < 20 else []
        if s == P["GRS"]:
            for rt in range(4):
                rr.append(f"buffer_load_dwordx2 v[{vGRN+2*rt}:{vGRN+1+2*rt}], v15, s[36:39], s62 offen offset:{128*rt} {SC}")
            rr.append(f"buffer_load_dword v{vTB}, v13, s[36:39], s61 offen {SC}")
        if s == 18:
            rr.append(f"buffer_load_dword v{vTB+1}, v12, s[36:39], s63 offen {SC}")
        mm = []
        for c in range(4):
            for rt in range(4):
                acc = vACC + (rt*4+c)*4
                C = f"v[{acc}:{acc+3}]" if s else "0"
                mm.append(f"v_mfma_f32_16x16x32_bf16 v[{acc}:{acc+3}], v[{b+4*c}:{b+4*c+3}], v[{b+16+4*rt}:{b+16+4*rt+3}], {C}")
            C = f"v[{vCS+4*c}:{vCS+4*c+3}]" if s else "0"
            mm.append(f"v_mfma_f32_16x16x32_bf16 v[{vCS+4*c}:{vCS+4*c+3}], v[{vONE}:{vONE+3}], v[{b+4*c}:{b+4*c+3}], {C}")
        fill = [pre[i:i+2] for i in range(0, len(pre), 2)] + [[x] for x in rr]
        assert len(fill) <= len(mm)
        for i, x in enumerate(mm):
            a(x)
            if i < len(fill):
                for y in fill[i]: a(y)
    stamp(a, 3)

def G_gelu(a):
    vA = 96; vB = 104; vK = 112; vT = 124; vO = 132; late = []
    a("s_mov_b32 s65, 0xffff0000")
    a("v_cmp_gt_u32 s[70:71], 16, v1")
    a("s_mov_b32 s66, 0x01000100")
    for rt in range(4):
        g = vGRN+2*rt
        a(f"v_perm_b32 v{vB+2*rt}, v{g}, v{g}, s66")
        a(f"v_xor_b32 v{vB+2*rt}, 0x80008000, v{vB+2*rt}")
        a(f"v_lshrrev_b32 v{vB+2*rt+1}, 16, v{g}")
    for c in range(4):
        cs = vCS+4*c
        a(f"v_cvt_pk_bf16_f32 v{cs+1}, v{cs}, v{cs}")
        a(f"v_and_b32 v{cs+1}, s65, v{cs+1}")
        a(f"v_sub_f32 v{cs+1}, v{cs}, v{cs+1}")
        a(f"v_cvt_pk_bf16_f32 v{cs+2}, v{cs}, v{cs+1}")
        a(f"v_cndmask_b32 v{vA+2*c}, 0, v{cs+2}, s[70:71]")
        a(f"v_cndmask_b32 v{vA+2*c+1}, 0, v{vB1+c}, s[70:71]")
    for rt in range(4):
        for c in range(4):
            acc = vACC + (rt*4+c)*4
            a(f"v_mfma_f32_16x16x16_bf16 v[{acc}:{acc+3}], v[{vA+2*c}:{vA+2*c+1}], v[{vB+2*rt}:{vB+2*rt+1}], v[{acc}:{acc+3}]")
        g = vGRN+2*rt; k = vK+3*rt
        a(f"v_and_b32 v{k+2}, s65, v{g}")
        a(f"v_rcp_f32 v{k}, v{k+2}")
        a(f"v_mul_f32 v{k+1}, v{k}, v{k}")
        a(f"v_mul_f32 v{k+1}, v{k+1}, v{k}")
        a(f"v_mul_f32 v{k+1}, {f32bits(GELU_K2)}, v{k+1}")
        a(f"v_mul_f32 v{k}, {f32bits(GELU_K1)}, v{k}")
    a("s_lshl_b32 s66, s15, 3")
    a("s_lshl_b32 s67, s18, 2")
    a("s_add_u32 s66, s66, s67")
    a(f"s_mul_i32 s66, s66, {HS}")
    a("s_lshl_b32 s67, s16, 12")
    a("s_add_u32 s66, s66, s67")
    a("s_lshl_b32 s67, s19, 11")
    a("s_add_u32 s66, s66, s67")
    a("s_cmp_lg_u32 s69, 0")
    a(f"s_cselect_b32 s67, s66, {OOB}")
    a(f"s_cselect_b32 s66, {OOB}, s66")
    for rt in range(4):
        k = vK+3*rt
        for p in range(2):
            accs = [vACC + (rt*4+2*p)*4 + r for r in range(8)]
            ts = [vT + r for r in range(8)]
            for x, t in zip(accs, ts): a(f"v_mul_f32 v{t}, v{x}, v{x}")
            for x, t in zip(accs, ts): a(f"v_fma_f32 v{t}, v{t}, v{k+1}, v{k}")
            for x, t in zip(accs, ts): a(f"v_mul_f32 v{t}, v{x}, v{t}")
            for x, t in zip(accs, ts): a(f"v_exp_f32 v{t}, v{t}")
            for x, t in zip(accs, ts): a(f"v_fma_f32 v{t}, v{t}, v{k+2}, v{k+2}")
            for x, t in zip(accs, ts): a(f"v_rcp_f32 v{t}, v{t}")
            for x, t in zip(accs, ts): a(f"v_mul_f32 v{x}, v{x}, v{t}")
            o = vO + 4*p if not P["STEND"] else 180 + 8*rt + 4*p
            for i in range(4): a(f"v_cvt_pk_bf16_f32 v{o+i}, v{accs[2*i]}, v{accs[2*i+1]}")
            def stores(rt=rt, p=p, o=o):
                a(f"buffer_store_dwordx4 v[{o}:{o+3}], v14, s[36:39], s66 offen offset:{1024*p}")
                a(f"buffer_store_dwordx4 v[{o}:{o+3}], v14, s[36:39], s67 offen offset:{1024*p} {SC}")
                if p == 1 and rt < 3: a(f"s_add_u32 s66, s66, {HS}"); a(f"s_add_u32 s67, s67, {HS}")
            if P["STEND"]: late.append(stores)
            else: stores()
            k2 = rt*2 + p - P["WG0"]
            if 0 <= k2 < 4:
                st = Stream(); issue_w(st, k2); resolve(st.items, a)
    for f in late: f()

vW = 160; vH = 96
def g2_rot(a):
    a("s_and_b32 s46, s44, 3")
    a("s_mul_i32 s46, s46, 7")
    a(f"s_mul_i32 s22, s3, {P['WROT']}")
    a("s_add_u32 s46, s46, s22")
    a("s_lshr_b32 s46, s46, 1")
    a("s_mul_i32 s22, s46, 4682")
    a("s_lshr_b32 s22, s22, 16")
    a("s_mul_i32 s22, s22, 14")
    a("s_sub_u32 s46, s46, s22")
    a(f"s_mul_i32 s57, s45, {5*HS}")
    a(f"s_add_u32 s57, s57, {WS_W2P}")
def g2_addr(a):
    a("v_lshlrev_b32 v2, 4, v1")
    for dl in range(1, 5): a(f"v_add_u32 v{2+dl}, {dl*HS}, v2")
    for li in range(4):
        a(f"s_add_u32 s22, s13, {li}")
        a("s_and_b32 s22, s22, 3")
        a(f"s_mul_i32 s22, s22, {HS}")
        a(f"v_add_u32 v{7+li}, s22, v2")
    g2_rot(a)
    a("s_mov_b32 s47, s46")
    a("s_mul_i32 s22, s13, 14336")
    a(f"s_mul_i32 s56, s44, {4*HS}")
    a("s_add_u32 s56, s56, s22")
    a("s_add_u32 s57, s57, s22")
    a("s_cmp_eq_u32 s13, 3")
    a("s_cselect_b32 s64, 12, 14")
def adv(a, s):
    a(f"s_add_u32 {s}, {s}, 1")
    a(f"s_cmp_eq_u32 {s}, 14")
    a(f"s_cselect_b32 {s}, 0, {s}")
def issue_w(a, i):
    b = vW + (i % 4)*20
    a("s_lshl_b32 s23, s47, 10")
    a("s_add_u32 s23, s23, s57")
    a("s_cmp_lt_u32 s47, s64")
    a(f"s_cselect_b32 s23, s23, {OOB}")
    for dl in range(5):
        a(f"buffer_load_dwordx4 v[{b+4*dl}:{b+3+4*dl}], v{2+dl}, s[36:39], s23 offen {SC}", tag=("k", i))
    adv(a, "s47")
def issue_h(a, i):
    b = vH + (i % 4)*16
    a("s_lshl_b32 s22, s46, 10")
    a("s_add_u32 s22, s22, s56")
    a("s_cmp_lt_u32 s46, s64")
    a(f"s_cselect_b32 s22, s22, {OOB}")
    for li in range(4):
        a(f"buffer_load_dwordx4 v[{b+4*li}:{b+3+4*li}], v{7+li}, s[36:39], s22 offen {SC}", tag=("k", i))
    adv(a, "s46")

def G2(a):
    NL = P["NL"]
    g2_addr(a)
    a("v_and_b32 v13, 7, v1")
    a("v_lshlrev_b32 v13, 7, v13")
    a(f"s_mov_b32 s59, {FL_X+1024}")
    poll_global(a, [f"buffer_load_dword v15, v13, s[36:39], s59 offen {SC}"], [15])
    st = Stream()
    for i in range(4): issue_w(st, i)
    resolve(st.items, a)
    a.label("G2B")
    a("s_load_dwordx4 s[8:11], s[0:1], 104")
    a("s_load_dwordx2 s[4:5], s[0:1], 0")
    a("v_min_u32 v13, 26, v1")
    a("v_lshlrev_b32 v13, 2, v13")
    a("s_lshl_b32 s59, s44, 7")
    a(f"s_add_u32 s59, s59, {FL_H}")
    hp = f"buffer_load_dword v15, v13, s[36:39], s59 offen {SC}"
    a(hp)
    a("s_waitcnt lgkmcnt(0)")
    srd(a, 48, 10, 2048*1280)
    srd(a, 52, 8, 1280)
    srd(a, 24, 4, 2048*1280)
    old, P["PSLEEP"] = P["PSLEEP"], 1
    poll_global(a, [hp], [15], preissued=True)
    P["PSLEEP"] = old
    vB2 = 128
    st = Stream()
    for i in range(4): issue_h(st, i)
    stamp(st, 6)
    for k in range(3):
        st(f"v_add_u32 v11, {64*k}, v1")
        st("v_mul_u32_u24 v12, 6554, v11")
        st("v_lshrrev_b32 v12, 16, v12")
        st(f"v_mul_u32_u24 v{240+k}, {1280-160}, v12")
        st(f"v_lshl_add_u32 v{240+k}, v11, 4, v{240+k}")
    st("s_lshl_b32 s58, s44, 2")
    st("s_add_u32 s58, s58, s13")
    st("s_mul_i32 s58, s58, 20480")
    st("s_mul_i32 s22, s45, 160")
    st("s_add_u32 s58, s58, s22")
    st("v_mov_b32 v15, 0")
    st("s_lshl_b32 s59, s45, 7")
    st(f"s_add_u32 s59, s59, {FL_Y}")
    st("v_lshrrev_b32 v11, 3, v1")
    st("v_lshlrev_b32 v11, 12, v11")
    st("v_and_b32 v12, 7, v1")
    st("v_lshl_add_u32 v11, v12, 4, v11")
    st("s_lshl_b32 s61, s45, 2")
    st("s_add_u32 s61, s61, s13")
    st(f"s_mul_i32 s61, s61, {20*4096}")
    st("s_lshl_b32 s23, s44, 7")
    st("s_add_u32 s61, s61, s23")
    st(f"s_add_u32 s61, s61, {WS_AT}")
    st("v_lshrrev_b32 v12, 4, v1")
    st("v_lshlrev_b32 v14, 3, v12")
    st("s_mul_i32 s22, s13, 15360")
    st(f"s_add_u32 s22, s22, {SLOT}")
    st("v_add_u32 v250, s22, v2")
    st("s_mul_i32 s60, s13, 5120")
    st(f"s_add_u32 s60, s60, {L_X}")
    st("v_add_u32 v253, s60, v2")
    st(f"v_mov_b32 v251, {L_WF}")
    st("v_and_b32 v13, 15, v1")
    st("v_mul_u32_u24 v13, 160, v13")
    st("v_add3_u32 v13, v13, v14, s60")
    st("v_and_b32 v248, 3, v1")
    st("v_lshlrev_b32 v248, 3, v248")
    st("s_lshl_b32 s22, s13, 5")
    st(f"s_add_u32 s22, s22, {L_X + 2560}")
    st("v_add_u32 v248, s22, v248")
    for dl in range(5):
        st("v_lshrrev_b32 v249, 2, v1")
        st(f"v_add_u32 v249, {16*dl}, v249")
        st("v_mul_u32_u24 v252, 3277, v249")
        st("v_lshrrev_b32 v252, 16, v252")
        st(f"v_mul_u32_u24 v252, {5120-2560}, v252")
        st("v_lshl_add_u32 v252, v249, 7, v252")
        st(f"v_add_u32 v{243+dl}, v252, v248")
    def step(st, i):
        bw = vW + (i % 4)*20; bh = vH + (i % 4)*16
        st.wait("vm", ("k", i))
        st.wait("lg", ("kl", i))
        order = [(dl, li) for dl in range(5) for li in range(4)] if i < 13 else [(dl, li) for li in (1, 2, 3, 0) for dl in range(5)]
        for dl, li in order:
            c = vACC + (li*5+dl)*4
            C = f"v[{c}:{c+3}]" if i else "0"
            st(f"v_mfma_f32_16x16x32_bf16 v[{c}:{c+3}], v[{bw+4*dl}:{bw+3+4*dl}], v[{bh+4*li}:{bh+3+4*li}], {C}")
        if i + 4 < 14:
            issue_h(st, i + 4)
            if i < NL:
                if i == 0: spin_lds(st, 251, 252, "s100")
                for dl in range(5):
                    if i == 0: st(f"ds_read_b128 v[{bw+4*dl}:{bw+3+4*dl}], v253 offset:{dl*1024}", tag=("kl", i+4))
                    else: st(f"ds_read_b128 v[{bw+4*dl}:{bw+3+4*dl}], v250 offset:{(i-1)*5120 + dl*1024}", tag=("kl", i+4))
                adv(st, "s47")
            else:
                issue_w(st, i + 4)
    ypoll = f"buffer_load_dword v252, v15, s[36:39], s59 offen {SC}"
    YI = P["YI"]
    for i in range(YI+1):
        step(st, i)
        if i == 9:
            st(ypoll, tag="y")
            for k in range(3):
                if k == 2: st("s_mov_b32 exec_hi, 0")
                st(f"s_add_u32 m0, s60, {1024*k}")
                st("s_nop 0")
                st(f"buffer_load_dwordx4 v{240+k}, s[24:27], s58 offen lds", tag="x")
            st("s_mov_b64 exec, -1")
        if i == 10:
            st("s_mul_i32 s22, s45, 160")
            for dl in range(5):
                st(f"buffer_load_dwordx2 v[{vB2+2*dl}:{vB2+1+2*dl}], v14, s[52:55], s22 offen offset:{32*dl}", tag="b2")
    st.wait("vm", "y")
    resolve(st.items, a)
    def at_loads(o):
        for k in range(3):
            if k == 2: o("s_mov_b32 exec_hi, 0")
            o(f"s_add_u32 m0, s60, {2560 + 1024*k}")
            o("s_nop 0")
            o(f"buffer_load_dwordx4 v11, s[36:39], s61 offen {SC} lds")
            if k < 2: o("s_add_u32 s61, s61, 32768")
        o("s_mov_b64 exec, -1")
    a("s_mov_b32 s65, 0")
    a("v_cmp_ne_u32 vcc, s100, v252")
    a("s_cbranch_vccnz Y_LATE")
    at_loads(a)
    a("s_mov_b32 s65, 1")
    a.label("Y_LATE")
    st = Stream()
    stamp(st, 7)
    for i in range(YI+1, 14): step(st, i)
    for li in range(1, 4):
        for dl in range(5):
            c = vACC + (li*5+dl)*4
            st(f"ds_write_b128 v250, v[{c}:{c+3}] offset:{((li-1)*5+dl)*1024}")
    resolve(st.items, a)
    a("s_cmp_eq_u32 s65, 1")
    a("s_cbranch_scc1 Y_OK")
    poll_global(a, [ypoll], [252])
    at_loads(a)
    a.label("Y_OK")
    st = Stream()
    st("s_mov_b32 s59, 0xffff0000")
    def unpack_add(acc, src):
        st(f"v_lshlrev_b32 v160, 16, v{src}")
        st(f"v_and_b32 v161, s59, v{src}")
        st(f"v_lshlrev_b32 v162, 16, v{src+1}")
        st(f"v_and_b32 v163, s59, v{src+1}")
        for r in range(4): st(f"v_add_f32 v{acc+r}, v{acc+r}, v{160+r}")
    st("s_waitcnt vmcnt(3)")
    for dl in range(5):
        st(f"ds_read_b64 v[{96+2*dl}:{97+2*dl}], v13 offset:{32*dl}", tag=("xr", dl))
    for li in range(1, 4):
        st(f"s_sub_u32 s22, s13, {li}")
        st("s_and_b32 s22, s22, 3")
        st("s_mul_i32 s22, s22, 15360")
        st(f"s_add_u32 s22, s22, {SLOT + (li-1)*5120}")
        st(f"v_add_u32 v{6+li}, s22, v2")
    for dl in range(5): unpack_add(vACC+4*dl, vB2+2*dl)
    for dl in range(5):
        st.wait("lg", ("xr", dl))
        unpack_add(vACC+4*dl, 96+2*dl)
    st("s_waitcnt vmcnt(0) lgkmcnt(0)")
    st("s_barrier")
    stamp(st, 8)
    RB = 36
    for dl in range(5):
        st(f"ds_read_b64_tr_b16 v[{110+2*dl}:{111+2*dl}], v{243+dl}", tag=("r", dl))
        for li in range(1, 4):
            k = dl*3 + li-1
            st(f"ds_read_b128 v[{RB+4*k}:{RB+3+4*k}], v{6+li} offset:{dl*1024}", tag=("r", dl))
    for dl in range(5):
        c = vACC + dl*4
        st.wait("lg", ("r", dl))
        k = dl*3
        for r in range(4): st(f"v_add_f32 v{RB+4*k+r}, v{RB+4*k+r}, v{RB+4*k+4+r}")
        for r in range(4): st(f"v_add_f32 v{c+r}, v{c+r}, v{RB+4*k+8+r}")
        unpack_add(c, 110+2*dl)
        for r in range(4): st(f"v_add_f32 v{c+r}, v{c+r}, v{RB+4*k+r}")
        st(f"v_cvt_pk_bf16_f32 v{120+2*dl}, v{c}, v{c+1}")
        st(f"v_cvt_pk_bf16_f32 v{121+2*dl}, v{c+2}, v{c+3}")
        st(f"ds_write_b64 v13, v[{120+2*dl}:{121+2*dl}] offset:{32*dl}")
    for k in range(3):
        st(f"ds_read_b128 v[{164+4*k}:{167+4*k}], v253 offset:{1024*k}", tag=("o", k))
    for k in range(3):
        st.wait("lg", ("o", k))
        if k == 2: st("s_mov_b32 exec_hi, 0")
        st(f"buffer_store_dwordx4 v[{164+4*k}:{167+4*k}], v{240+k}, s[48:51], s58 offen {P['OUTFL']}")
    st("s_mov_b64 exec, -1")
    if Cfg.PROF: st.waitall("vm")
    stamp(st, 9)
    resolve(st.items, a)
    a("s_or_b32 s22, s2, s12")
    a("s_cmp_lg_u32 s22, 0")
    a("s_cbranch_scc1 G_NOR")
    a("v_and_b32 v3, 7, v1")
    a("v_lshlrev_b32 v3, 7, v3")
    a(f"s_mov_b32 s59, {FL_Y}")
    poll_global(a, [f"buffer_load_dword v4, v3, s[36:39], s59 offen {SC}"], [4])
    a(f"s_mov_b32 s22, {FL_R}")
    store1(a, "s100", "s22", 4, SC)
    a.label("G_NOR")
    prof_flush(a, 10, 36, 12)
    if P["DBGOUT"]:
        a("s_cmp_lg_u32 s2, 9"); a("s_cbranch_scc1 DBG_E")
        a("s_cmp_lg_u32 s12, 0"); a("s_cbranch_scc1 DBG_E")
        a("s_load_dwordx2 s[8:9], s[0:1], 120"); a("s_waitcnt lgkmcnt(0)")
        srd(a, 40, 8, 256)
        a("v_mov_b32 v1, 0"); a("s_mov_b64 exec, 1")
        for i, slot in zip(range(1, 10), [1, 2, 3, 5, 6, 7, 9, 10, 11]):
            a(f"s_sub_u32 s22, s{80+2*i}, s80"); a("v_mov_b32 v2, s22")
            a(f"buffer_store_dword v2, v1, s[40:43], 0 offen offset:{4*slot}")
        a.label("DBG_E")
    a("s_endpgm")

vR = 200; vT = 212
def G_stub(a):
    a("v_lshrrev_b32 v6, 5, v1")
    a("v_and_b32 v7, 31, v1")
    a("v_mul_u32_u24 v2, 1280, v6")
    a("v_lshl_add_u32 v2, v7, 3, v2")
    a("s_mul_i32 s22, s101, 10240")
    a("s_mul_i32 s23, s13, 2560")
    a("s_add_u32 s22, s22, s23")
    a("s_waitcnt lgkmcnt(0)")
    srd(a, 24, 4, 2048*1280)
    for k in range(5):
        a(f"buffer_load_dwordx2 v[{vR+2*k}:{vR+1+2*k}], v2, s[24:27], s22 offen offset:{256*k}")
    a("s_cmp_lt_u32 s14, 28")
    a("s_cbranch_scc1 M_G")
    a("s_branch M_CS")
def LN1(a, younger):
    a(f"v_mov_b32 v{vT+8}, 0x3f803f80")
    a(f"v_mov_b32 v{vT+9}, 0xffff0000")
    for k in range(4): a(f"v_mov_b32 v{vT+k}, 0")
    a("s_mul_i32 s22, s13, 2688")
    a(f"s_add_u32 s22, s22, {L_LN}")
    a(f"v_mul_u32_u24 v{vT+14}, 1344, v6")
    a(f"v_lshl_add_u32 v{vT+14}, v7, 3, v{vT+14}")
    a(f"v_add_u32 v{vT+14}, s22, v{vT+14}")
    a(f"v_lshlrev_b32 v{vT+15}, 3, v6")
    a("s_lshl_b32 s22, s101, 6")
    a("s_lshl_b32 s23, s13, 4")
    a("s_add_u32 s22, s22, s23")
    a(f"s_add_u32 s22, s22, {WS_STATS}")
    a("s_add_u32 s23, s22, 65536")
    a(f"s_waitcnt vmcnt({younger})")
    for k in range(10):
        a(f"v_dot2_f32_bf16 v{vT+(k&1)}, v{vR+k}, v{vT+8}, v{vT+(k&1)}")
        a(f"v_dot2_f32_bf16 v{vT+2+(k&1)}, v{vR+k}, v{vR+k}, v{vT+2+(k&1)}")
    m = vT; q = vT+2
    a(f"v_add_f32 v{m}, v{m}, v{m+1}")
    a(f"v_add_f32 v{q}, v{q}, v{q+1}")
    for dpp in ("quad_perm:[1,0,3,2]", "quad_perm:[2,3,0,1]", "row_half_mirror", "row_mirror"):
        a(f"v_add_f32_dpp v{m}, v{m}, v{m} {dpp} row_mask:0xf bank_mask:0xf")
        a(f"v_add_f32_dpp v{q}, v{q}, v{q} {dpp} row_mask:0xf bank_mask:0xf")
    a(f"v_mov_b32 v{m+1}, v{m}")
    a(f"v_mov_b32 v{q+1}, v{q}")
    a(f"v_permlane16_swap_b32 v{m}, v{m+1}")
    a(f"v_permlane16_swap_b32 v{q}, v{q+1}")
    a(f"v_add_f32 v{m}, v{m}, v{m+1}")
    a(f"v_add_f32 v{q}, v{q}, v{q+1}")
    def rbf(r):
        a(f"v_cvt_pk_bf16_f32 v{r}, v{r}, v{r}")
        a(f"v_lshlrev_b32 v{r}, 16, v{r}")
    a(f"v_mul_f32 v{m}, {f32bits(1/640.)}, v{m}")
    a(f"v_mul_f32 v{q}, {f32bits(1/640.)}, v{q}")
    a(f"v_fma_f32 v{q}, -v{m}, v{m}, v{q}")
    a(f"v_max_f32 v{q}, 0, v{q}")
    rbf(q)
    a(f"v_add_f32 v{q}, {f32bits(1e-5)}, v{q}")
    rbf(q)
    a(f"v_sqrt_f32 v{q}, v{q}")
    a(f"v_mov_b32 v{vT+5}, s100")
    a(f"v_cvt_pk_bf16_f32 v{vT+4}, v{m}, v{q}")
    a("s_mov_b32 exec_lo, 1")
    a("s_mov_b32 exec_hi, 1")
    a(f"buffer_store_dwordx2 v[{vT+4}:{vT+5}], v{vT+15}, s[36:39], s22 offen {SC}")
    a(f"buffer_store_dwordx2 v[{vT+4}:{vT+5}], v{vT+15}, s[36:39], s23 offen")
    a("s_mov_b64 exec, -1")
    a(f"v_and_b32 v{q}, v{vT+9}, v{vT+4}")
    a(f"v_lshlrev_b32 v{m}, 16, v{vT+4}")
    a(f"v_rcp_f32 v{q}, v{q}")
    for k2 in range(5):
        xs = [vR+2*k2, vR+2*k2+1]; ts = [(vT+10, vT+11), (vT+12, vT+13)]
        def two(fmt):
            for x, (t0, t1) in zip(xs, ts): a(fmt.format(x=x, t0=t0, t1=t1, m=m, q=q, k=vT+9))
        two("v_lshlrev_b32 v{t0}, 16, v{x}")
        two("v_and_b32 v{t1}, v{k}, v{x}")
        two("v_sub_f32 v{t0}, v{t0}, v{m}")
        two("v_sub_f32 v{t1}, v{t1}, v{m}")
        two("v_cvt_pk_bf16_f32 v{x}, v{t0}, v{t1}")
        two("v_lshlrev_b32 v{t0}, 16, v{x}")
        two("v_and_b32 v{t1}, v{k}, v{x}")
        two("v_mul_f32 v{t0}, v{t0}, v{q}")
        two("v_mul_f32 v{t1}, v{t1}, v{q}")
        two("v_cvt_pk_bf16_f32 v{x}, v{t0}, v{t1}")
        a(f"ds_write_b64 v{vT+14}, v[{xs[0]}:{xs[1]}] offset:{256*k2}")
    a("s_waitcnt lgkmcnt(0)")
def LN2(a, vb):
    a(f"v_bfe_u32 v{vb}, v1, 2, 2")
    a(f"v_mul_u32_u24 v{vb+1}, 1344, v{vb}")
    a(f"v_lshrrev_b32 v{vb}, 4, v1")
    a(f"v_lshl_add_u32 v{vb+1}, v{vb}, 5, v{vb+1}")
    a(f"v_and_b32 v{vb}, 3, v1")
    a(f"v_lshl_add_u32 v{vb+1}, v{vb}, 3, v{vb+1}")
    a(f"v_add_u32 v{vb+1}, {L_LN}, v{vb+1}")
    a(f"v_lshlrev_b32 v{vb+2}, 4, v1")
    a("s_mul_i32 s22, s101, 10240")
    a(f"s_add_u32 s22, s22, {WS_XNT}")
    st = Stream()
    for c in range(10):
        b = vb+4+4*c
        st(f"ds_read_b64_tr_b16 v[{b}:{b+1}], v{vb+1} offset:{c*128}", tag=("l2", c))
        st(f"ds_read_b64_tr_b16 v[{b+2}:{b+3}], v{vb+1} offset:{c*128+4*1344}", tag=("l2", c))
    for c in range(10):
        b = vb+4+4*c
        st.wait("lg", ("l2", c))
        st(f"buffer_store_dwordx4 v[{b}:{b+3}], v{vb+2}, s[36:39], s22 offen offset:{1024*(c%4)} {SC}")
        if c % 4 == 3: st("s_add_u32 s22, s22, 4096")
    resolve(st.items, a)
def p_signal(a, sidx, off, v0):
    a("s_lshl_b32 s22, s3, 10")
    a(f"s_lshl_b32 s23, {sidx}, 2")
    a("s_add_u32 s22, s22, s23")
    a(f"s_add_u32 s22, s22, {FL_P + off}")
    a("s_add_u32 s23, s22, 8192")
    a(f"v_mov_b32 v{v0}, s100")
    a(f"v_mov_b32 v{v0+1}, 0")
    a("s_mov_b64 exec, 1")
    a("s_waitcnt vmcnt(0)")
    a(f"buffer_store_dword v{v0}, v{v0+1}, s[36:39], s22 offen")
    a(f"buffer_store_dword v{v0}, v{v0+1}, s[36:39], s23 offen {SC}")
    a("s_mov_b64 exec, -1")
def leader(a, off, n4, gflag, v0, sleep=2):
    L = newlabel("LD")
    a(f"v_min_u32 v{v0}, {n4-1}, v1")
    a(f"v_lshlrev_b32 v{v0}, 4, v{v0}")
    a("s_lshl_b32 s20, s3, 10")
    a(f"s_add_u32 s20, s20, {FL_P + off}")
    a("s_mov_b32 s21, 0")
    a(L + ":")
    a(f"s_sleep {sleep}")
    a("s_add_u32 s21, s21, 1")
    a("s_and_b32 s22, s21, 31")
    a("s_cmp_eq_u32 s22, 0")
    a("s_cselect_b32 s22, 8192, 0")
    a("s_add_u32 s22, s22, s20")
    a(f"buffer_load_dwordx4 v[{v0+2}:{v0+5}], v{v0}, s[36:39], s22 offen {SC}")
    a("s_waitcnt vmcnt(0)")
    check_tags(a, [v0+2, v0+3, v0+4, v0+5], L)
    a("s_lshl_b32 s22, s3, 7")
    a(f"s_add_u32 s22, s22, {gflag}")
    store1(a, "s100", "s22", v0, SC)

def C_stub(a):
    st = Stream()
    srd(st, 40, 52, 1728*1280)
    st("s_lshl_b32 s18, s44, 2")
    st("s_add_u32 s18, s18, s13")
    st("s_mul_i32 s19, s13, 20480")
    st("v_lshrrev_b32 v8, 3, v1")
    st("v_and_b32 v9, 7, v1")
    st("v_mul_u32_u24 v8, 1280, v8")
    st("v_lshl_add_u32 v8, v9, 4, v8")
    NB = 5
    st("s_lshr_b32 s21, s18, 1")
    st("s_and_b32 s20, s18, 1")
    st("s_mul_i32 s22, s20, 640")
    st("s_mul_i32 s23, s21, 40960")
    st("s_add_u32 s22, s22, s23")
    for k in range(4):
        for i in range(NB):
            st(f"s_add_u32 m0, s19, {i*4096 + k*1024 - 128*i}")
            st("s_nop 0")
            st(f"buffer_load_dwordx4 v8, s[40:43], s22 offen offset:{128*i} lds")
        if k < 3: st("s_add_u32 s22, s22, 10240")
    st(f"s_mul_i32 s64, s20, {20*HS}")
    st("s_lshl_b32 s23, s21, 10")
    st("s_add_u32 s64, s64, s23")
    st(f"s_add_u32 s64, s64, {WS_W2P}")
    st("s_cmp_lt_u32 s21, 54")
    st(f"s_cselect_b32 s64, s64, {OOB}")
    for i in range(1, NB): st(f"s_add_u32 s{64+i}, s64, {i*4*HS}")
    resolve(st.items, a)
    a("s_branch GC")
def C_work(a):
    st = Stream()
    NB = 5
    ptr_rest(st)
    st("v_lshrrev_b32 v9, 2, v1")
    st("v_lshlrev_b32 v10, 7, v9")
    st("v_and_b32 v9, 3, v1")
    st("v_lshl_add_u32 v10, v9, 3, v10")
    st("v_add_u32 v10, s19, v10")
    st("v_lshlrev_b32 v12, 4, v1")
    for dl in range(1, 4): st(f"v_add_u32 v{12+dl}, {dl*HS}, v12")
    tag_ready(st)
    LN1(st, 20)
    st("s_barrier")
    for i in range(NB):
        st.wait("vm", ("wl", i))
        b = 16 + i*16
        for dl in range(4):
            st(f"ds_read_b64_tr_b16 v[{b+4*dl}:{b+4*dl+1}], v10 offset:{i*4096 + 32*dl}", tag=("wr", i, dl))
            st(f"ds_read_b64_tr_b16 v[{b+4*dl+2}:{b+4*dl+3}], v10 offset:{i*4096 + 32*dl + 2048}", tag=("wr", i, dl))
        for dl in range(4):
            st.wait("lg", ("wr", i, dl))
            st(f"buffer_store_dwordx4 v[{b+4*dl}:{b+4*dl+3}], v{12+dl}, s[36:39], s{64+i} offen {SC}")
    stamp(st, 1)
    resolve(st.items, a, vmq=[("wl", i) for k in range(4) for i in range(NB)])
    a("s_and_b32 s21, s18, 15")
    p_signal(a, "s21", 128, 204)
    stamp(a, 2)

def emit_G(a):
    a(f"s_setprio {P['GPRIO']}")
    G_setup(a)
    LN1(a, 4)
    stamp(a, 1)
    a("s_barrier")
    a("s_lshl_b32 s22, s16, 1")
    a("s_add_u32 s22, s22, s19")
    a("s_cmp_eq_u32 s22, 27")
    a("s_cbranch_scc1 G_SKIP")
    G_loop(a)
    poll_global(a, [f"buffer_load_dwordx2 v[{vGRN+2*rt}:{vGRN+1+2*rt}], v15, s[36:39], s60 offen offset:{128*rt} {SC}" for rt in range(4)],
                [vGRN+1, vGRN+3, vGRN+5, vGRN+7], preissued=True)
    xcc_val(a, "s22")
    a(f"v_cmp_ne_u32 vcc, s22, v{vTB}")
    a("s_or_b32 s69, vcc_lo, vcc_hi")
    if not P["LOCAL"]: a("s_mov_b32 s69, 1")
    g2_addr(a)
    a(f"v_cmp_ne_u32 vcc, s100, v{vTB+1}")
    a("s_or_b32 s72, vcc_lo, vcc_hi")
    if P["WG0"] > 4: a("s_mov_b32 s72, 1")
    a("s_cmp_lg_u32 s72, 0")
    a("s_cselect_b32 s64, 0, s64")
    G_gelu(a)
    stamp(a, 4)
    a("s_lshl_b32 s22, s15, 1")
    a("s_add_u32 s22, s22, s18")
    a("s_lshl_b32 s22, s22, 7")
    a("s_lshl_b32 s23, s16, 1")
    a("s_add_u32 s23, s23, s19")
    a("s_lshl_b32 s23, s23, 2")
    a("s_add_u32 s22, s22, s23")
    a(f"s_add_u32 s68, s22, {FL_H}")
    a("s_cmp_lg_u32 s69, 0")
    a(f"s_cselect_b32 s67, s68, {OOB}")
    a(f"s_cselect_b32 s68, {OOB}, s68")
    a("v_mov_b32 v250, s100")
    a("v_mov_b32 v251, 0")
    a("s_mov_b64 exec, 1")
    a(f"s_waitcnt vmcnt({5 if P['WG0'] == 4 else 0})")
    a("buffer_store_dword v250, v251, s[36:39], s68 offen")
    a(f"buffer_store_dword v250, v251, s[36:39], s67 offen {SC}")
    a("s_mov_b64 exec, -1")
    stamp(a, 5)
    a("s_cmp_eq_u32 s72, 0")
    a("s_cbranch_scc1 G2B")
    a.label("G2")
    G2(a)
    a.label("G_SKIP")
    a("s_waitcnt vmcnt(0)")
    a("s_mov_b32 s22, 9")
    a.label("G_BL")
    a("s_barrier")
    a("s_sub_u32 s22, s22, 1")
    a("s_cmp_lg_u32 s22, 0")
    a("s_cbranch_scc1 G_BL")
    a("s_branch G2")
    a.label("GC")
    a(f"s_setprio {P['GPRIO']}")
    C_work(a)
    a("s_branch G2")

def cbar(a):
    L = newlabel("CB")
    a("s_cmp_ge_u32 s14, 28")
    a(f"s_cbranch_scc1 {L}")
    a("s_barrier")
    a(L + ":")
def chan0(a, d):
    a(f"s_mul_i32 {d}, s14, 3")
    a("s_lshl_b32 s22, s14, 1")
    a("s_add_u32 s22, s22, 24")
    a("s_cmp_lt_u32 s14, 24")
    a(f"s_cselect_b32 {d}, {d}, s22")
def K_stub(a):
    a("s_cmp_ge_u32 s14, 28")
    a("s_cbranch_scc1 KC")
    chan0(a, "s59")
    a("s_cselect_b32 s22, 3, 2")
    a("s_cmp_ge_u32 s13, s22")
    a("s_cbranch_scc1 M_END")
    a("s_add_u32 s59, s59, s13")
    a("s_mul_i32 s47, s3, 80")
    a("s_add_u32 s47, s47, s59")
    resolve(kconv.kload().items, a)
    a("s_branch M_K")
def xcc_publish(a):
    xcc_val(a, "s23")
    a("s_lshl_b32 s22, s101, 2")
    a(f"s_add_u32 s22, s22, {FL_T}")
    a("s_cmp_eq_u32 s12, 5")
    a(f"s_cselect_b32 s22, s22, {OOB}")
    store1(a, "s23", "s22", 2, "")
def emit_KC(a):
    a.label("KC")
    a("s_waitcnt lgkmcnt(0)")
    ptr_rest(a)
    tag_ready(a)
    xcc_publish(a)
    a("s_barrier")
    a("s_cmp_lg_u32 s12, 4")
    a("s_cbranch_scc1 KC_A")
    stamp(a, 1)
    LN2(a, 4)
    stamp(a, 2)
    p_signal(a, "s14", 0, 2)
    stamp(a, 3)
    prof_flush(a, 4, 36, 12)
    a("s_endpgm")
    a.label("KC_A")
    a("s_cmp_lg_u32 s12, 5")
    a("s_cbranch_scc1 M_END")
    a("s_cmp_lg_u32 s14, 31")
    a("s_cbranch_scc1 LD_N1")
    leader(a, 0, 8, FL_X, 34)
    stamp(a, 1)
    a.label("LD_N1")
    a("s_cmp_lg_u32 s14, 29")
    a("s_cbranch_scc1 LD_N2")
    leader(a, 128, 4, FL_X+1024, 34)
    stamp(a, 1)
    a.label("LD_N2")
    a("s_cmp_lg_u32 s14, 30")
    a("s_cbranch_scc1 LD_N3")
    leader(a, 256, 20, FL_Y, 34, sleep=8)
    stamp(a, 1)
    a.label("LD_N3")
    prof_flush(a, 2, 36, 12)
    a("s_endpgm")
def emit_K(a):
    ptr_rest(a)
    a(f"s_mul_i32 s46, s13, {kconv.KREG}")
    a(f"s_add_u32 s46, s46, {L_K}")
    a("s_lshl_b32 s45, s13, 4")
    a(f"s_add_u32 s45, s45, {L_U}")
    pre, kg = kconv.kgen()
    items = kg.items
    itail = [i for i, it in enumerate(items) if it[0] == ("mark", "tail")][0]
    iearly = [i for i, it in enumerate(items) if it[0] == ("mark", "early_end")][0]
    print("kgen items", len(items), "early_end", iearly, "tail at", itail)
    resolve(pre.items, a)
    tag_ready(a)
    xcc_publish(a)
    a("s_waitcnt vmcnt(1)")
    stamp(a, 6)
    if Cfg.PROF: a("s_waitcnt lgkmcnt(0)")
    lgq = []; pos = 0
    def sl(n):
        nonlocal pos
        e = min(pos+n, itail)
        resolve(items[pos:e], a, lgq=lgq); pos = e
    sl(P["KPRE"])
    ilow = [i for i, it in enumerate(items) if it[0] == ("mark", "low_regs")][0]
    assert P["KPRE"] < ilow
    a("s_barrier")
    a("s_cmp_lg_u32 s12, 4")
    a("s_cbranch_scc1 K_A")
    LN2(a, 4)
    a.label("K_A")
    for t in range(1, 10):
        sl(P["KSL"] if t > 1 else P["KSL"]//2)
        a("s_barrier")
        if t == P["FB"]:
            a("s_cmp_lg_u32 s12, 4")
            a("s_cbranch_scc1 K_B")
            p_signal(a, "s14", 0, 252)
            stamp(a, 7)
            if Cfg.PROF: a("s_waitcnt lgkmcnt(0)")
            a.label("K_B")
    assert pos >= itail, "kgen V part unfinished: %d" % (itail-pos)
    if P["KPRIO"]: a("s_setprio 3")
    resolve(items[itail:], a, lgq=lgq)
    if P["KPRIO"]: a("s_setprio 0")
    stamp(a, 1)
    a(f"v_mov_b32 v252, {L_WF+4}")
    spin_lds(a, 252, 253, "s100")
    st = Stream()
    stamp(st, 2)
    if Cfg.PROF: st("s_waitcnt lgkmcnt(0)")
    st.extend(kconv.conv(SC))
    stamp(st, 4)
    resolve(st.items, a)
    p_signal(a, "s59", 256, 4)
    stamp(a, 5)
    prof_flush(a, 8, 36, 12)
    a("s_endpgm")

def lstamp(a, k=None):
    if not P["LDBG"]: return
    a("s_memrealtime s[76:77]"); a("s_waitcnt lgkmcnt(0)")
    if k is None:
        a("s_sub_u32 m0, s40, 2"); a("v_writelane_b32 v100, s76, m0")
    else: a(f"v_writelane_b32 v100, s76, {k}")
def emit_L(a):
    NL = P["NL"]
    a(f"v_mov_b32 v26, {L_WF}")
    a("v_mov_b32 v28, 0")
    a("v_mov_b32 v29, 0")
    a("ds_write_b64 v26, v[28:29]")
    a("s_cmp_ge_u32 s14, 28")
    a("s_cbranch_scc1 LC")
    a(f"s_setprio {P['LPRIO']}")
    a("s_mul_i32 s17, s17, 5")
    a("s_add_u32 s17, s17, s16")
    a(f"s_mul_i32 s22, s3, {P['XROT']}")
    a("s_add_u32 s17, s17, s22")
    a("s_mul_i32 s22, s17, 6554")
    a("s_lshr_b32 s22, s22, 16")
    a("s_mul_i32 s22, s22, 10")
    a("s_sub_u32 s17, s17, s22")
    a("v_lshrrev_b32 v22, 4, v1")
    a("v_bfe_u32 v21, v1, 1, 3")
    a("v_xor_b32 v21, v21, v22")
    a("v_and_b32 v23, 1, v1")
    a("v_lshl_add_u32 v21, v21, 1, v23")
    a("v_xor_b32 v23, 8, v21")
    a("v_mul_u32_u24 v24, 3456, v22")
    a("v_lshl_add_u32 v10, v21, 4, v24")
    a("v_lshl_add_u32 v11, v23, 4, v24")
    a("s_cmp_eq_u32 s16, 13")
    a("s_cselect_b32 s22, 8, 16")
    a(f"v_mov_b32 v25, {OOB}")
    a("v_cmp_gt_u32 vcc, s22, v21")
    a("v_cndmask_b32 v10, v25, v10, vcc")
    a("v_cmp_gt_u32 vcc, s22, v23")
    a("v_cndmask_b32 v11, v25, v11, vcc")
    ws = 8*3456-1024
    a(f"v_add_u32 v12, {2*ws}, v10")
    a(f"v_add_u32 v13, {3*ws}, v11")
    a(f"v_add_u32 v11, {ws}, v11")
    a("v_lshrrev_b32 v20, 3, v1")
    a("v_and_b32 v21, 7, v1")
    a("v_xor_b32 v21, v21, v22")
    a("v_mul_u32_u24 v2, 1280, v20")
    a("v_lshl_add_u32 v2, v21, 4, v2")
    a("v_xor_b32 v6, 64, v2")
    for i in range(1, 4):
        a(f"v_add_u32 v{2+i}, {i*(20480-1024)}, v2")
        a(f"v_add_u32 v{6+i}, {i*(20480-1024)}, v6")
    a("s_mul_i32 s18, s15, 163840")
    a("s_lshl_b32 s20, s16, 8")
    a("s_mov_b32 s19, 0")
    a("s_mov_b32 s40, 0")
    a("s_waitcnt lgkmcnt(0)")
    srd(a, 24, 4, 2048*1280)
    srd(a, 28, 48, 640*3456)
    ptr_rest(a)
    a.label("L_LOOP")
    a("s_cmp_lt_u32 s40, 2")
    a("s_cbranch_scc1 L_ISS")
    a("s_waitcnt vmcnt(32) lgkmcnt(0)")
    a("s_barrier")
    lstamp(a)
    a.label("L_ISS")
    a("s_lshl_b32 s22, s17, 7")
    a("s_add_u32 s22, s22, s18")
    a(f"s_mul_i32 s23, s17, {64*3456}")
    a("s_add_u32 s23, s23, s20")
    xo = [0, 10240, 81920, 92160]; wo = [0, 4*3456, 32*3456, 36*3456]
    for g in range(4):
        a(f"s_add_u32 m0, s19, {16384 + g*4096}")
        a(f"s_add_u32 s41, s23, {wo[g]}")
        for i in range(4):
            a(f"buffer_load_dwordx4 v{10+i}, s[28:31], s41 offen offset:{1024*i} lds")
        if g == 3: a("s_waitcnt vmcnt(59)")
        a(f"s_add_u32 m0, s19, {g*4096}")
        a(f"s_add_u32 s41, s22, {xo[g]}")
        for i in range(4):
            a(f"buffer_load_dwordx4 v{2+4*(g&1)+i}, s[24:27], s41 offen offset:{1024*i} lds")
    a("s_add_u32 s17, s17, 1")
    a("s_cmp_eq_u32 s17, 10")
    a("s_cselect_b32 s17, 0, s17")
    a(f"s_add_u32 s19, s19, {SLOT}")
    a(f"s_cmp_eq_u32 s19, {3*SLOT}")
    a("s_cselect_b32 s19, 0, s19")
    a("s_add_u32 s40, s40, 1")
    a("s_cmp_lt_u32 s40, 10")
    a("s_cbranch_scc1 L_LOOP")
    a("s_branch L_TAIL")
    a.label("LC")
    if P["CPREF"]:
        a("s_getpc_b64 s[10:11]")
        a.label("PCREF")
        a("s_sub_u32 s10, s10, PCREF-KSTART")
        a("s_subb_u32 s11, s11, 0")
        a("v_lshlrev_b32 v5, 7, v1")
        a("s_and_b32 s22, s14, 3")
        a("s_lshl_b32 s22, s22, 14")
        a("v_add_u32 v5, s22, v5")
        for k in range(2):
            a("v_min_u32 v2, M_END-KSTART, v5")
            a("v_mov_b32 v3, s11")
            a("v_add_co_u32 v2, vcc, s10, v2")
            a("v_addc_co_u32 v3, vcc, 0, v3, vcc")
            a("global_load_dword v50, v[2:3], off")
            a("v_add_u32 v5, 8192, v5")
    a("s_waitcnt lgkmcnt(0)")
    ptr_rest(a)
    a("s_branch L_TAIL")

def emit_L_tail(a):
    NL = P["NL"]
    xpoll = f"buffer_load_dword v32, v30, s[36:39], s59 offen {SC}"
    a.label("L_TAIL")
    tag_ready(a)
    a("v_lshlrev_b32 v14, 4, v1")
    for dl in range(1, 4): a(f"v_add_u32 v{14+dl}, {dl*(HS-1024)}, v14")
    a(f"v_add_u32 v18, {4*HS}, v14")
    g2_rot(a)
    a("v_and_b32 v30, 7, v1")
    a("v_lshlrev_b32 v30, 7, v30")
    a(f"s_mov_b32 s59, {FL_X}")
    for k in range(3):
        a(f"v_add_u32 v36, {64*k}, v1")
        a("v_mul_u32_u24 v37, 21846, v36")
        a("v_lshrrev_b32 v37, 16, v37")
        a(f"v_mul_u32_u24 v37, {10240-48}, v37")
        a(f"v_lshl_add_u32 v{40+k}, v1, 4, v37")
    chan0(a, "s65")
    a("s_mul_i32 s23, s3, 80")
    a("s_add_u32 s65, s65, s23")
    a("s_lshl_b32 s65, s65, 4")
    a(f"s_add_u32 s65, s65, {WS_XNT}")
    a("s_cmp_lt_u32 s14, 28")
    a(f"s_cselect_b32 s65, s65, {OOB}")
    a(f"v_mov_b32 v8, {L_WF}")
    a("v_mov_b32 v9, s100")
    a("s_mov_b32 s42, 0")
    a("s_cmp_lt_u32 s14, 28")
    a("s_cbranch_scc1 LW_REG")
    a("s_barrier")
    a("s_branch LW_POLL")
    a.label("LW_REG")
    a("s_waitcnt vmcnt(32)")
    a("s_barrier")
    lstamp(a, 8)
    a(xpoll)
    a("s_waitcnt vmcnt(1)")
    a("s_barrier")
    lstamp(a, 9)
    stamp(a, 1)
    a("s_waitcnt vmcnt(0)")
    a("v_cmp_ne_u32 vcc, s100, v32")
    a("s_cbranch_vccz LW_U")
    a.label("LW_POLL")
    poll_global(a, [xpoll], [32])
    a.label("LW_U")
    wpoll = f"buffer_load_dword v33, v30, s[36:39], s59 offen offset:1024 {SC}"
    a(wpoll)
    for g in range(4):
        a(f"s_mov_b32 m0, {L_U + 1440 + 3072*g}")
        for k in range(3):
            a(f"buffer_load_dwordx4 v{40+k}, s[36:39], s65 offen offset:{1024*k} {SC} lds")
        if g < 3: a("s_add_u32 s65, s65, 655360")
    a("s_waitcnt vmcnt(12)")
    a("v_cmp_ne_u32 vcc, s100, v33")
    a("s_cbranch_vccz LW_LOOP")
    a("s_waitcnt vmcnt(0)")
    a("s_mov_b64 exec, 1")
    a("ds_write_b32 v8, v9 offset:4")
    a("s_mov_b64 exec, -1")
    poll_global(a, [wpoll], [33])
    a.label("LW_LOOP")
    a("s_add_u32 s40, s46, s42")
    a("s_add_u32 s40, s40, 4")
    a("s_sub_u32 s22, s40, 14")
    a("s_cmp_ge_u32 s40, 14")
    a("s_cselect_b32 s40, s22, s40")
    a("s_mul_i32 s43, s42, 5120")
    a(f"s_add_u32 s43, s43, {SLOT-5120}")
    a("s_cmp_eq_u32 s42, 0")
    a(f"s_cselect_b32 s43, {L_X}, s43")
    a("s_cselect_b32 s20, 0, 10240")
    a("s_add_u32 s21, s20, 5120")
    for w in range(4):
        a("s_lshl_b32 s41, s40, 10")
        a("s_add_u32 s41, s41, s57")
        a(f"s_add_u32 s41, s41, {w*14336}")
        if w == 3:
            a("s_cmp_lt_u32 s40, 12")
            a(f"s_cselect_b32 s41, s41, {OOB}")
        a(f"s_waitcnt vmcnt({P['WWIN']-5})")
        a("s_mov_b32 m0, s43")
        for dl in range(4):
            a(f"buffer_load_dwordx4 v{14+dl}, s[36:39], s41 offen offset:{1024*dl} {SC} lds")
        a("s_add_u32 m0, s43, 4096")
        a("s_add_u32 s43, s43, s21")
        a(f"buffer_load_dwordx4 v18, s[36:39], s41 offen {SC} lds")
    a("s_cmp_lg_u32 s42, 0")
    a("s_cbranch_scc1 LW_NU")
    a("s_waitcnt vmcnt(20)")
    a("s_mov_b64 exec, 1")
    a("ds_write_b32 v8, v9 offset:4")
    a("s_mov_b64 exec, -1")
    a.label("LW_NU")
    a("s_add_u32 s42, s42, 1")
    a(f"s_cmp_lt_u32 s42, {NL}")
    a("s_cbranch_scc1 LW_LOOP")
    a("s_waitcnt vmcnt(0)")
    a("s_mov_b64 exec, 1")
    a("ds_write_b32 v8, v9")
    a("s_mov_b64 exec, -1")
    stamp(a, 2)
    if P["LDBG"]:
        a("s_lshl_b32 s22, s2, 6"); a(f"s_add_u32 s22, s22, {WS_PROF + (1<<18)}")
        a("v_lshlrev_b32 v2, 2, v1"); a("s_mov_b64 exec, 0xffff")
        a("buffer_store_dword v100, v2, s[36:39], s22 offen"); a("s_mov_b64 exec, -1")
    prof_flush(a, 3, 36, 12)
    a("s_endpgm")

def mega():
    a = Asm()
    a.label("KSTART")
    setup(a)
    a("s_cmp_eq_u32 s12, 7")
    a("s_cbranch_scc1 M_L")
    a("s_cmp_ge_u32 s12, 4")
    a("s_cbranch_scc1 M_KS")
    G_stub(a)
    a.label("M_KS")
    K_stub(a)
    a.label("M_L")
    emit_L(a)
    a.label("M_CS")
    C_stub(a)
    a.label("M_K")
    emit_K(a)
    a.label("M_G")
    emit_G(a)
    emit_L_tail(a)
    emit_KC(a)
    a.label("M_END")
    a("s_endpgm")
    return a.finish(True)

if __name__ == "__main__":
    Cfg.PROF = "--noprof" not in sys.argv
    Cfg.CYC = "--cyc" in sys.argv
    for x in sys.argv[2:]:
        if "=" in x:
            k, v = x.split("="); assert k in P, k; P[k] = int(v) if v.lstrip("-").isdigit() else v.replace("_", " ")
    name = "parallel_sum__ssm_conv_s4__dense_activation_gelu__prompt_kernel"
    body = mega()
    code, kd = kernel_text(name, body, 256)
    hdr = f"; @launch grid=(256,1,1) block=(512,1,1) lds={LDS_TOTAL}\n.amdgcn_target \"amdgcn-amd-amdhsa--gfx950\"\n"
    open(sys.argv[1], "w").write(hdr + code + kd)
```

```python
import sys, math
from common import *
from asmlib import Stream, resolve
import kconv

SC = "sc1"
NST = 10; SLOT = 32768; HS = 55296
WS_FL = 26 << 20
FL_R = WS_FL; FL_X = WS_FL + 1024; FL_T = WS_FL + 3072; FL_H = WS_FL + 4096; FL_Y = WS_FL + 8192
FL_P = WS_FL + 16384
OOB = "0x7f000000"
L_K = 98304; L_U = L_K + 3*kconv.KREG; L_X = L_U + kconv.USIZE
L_LN = L_X
L_WF = 163328; L_CS = 163584
LDS_TOTAL = 163840
P = dict(GRS=12, GPRIO=2, LPRIO=3, KPRE=200, KSL=56, CPREF=1, LOCAL=1, WROT=1, XROT=1, PSLEEP=4, WWIN=24, NL=4, LDBG=0, FB=3, YI=12, WG0=9, STEND=0, PADTO=0, KPRIO=0, OUTFL='', SPIN_MAX=20000, DBGOUT=0)
_l = [0]
def newlabel(p):
    _l[0] += 1; return f"{p}_{_l[0]}"

def spin_tail(a, again):
    out = newlabel("CT")
    a(f"s_cbranch_vccz {out}")
    a("s_add_u32 s79, s79, 1")
    a(f"s_cmp_lt_u32 s79, {P['SPIN_MAX']}")
    a(f"s_cbranch_scc1 {again}")
    a(out + ":")
def check_tags(a, regs, again):
    a(f"v_cmp_ne_u32 vcc, s100, v{regs[0]}")
    for r in regs[1:]:
        a(f"v_cmp_ne_u32 s[62:63], s100, v{r}")
        a("s_or_b64 vcc, vcc, s[62:63]")
    spin_tail(a, again)
def poll_global(a, loads, regs, preissued=False):
    L = newlabel("PG"); F = newlabel("PF")
    a(f"s_branch {F}")
    a(L + ":")
    a(f"s_sleep {P['PSLEEP']}")
    if not preissued: a(F + ":")
    for l in loads: a(l)
    if preissued: a(F + ":")
    a("s_waitcnt vmcnt(0)")
    check_tags(a, regs, L)
def spin_lds(a, vaddr, vtmp, sval):
    L = newlabel("SL"); O = newlabel("SO")
    a(L + ":")
    a(f"ds_read_b32 v{vtmp}, v{vaddr}")
    a("s_waitcnt lgkmcnt(0)")
    a(f"v_cmp_ne_u32 vcc, {sval}, v{vtmp}")
    a(f"s_cbranch_vccz {O}")
    a("s_sleep 1")
    a("s_add_u32 s79, s79, 1")
    a(f"s_cmp_lt_u32 s79, {10*P['SPIN_MAX']}")
    a(f"s_cbranch_scc1 {L}")
    a(O + ":")
def store1(a, val, soff, v0, fl):
    a(f"v_mov_b32 v{v0}, {val}")
    a(f"v_mov_b32 v{v0+1}, 0")
    a("s_mov_b64 exec, 1")
    a(f"buffer_store_dword v{v0}, v{v0+1}, s[36:39], {soff} offen {fl}")
    a("s_mov_b64 exec, -1")
def arrive(a, srdc, soff, count, flag_soff, v0):
    L = newlabel("AR")
    a(f"v_mov_b32 v{v0}, 1")
    a(f"v_mov_b32 v{v0+1}, 0")
    a("s_mov_b64 exec, 1")
    a(f"buffer_atomic_add v{v0}, v{v0+1}, s[{srdc}:{srdc+3}], {soff} offen sc0 sc1")
    a("s_waitcnt vmcnt(0)")
    if count & (count-1) == 0: a(f"v_and_b32 v{v0}, {count-1}, v{v0}")
    a(f"v_cmp_ne_u32 vcc, {count-1}, v{v0}")
    a(f"s_cbranch_vccnz {L}")
    a(f"v_mov_b32 v{v0}, s100")
    a(f"buffer_store_dword v{v0}, v{v0+1}, s[36:39], {flag_soff} offen {SC}")
    a(L + ":")
    a("s_mov_b64 exec, -1")
def ptr_rest(a):
    a(f"s_add_u32 s8, s6, {FL_R}")
    a("s_addc_u32 s9, s7, 0")
    a("s_load_dword s100, s[8:9], 0")
    srd(a, 36, 6, WS_SIZE)
def tag_ready(a):
    a("s_waitcnt lgkmcnt(0)")
    a("s_mul_i32 s100, s100, 1664525")
    a("s_add_u32 s100, s100, 1013904223")
    a("s_or_b32 s100, s100, 0x100")
def xcc_val(a, d):
    a(f"s_getreg_b32 {d}, hwreg(HW_REG_XCC_ID, 0, 4)")
    a(f"s_add_u32 {d}, {d}, 1")
    a(f"s_xor_b32 {d}, {d}, s100")

def setup(a):
    a("s_cmp_ge_u32 s2, 256")
    a("s_cbranch_scc1 M_END")
    stamp(a, 0)
    a("s_load_dwordx2 s[6:7], s[0:1], 128")
    a("s_load_dwordx2 s[4:5], s[0:1], 0")
    a("s_load_dwordx8 s[48:55], s[0:1], 80")
    a("s_load_dwordx16 s[60:75], s[0:1], 8")
    a("s_mov_b32 s79, 0")
    a("v_and_b32 v1, 63, v0")
    a("v_lshrrev_b32 v6, 6, v0")
    a("v_readfirstlane_b32 s12, v6")
    a("s_and_b32 s3, s2, 7")
    a("s_lshr_b32 s14, s2, 3")
    a("s_lshl_b32 s101, s3, 5")
    a("s_add_u32 s101, s101, s14")
    a("s_and_b32 s17, s14, 1")
    a("s_lshl_b32 s15, s3, 1")
    a("s_add_u32 s15, s15, s17")
    a("s_lshr_b32 s16, s14, 1")
    a("s_and_b32 s22, s14, 3")
    a("s_lshl_b32 s44, s3, 2")
    a("s_add_u32 s44, s44, s22")
    a("s_lshr_b32 s45, s14, 2")
    a("s_and_b32 s13, s12, 3")

vACC = 16; vCS = 80; vFR = 96; vONE = 160; vGRN = 164; vB1 = 172; vTB = 176
def G_setup(a):
    a("s_lshr_b32 s18, s13, 1")
    a("s_and_b32 s19, s13, 1")
    a("v_and_b32 v10, 15, v1")
    a("v_lshrrev_b32 v11, 4, v1")
    a("v_lshlrev_b32 v12, 1, v10")
    a("s_lshl_b32 s22, s16, 8")
    a("s_lshl_b32 s23, s19, 7")
    a("s_add_u32 s22, s22, s23")
    srd(a, 32, 50, 3456)
    for c in range(4):
        a(f"buffer_load_ushort v{vB1+c}, v12, s[32:35], s22 offen offset:{32*c}")
    ptr_rest(a)
    a("v_lshrrev_b32 v12, 2, v1")
    a("v_and_b32 v13, 7, v12")
    a("s_lshl_b32 s22, s19, 2")
    a("v_xor_b32 v13, s22, v13")
    a("v_lshlrev_b32 v13, 5, v13")
    a("v_lshl_add_u32 v13, v12, 8, v13")
    a("v_and_b32 v12, 3, v1")
    a("v_lshl_add_u32 v13, v12, 3, v13")
    a("v_add_u32 v2, 16384, v13")
    for c in range(1, 4): a(f"v_xor_b32 v{2+c}, {32*c}, v2")
    a("v_lshrrev_b32 v12, 1, v10")
    a("v_xor_b32 v12, v12, v11")
    a("v_lshlrev_b32 v12, 4, v12")
    a("v_and_b32 v13, 7, v10")
    a("v_lshl_add_u32 v12, v13, 7, v12")
    a("v_lshrrev_b32 v13, 3, v10")
    a("v_lshl_add_u32 v12, v13, 12, v12")
    a("s_lshl_b32 s22, s18, 13")
    a("v_add_u32 v8, s22, v12")
    a("v_xor_b32 v9, 64, v8")
    a("v_lshlrev_b32 v14, 4, v1")
    a("v_lshlrev_b32 v15, 3, v10")
    a("s_lshl_b32 s60, s15, 10")
    a("s_lshl_b32 s22, s18, 9")
    a("s_add_u32 s60, s60, s22")
    a(f"s_add_u32 s60, s60, {WS_STATS}")
    a("s_add_u32 s62, s60, 65536")
    a("v_and_b32 v13, 31, v1")
    a("v_lshlrev_b32 v13, 2, v13")
    a("s_lshl_b32 s61, s3, 7")
    a(f"s_add_u32 s61, s61, {FL_T}")
    a("v_and_b32 v12, 7, v1")
    a("v_lshlrev_b32 v12, 7, v12")
    a(f"s_mov_b32 s63, {FL_X+1024}")
    for r in range(4): a(f"v_mov_b32 v{vONE+r}, 0x3f803f80")
    tag_ready(a)

def G_loop(a):
    def reads(s):
        t, ks2 = divmod(s, 2)
        off = ((t % 3) % 2)*SLOT
        b = vFR + (s % 2)*32
        L = []
        for c in range(4):
            L.append(f"ds_read_b64_tr_b16 v[{b+4*c}:{b+4*c+1}], v{2+c} offset:{off + ks2*8192}")
            L.append(f"ds_read_b64_tr_b16 v[{b+4*c+2}:{b+4*c+3}], v{2+c} offset:{off + ks2*8192 + 4096}")
            L.append(f"ds_read_b128 v[{b+16+4*c}:{b+16+4*c+3}], v{8+ks2} offset:{off + c*1024}")
        return L
    stamp(a, 2)
    for x in reads(0): a(x)
    for s in range(20):
        t, ks2 = divmod(s, 2)
        b = vFR + (s % 2)*32
        a("s_waitcnt lgkmcnt(0)")
        pre = []
        if ks2 == 1 and t+1 < NST:
            a("s_barrier")
            if (t+1) % 3 != 1 and t+1 < NST:
                pre = [f"v_xor_b32 v{r}, 0x10000, v{r}" for r in (2, 8, 3, 4, 5, 9)]
        rr = reads(s+1) if s+1 < 20 else []
        if s == P["GRS"]:
            for rt in range(4):
                rr.append(f"buffer_load_dwordx2 v[{vGRN+2*rt}:{vGRN+1+2*rt}], v15, s[36:39], s62 offen offset:{128*rt} {SC}")
            rr.append(f"buffer_load_dword v{vTB}, v13, s[36:39], s61 offen {SC}")
        if s == 18:
            rr.append(f"buffer_load_dword v{vTB+1}, v12, s[36:39], s63 offen {SC}")
        mm = []
        for c in range(4):
            for rt in range(4):
                acc = vACC + (rt*4+c)*4
                C = f"v[{acc}:{acc+3}]" if s else "0"
                mm.append(f"v_mfma_f32_16x16x32_bf16 v[{acc}:{acc+3}], v[{b+4*c}:{b+4*c+3}], v[{b+16+4*rt}:{b+16+4*rt+3}], {C}")
            C = f"v[{vCS+4*c}:{vCS+4*c+3}]" if s else "0"
            mm.append(f"v_mfma_f32_16x16x32_bf16 v[{vCS+4*c}:{vCS+4*c+3}], v[{vONE}:{vONE+3}], v[{b+4*c}:{b+4*c+3}], {C}")
        fill = [pre[i:i+2] for i in range(0, len(pre), 2)] + [[x] for x in rr]
        assert len(fill) <= len(mm)
        for i, x in enumerate(mm):
            a(x)
            if i < len(fill):
                for y in fill[i]: a(y)
    stamp(a, 3)

def G_gelu(a):
    vA = 96; vB = 104; vK = 112; vT = 124; vO = 132; late = []
    a("s_mov_b32 s65, 0xffff0000")
    a("v_cmp_gt_u32 s[70:71], 16, v1")
    a("s_mov_b32 s66, 0x01000100")
    for rt in range(4):
        g = vGRN+2*rt
        a(f"v_perm_b32 v{vB+2*rt}, v{g}, v{g}, s66")
        a(f"v_xor_b32 v{vB+2*rt}, 0x80008000, v{vB+2*rt}")
        a(f"v_lshrrev_b32 v{vB+2*rt+1}, 16, v{g}")
    for c in range(4):
        cs = vCS+4*c
        a(f"v_cvt_pk_bf16_f32 v{cs+1}, v{cs}, v{cs}")
        a(f"v_and_b32 v{cs+1}, s65, v{cs+1}")
        a(f"v_sub_f32 v{cs+1}, v{cs}, v{cs+1}")
        a(f"v_cvt_pk_bf16_f32 v{cs+2}, v{cs}, v{cs+1}")
        a(f"v_cndmask_b32 v{vA+2*c}, 0, v{cs+2}, s[70:71]")
        a(f"v_cndmask_b32 v{vA+2*c+1}, 0, v{vB1+c}, s[70:71]")
    for rt in range(4):
        for c in range(4):
            acc = vACC + (rt*4+c)*4
            a(f"v_mfma_f32_16x16x16_bf16 v[{acc}:{acc+3}], v[{vA+2*c}:{vA+2*c+1}], v[{vB+2*rt}:{vB+2*rt+1}], v[{acc}:{acc+3}]")
        g = vGRN+2*rt; k = vK+3*rt
        a(f"v_and_b32 v{k+2}, s65, v{g}")
        a(f"v_rcp_f32 v{k}, v{k+2}")
        a(f"v_mul_f32 v{k+1}, v{k}, v{k}")
        a(f"v_mul_f32 v{k+1}, v{k+1}, v{k}")
        a(f"v_mul_f32 v{k+1}, {f32bits(GELU_K2)}, v{k+1}")
        a(f"v_mul_f32 v{k}, {f32bits(GELU_K1)}, v{k}")
    a("s_lshl_b32 s66, s15, 3")
    a("s_lshl_b32 s67, s18, 2")
    a("s_add_u32 s66, s66, s67")
    a(f"s_mul_i32 s66, s66, {HS}")
    a("s_lshl_b32 s67, s16, 12")
    a("s_add_u32 s66, s66, s67")
    a("s_lshl_b32 s67, s19, 11")
    a("s_add_u32 s66, s66, s67")
    a("s_cmp_lg_u32 s69, 0")
    a(f"s_cselect_b32 s67, s66, {OOB}")
    a(f"s_cselect_b32 s66, {OOB}, s66")
    for rt in range(4):
        k = vK+3*rt
        for p in range(2):
            accs = [vACC + (rt*4+2*p)*4 + r for r in range(8)]
            ts = [vT + r for r in range(8)]
            for x, t in zip(accs, ts): a(f"v_mul_f32 v{t}, v{x}, v{x}")
            for x, t in zip(accs, ts): a(f"v_fma_f32 v{t}, v{t}, v{k+1}, v{k}")
            for x, t in zip(accs, ts): a(f"v_mul_f32 v{t}, v{x}, v{t}")
            for x, t in zip(accs, ts): a(f"v_exp_f32 v{t}, v{t}")
            for x, t in zip(accs, ts): a(f"v_fma_f32 v{t}, v{t}, v{k+2}, v{k+2}")
            for x, t in zip(accs, ts): a(f"v_rcp_f32 v{t}, v{t}")
            for x, t in zip(accs, ts): a(f"v_mul_f32 v{x}, v{x}, v{t}")
            o = vO + 4*p if not P["STEND"] else 180 + 8*rt + 4*p
            for i in range(4): a(f"v_cvt_pk_bf16_f32 v{o+i}, v{accs[2*i]}, v{accs[2*i+1]}")
            def stores(rt=rt, p=p, o=o):
                a(f"buffer_store_dwordx4 v[{o}:{o+3}], v14, s[36:39], s66 offen offset:{1024*p}")
                a(f"buffer_store_dwordx4 v[{o}:{o+3}], v14, s[36:39], s67 offen offset:{1024*p} {SC}")
                if p == 1 and rt < 3: a(f"s_add_u32 s66, s66, {HS}"); a(f"s_add_u32 s67, s67, {HS}")
            if P["STEND"]: late.append(stores)
            else: stores()
            k2 = rt*2 + p - P["WG0"]
            if 0 <= k2 < 4:
                st = Stream(); issue_w(st, k2); resolve(st.items, a)
    for f in late: f()

vW = 160; vH = 96
def g2_rot(a):
    a("s_and_b32 s46, s44, 3")
    a("s_mul_i32 s46, s46, 7")
    a(f"s_mul_i32 s22, s3, {P['WROT']}")
    a("s_add_u32 s46, s46, s22")
    a("s_lshr_b32 s46, s46, 1")
    a("s_mul_i32 s22, s46, 4682")
    a("s_lshr_b32 s22, s22, 16")
    a("s_mul_i32 s22, s22, 14")
    a("s_sub_u32 s46, s46, s22")
    a(f"s_mul_i32 s57, s45, {5*HS}")
    a(f"s_add_u32 s57, s57, {WS_W2P}")
def g2_addr(a):
    a("v_lshlrev_b32 v2, 4, v1")
    for dl in range(1, 5): a(f"v_add_u32 v{2+dl}, {dl*HS}, v2")
    for li in range(4):
        a(f"s_add_u32 s22, s13, {li}")
        a("s_and_b32 s22, s22, 3")
        a(f"s_mul_i32 s22, s22, {HS}")
        a(f"v_add_u32 v{7+li}, s22, v2")
    g2_rot(a)
    a("s_mov_b32 s47, s46")
    a("s_mul_i32 s22, s13, 14336")
    a(f"s_mul_i32 s56, s44, {4*HS}")
    a("s_add_u32 s56, s56, s22")
    a("s_add_u32 s57, s57, s22")
    a("s_cmp_eq_u32 s13, 3")
    a("s_cselect_b32 s64, 12, 14")
def adv(a, s):
    a(f"s_add_u32 {s}, {s}, 1")
    a(f"s_cmp_eq_u32 {s}, 14")
    a(f"s_cselect_b32 {s}, 0, {s}")
def issue_w(a, i):
    b = vW + (i % 4)*20
    a("s_lshl_b32 s23, s47, 10")
    a("s_add_u32 s23, s23, s57")
    a("s_cmp_lt_u32 s47, s64")
    a(f"s_cselect_b32 s23, s23, {OOB}")
    for dl in range(5):
        a(f"buffer_load_dwordx4 v[{b+4*dl}:{b+3+4*dl}], v{2+dl}, s[36:39], s23 offen {SC}", tag=("k", i))
    adv(a, "s47")
def issue_h(a, i):
    b = vH + (i % 4)*16
    a("s_lshl_b32 s22, s46, 10")
    a("s_add_u32 s22, s22, s56")
    a("s_cmp_lt_u32 s46, s64")
    a(f"s_cselect_b32 s22, s22, {OOB}")
    for li in range(4):
        a(f"buffer_load_dwordx4 v[{b+4*li}:{b+3+4*li}], v{7+li}, s[36:39], s22 offen {SC}", tag=("k", i))
    adv(a, "s46")

def G2(a):
    NL = P["NL"]
    g2_addr(a)
    a("v_and_b32 v13, 7, v1")
    a("v_lshlrev_b32 v13, 7, v13")
    a(f"s_mov_b32 s59, {FL_X+1024}")
    poll_global(a, [f"buffer_load_dword v15, v13, s[36:39], s59 offen {SC}"], [15])
    st = Stream()
    for i in range(4): issue_w(st, i)
    resolve(st.items, a)
    a.label("G2B")
    a("s_load_dwordx4 s[8:11], s[0:1], 104")
    a("s_load_dwordx2 s[4:5], s[0:1], 0")
    a("v_min_u32 v13, 26, v1")
    a("v_lshlrev_b32 v13, 2, v13")
    a("s_lshl_b32 s59, s44, 7")
    a(f"s_add_u32 s59, s59, {FL_H}")
    hp = f"buffer_load_dword v15, v13, s[36:39], s59 offen {SC}"
    a(hp)
    a("s_waitcnt lgkmcnt(0)")
    srd(a, 48, 10, 2048*1280)
    srd(a, 52, 8, 1280)
    srd(a, 24, 4, 2048*1280)
    old, P["PSLEEP"] = P["PSLEEP"], 1
    poll_global(a, [hp], [15], preissued=True)
    P["PSLEEP"] = old
    vB2 = 128
    st = Stream()
    for i in range(4): issue_h(st, i)
    stamp(st, 6)
    for k in range(3):
        st(f"v_add_u32 v11, {64*k}, v1")
        st("v_mul_u32_u24 v12, 6554, v11")
        st("v_lshrrev_b32 v12, 16, v12")
        st(f"v_mul_u32_u24 v{240+k}, {1280-160}, v12")
        st(f"v_lshl_add_u32 v{240+k}, v11, 4, v{240+k}")
    st("s_lshl_b32 s58, s44, 2")
    st("s_add_u32 s58, s58, s13")
    st("s_mul_i32 s58, s58, 20480")
    st("s_mul_i32 s22, s45, 160")
    st("s_add_u32 s58, s58, s22")
    st("v_mov_b32 v15, 0")
    st("s_lshl_b32 s59, s45, 7")
    st(f"s_add_u32 s59, s59, {FL_Y}")
    st("v_lshrrev_b32 v11, 3, v1")
    st("v_lshlrev_b32 v11, 12, v11")
    st("v_and_b32 v12, 7, v1")
    st("v_lshl_add_u32 v11, v12, 4, v11")
    st("s_lshl_b32 s61, s45, 2")
    st("s_add_u32 s61, s61, s13")
    st(f"s_mul_i32 s61, s61, {20*4096}")
    st("s_lshl_b32 s23, s44, 7")
    st("s_add_u32 s61, s61, s23")
    st(f"s_add_u32 s61, s61, {WS_AT}")
    st("v_lshrrev_b32 v12, 4, v1")
    st("v_lshlrev_b32 v14, 3, v12")
    st("s_mul_i32 s22, s13, 15360")
    st(f"s_add_u32 s22, s22, {SLOT}")
    st("v_add_u32 v250, s22, v2")
    st("s_mul_i32 s60, s13, 5120")
    st(f"s_add_u32 s60, s60, {L_X}")
    st("v_add_u32 v253, s60, v2")
    st(f"v_mov_b32 v251, {L_WF}")
    st("v_and_b32 v13, 15, v1")
    st("v_mul_u32_u24 v13, 160, v13")
    st("v_add3_u32 v13, v13, v14, s60")
    st("v_and_b32 v248, 3, v1")
    st("v_lshlrev_b32 v248, 3, v248")
    st("s_lshl_b32 s22, s13, 5")
    st(f"s_add_u32 s22, s22, {L_X + 2560}")
    st("v_add_u32 v248, s22, v248")
    for dl in range(5):
        st("v_lshrrev_b32 v249, 2, v1")
        st(f"v_add_u32 v249, {16*dl}, v249")
        st("v_mul_u32_u24 v252, 3277, v249")
        st("v_lshrrev_b32 v252, 16, v252")
        st(f"v_mul_u32_u24 v252, {5120-2560}, v252")
        st("v_lshl_add_u32 v252, v249, 7, v252")
        st(f"v_add_u32 v{243+dl}, v252, v248")
    def step(st, i):
        bw = vW + (i % 4)*20; bh = vH + (i % 4)*16
        st.wait("vm", ("k", i))
        st.wait("lg", ("kl", i))
        order = [(dl, li) for dl in range(5) for li in range(4)] if i < 13 else [(dl, li) for li in (1, 2, 3, 0) for dl in range(5)]
        for dl, li in order:
            c = vACC + (li*5+dl)*4
            C = f"v[{c}:{c+3}]" if i else "0"
            st(f"v_mfma_f32_16x16x32_bf16 v[{c}:{c+3}], v[{bw+4*dl}:{bw+3+4*dl}], v[{bh+4*li}:{bh+3+4*li}], {C}")
        if i + 4 < 14:
            issue_h(st, i + 4)
            if i < NL:
                if i == 0: spin_lds(st, 251, 252, "s100")
                for dl in range(5):
                    if i == 0: st(f"ds_read_b128 v[{bw+4*dl}:{bw+3+4*dl}], v253 offset:{dl*1024}", tag=("kl", i+4))
                    else: st(f"ds_read_b128 v[{bw+4*dl}:{bw+3+4*dl}], v250 offset:{(i-1)*5120 + dl*1024}", tag=("kl", i+4))
                adv(st, "s47")
            else:
                issue_w(st, i + 4)
    ypoll = f"buffer_load_dword v252, v15, s[36:39], s59 offen {SC}"
    YI = P["YI"]
    for i in range(YI+1):
        step(st, i)
        if i == 9:
            st(ypoll, tag="y")
            for k in range(3):
                if k == 2: st("s_mov_b32 exec_hi, 0")
                st(f"s_add_u32 m0, s60, {1024*k}")
                st("s_nop 0")
                st(f"buffer_load_dwordx4 v{240+k}, s[24:27], s58 offen lds", tag="x")
            st("s_mov_b64 exec, -1")
        if i == 10:
            st("s_mul_i32 s22, s45, 160")
            for dl in range(5):
                st(f"buffer_load_dwordx2 v[{vB2+2*dl}:{vB2+1+2*dl}], v14, s[52:55], s22 offen offset:{32*dl}", tag="b2")
    st.wait("vm", "y")
    resolve(st.items, a)
    def at_loads(o):
        for k in range(3):
            if k == 2: o("s_mov_b32 exec_hi, 0")
            o(f"s_add_u32 m0, s60, {2560 + 1024*k}")
            o("s_nop 0")
            o(f"buffer_load_dwordx4 v11, s[36:39], s61 offen {SC} lds")
            if k < 2: o("s_add_u32 s61, s61, 32768")
        o("s_mov_b64 exec, -1")
    a("s_mov_b32 s65, 0")
    a("v_cmp_ne_u32 vcc, s100, v252")
    a("s_cbranch_vccnz Y_LATE")
    at_loads(a)
    a("s_mov_b32 s65, 1")
    a.label("Y_LATE")
    st = Stream()
    stamp(st, 7)
    for i in range(YI+1, 14): step(st, i)
    for li in range(1, 4):
        for dl in range(5):
            c = vACC + (li*5+dl)*4
            st(f"ds_write_b128 v250, v[{c}:{c+3}] offset:{((li-1)*5+dl)*1024}")
    resolve(st.items, a)
    a("s_cmp_eq_u32 s65, 1")
    a("s_cbranch_scc1 Y_OK")
    poll_global(a, [ypoll], [252])
    at_loads(a)
    a.label("Y_OK")
    st = Stream()
    st("s_mov_b32 s59, 0xffff0000")
    def unpack_add(acc, src):
        st(f"v_lshlrev_b32 v160, 16, v{src}")
        st(f"v_and_b32 v161, s59, v{src}")
        st(f"v_lshlrev_b32 v162, 16, v{src+1}")
        st(f"v_and_b32 v163, s59, v{src+1}")
        for r in range(4): st(f"v_add_f32 v{acc+r}, v{acc+r}, v{160+r}")
    st("s_waitcnt vmcnt(3)")
    for dl in range(5):
        st(f"ds_read_b64 v[{96+2*dl}:{97+2*dl}], v13 offset:{32*dl}", tag=("xr", dl))
    for li in range(1, 4):
        st(f"s_sub_u32 s22, s13, {li}")
        st("s_and_b32 s22, s22, 3")
        st("s_mul_i32 s22, s22, 15360")
        st(f"s_add_u32 s22, s22, {SLOT + (li-1)*5120}")
        st(f"v_add_u32 v{6+li}, s22, v2")
    for dl in range(5): unpack_add(vACC+4*dl, vB2+2*dl)
    for dl in range(5):
        st.wait("lg", ("xr", dl))
        unpack_add(vACC+4*dl, 96+2*dl)
    st("s_waitcnt vmcnt(0) lgkmcnt(0)")
    st("s_barrier")
    stamp(st, 8)
    RB = 36
    for dl in range(5):
        st(f"ds_read_b64_tr_b16 v[{110+2*dl}:{111+2*dl}], v{243+dl}", tag=("r", dl))
        for li in range(1, 4):
            k = dl*3 + li-1
            st(f"ds_read_b128 v[{RB+4*k}:{RB+3+4*k}], v{6+li} offset:{dl*1024}", tag=("r", dl))
    for dl in range(5):
        c = vACC + dl*4
        st.wait("lg", ("r", dl))
        k = dl*3
        for r in range(4): st(f"v_add_f32 v{RB+4*k+r}, v{RB+4*k+r}, v{RB+4*k+4+r}")
        for r in range(4): st(f"v_add_f32 v{c+r}, v{c+r}, v{RB+4*k+8+r}")
        unpack_add(c, 110+2*dl)
        for r in range(4): st(f"v_add_f32 v{c+r}, v{c+r}, v{RB+4*k+r}")
        st(f"v_cvt_pk_bf16_f32 v{120+2*dl}, v{c}, v{c+1}")
        st(f"v_cvt_pk_bf16_f32 v{121+2*dl}, v{c+2}, v{c+3}")
        st(f"ds_write_b64 v13, v[{120+2*dl}:{121+2*dl}] offset:{32*dl}")
    for k in range(3):
        st(f"ds_read_b128 v[{164+4*k}:{167+4*k}], v253 offset:{1024*k}", tag=("o", k))
    for k in range(3):
        st.wait("lg", ("o", k))
        if k == 2: st("s_mov_b32 exec_hi, 0")
        st(f"buffer_store_dwordx4 v[{164+4*k}:{167+4*k}], v{240+k}, s[48:51], s58 offen {P['OUTFL']}")
    st("s_mov_b64 exec, -1")
    if Cfg.PROF: st.waitall("vm")
    stamp(st, 9)
    resolve(st.items, a)
    a("s_or_b32 s22, s2, s12")
    a("s_cmp_lg_u32 s22, 0")
    a("s_cbranch_scc1 G_NOR")
    a("v_and_b32 v3, 7, v1")
    a("v_lshlrev_b32 v3, 7, v3")
    a(f"s_mov_b32 s59, {FL_Y}")
    poll_global(a, [f"buffer_load_dword v4, v3, s[36:39], s59 offen {SC}"], [4])
    a(f"s_mov_b32 s22, {FL_R}")
    store1(a, "s100", "s22", 4, SC)
    if P["PADTO"]:
        a.label("PADL")
        a("s_memrealtime s[76:77]"); a("s_waitcnt lgkmcnt(0)")
        a("s_sub_u32 s76, s76, s80"); a(f"s_cmp_lt_u32 s76, {P['PADTO']*100}"); a("s_cbranch_scc1 PADL")
    a.label("G_NOR")
    prof_flush(a, 10, 36, 12)
    if P["DBGOUT"]:
        a("s_cmp_lg_u32 s2, 9"); a("s_cbranch_scc1 DBG_E")
        a("s_cmp_lg_u32 s12, 0"); a("s_cbranch_scc1 DBG_E")
        a("s_load_dwordx2 s[8:9], s[0:1], 120"); a("s_waitcnt lgkmcnt(0)")
        srd(a, 40, 8, 256)
        a("v_mov_b32 v1, 0"); a("s_mov_b64 exec, 1")
        for i, slot in zip(range(1, 10), [1, 2, 3, 5, 6, 7, 9, 10, 11]):
            a(f"s_sub_u32 s22, s{80+2*i}, s80"); a("v_mov_b32 v2, s22")
            a(f"buffer_store_dword v2, v1, s[40:43], 0 offen offset:{4*slot}")
        a.label("DBG_E")
    a("s_endpgm")

vR = 200; vT = 212
def G_stub(a):
    a("v_lshrrev_b32 v6, 5, v1")
    a("v_and_b32 v7, 31, v1")
    a("v_mul_u32_u24 v2, 1280, v6")
    a("v_lshl_add_u32 v2, v7, 3, v2")
    a("s_mul_i32 s22, s101, 10240")
    a("s_mul_i32 s23, s13, 2560")
    a("s_add_u32 s22, s22, s23")
    a("s_waitcnt lgkmcnt(0)")
    srd(a, 24, 4, 2048*1280)
    for k in range(5):
        a(f"buffer_load_dwordx2 v[{vR+2*k}:{vR+1+2*k}], v2, s[24:27], s22 offen offset:{256*k}")
    a("s_cmp_lt_u32 s14, 28")
    a("s_cbranch_scc1 M_G")
    a("s_branch M_CS")
def LN1(a, younger):
    a(f"v_mov_b32 v{vT+8}, 0x3f803f80")
    a(f"v_mov_b32 v{vT+9}, 0xffff0000")
    for k in range(4): a(f"v_mov_b32 v{vT+k}, 0")
    a("s_mul_i32 s22, s13, 2688")
    a(f"s_add_u32 s22, s22, {L_LN}")
    a(f"v_mul_u32_u24 v{vT+14}, 1344, v6")
    a(f"v_lshl_add_u32 v{vT+14}, v7, 3, v{vT+14}")
    a(f"v_add_u32 v{vT+14}, s22, v{vT+14}")
    a(f"v_lshlrev_b32 v{vT+15}, 3, v6")
    a("s_lshl_b32 s22, s101, 6")
    a("s_lshl_b32 s23, s13, 4")
    a("s_add_u32 s22, s22, s23")
    a(f"s_add_u32 s22, s22, {WS_STATS}")
    a("s_add_u32 s23, s22, 65536")
    a(f"s_waitcnt vmcnt({younger})")
    for k in range(10):
        a(f"v_dot2_f32_bf16 v{vT+(k&1)}, v{vR+k}, v{vT+8}, v{vT+(k&1)}")
        a(f"v_dot2_f32_bf16 v{vT+2+(k&1)}, v{vR+k}, v{vR+k}, v{vT+2+(k&1)}")
    m = vT; q = vT+2
    a(f"v_add_f32 v{m}, v{m}, v{m+1}")
    a(f"v_add_f32 v{q}, v{q}, v{q+1}")
    for dpp in ("quad_perm:[1,0,3,2]", "quad_perm:[2,3,0,1]", "row_half_mirror", "row_mirror"):
        a(f"v_add_f32_dpp v{m}, v{m}, v{m} {dpp} row_mask:0xf bank_mask:0xf")
        a(f"v_add_f32_dpp v{q}, v{q}, v{q} {dpp} row_mask:0xf bank_mask:0xf")
    a(f"v_mov_b32 v{m+1}, v{m}")
    a(f"v_mov_b32 v{q+1}, v{q}")
    a(f"v_permlane16_swap_b32 v{m}, v{m+1}")
    a(f"v_permlane16_swap_b32 v{q}, v{q+1}")
    a(f"v_add_f32 v{m}, v{m}, v{m+1}")
    a(f"v_add_f32 v{q}, v{q}, v{q+1}")
    def rbf(r):
        a(f"v_cvt_pk_bf16_f32 v{r}, v{r}, v{r}")
        a(f"v_lshlrev_b32 v{r}, 16, v{r}")
    a(f"v_mul_f32 v{m}, {f32bits(1/640.)}, v{m}")
    a(f"v_mul_f32 v{q}, {f32bits(1/640.)}, v{q}")
    a(f"v_fma_f32 v{q}, -v{m}, v{m}, v{q}")
    a(f"v_max_f32 v{q}, 0, v{q}")
    rbf(q)
    a(f"v_add_f32 v{q}, {f32bits(1e-5)}, v{q}")
    rbf(q)
    a(f"v_sqrt_f32 v{q}, v{q}")
    a(f"v_mov_b32 v{vT+5}, s100")
    a(f"v_cvt_pk_bf16_f32 v{vT+4}, v{m}, v{q}")
    a("s_mov_b32 exec_lo, 1")
    a("s_mov_b32 exec_hi, 1")
    a(f"buffer_store_dwordx2 v[{vT+4}:{vT+5}], v{vT+15}, s[36:39], s22 offen {SC}")
    a(f"buffer_store_dwordx2 v[{vT+4}:{vT+5}], v{vT+15}, s[36:39], s23 offen")
    a("s_mov_b64 exec, -1")
    a(f"v_and_b32 v{q}, v{vT+9}, v{vT+4}")
    a(f"v_lshlrev_b32 v{m}, 16, v{vT+4}")
    a(f"v_rcp_f32 v{q}, v{q}")
    for k2 in range(5):
        xs = [vR+2*k2, vR+2*k2+1]; ts = [(vT+10, vT+11), (vT+12, vT+13)]
        def two(fmt):
            for x, (t0, t1) in zip(xs, ts): a(fmt.format(x=x, t0=t0, t1=t1, m=m, q=q, k=vT+9))
        two("v_lshlrev_b32 v{t0}, 16, v{x}")
        two("v_and_b32 v{t1}, v{k}, v{x}")
        two("v_sub_f32 v{t0}, v{t0}, v{m}")
        two("v_sub_f32 v{t1}, v{t1}, v{m}")
        two("v_cvt_pk_bf16_f32 v{x}, v{t0}, v{t1}")
        two("v_lshlrev_b32 v{t0}, 16, v{x}")
        two("v_and_b32 v{t1}, v{k}, v{x}")
        two("v_mul_f32 v{t0}, v{t0}, v{q}")
        two("v_mul_f32 v{t1}, v{t1}, v{q}")
        two("v_cvt_pk_bf16_f32 v{x}, v{t0}, v{t1}")
        a(f"ds_write_b64 v{vT+14}, v[{xs[0]}:{xs[1]}] offset:{256*k2}")
    a("s_waitcnt lgkmcnt(0)")
def LN2(a, vb):
    a(f"v_bfe_u32 v{vb}, v1, 2, 2")
    a(f"v_mul_u32_u24 v{vb+1}, 1344, v{vb}")
    a(f"v_lshrrev_b32 v{vb}, 4, v1")
    a(f"v_lshl_add_u32 v{vb+1}, v{vb}, 5, v{vb+1}")
    a(f"v_and_b32 v{vb}, 3, v1")
    a(f"v_lshl_add_u32 v{vb+1}, v{vb}, 3, v{vb+1}")
    a(f"v_add_u32 v{vb+1}, {L_LN}, v{vb+1}")
    a(f"v_lshlrev_b32 v{vb+2}, 4, v1")
    a("s_mul_i32 s22, s101, 10240")
    a(f"s_add_u32 s22, s22, {WS_XNT}")
    st = Stream()
    for c in range(10):
        b = vb+4+4*c
        st(f"ds_read_b64_tr_b16 v[{b}:{b+1}], v{vb+1} offset:{c*128}", tag=("l2", c))
        st(f"ds_read_b64_tr_b16 v[{b+2}:{b+3}], v{vb+1} offset:{c*128+4*1344}", tag=("l2", c))
    for c in range(10):
        b = vb+4+4*c
        st.wait("lg", ("l2", c))
        st(f"buffer_store_dwordx4 v[{b}:{b+3}], v{vb+2}, s[36:39], s22 offen offset:{1024*(c%4)} {SC}")
        if c % 4 == 3: st("s_add_u32 s22, s22, 4096")
    resolve(st.items, a)
def p_signal(a, sidx, off, v0):
    a("s_lshl_b32 s22, s3, 10")
    a(f"s_lshl_b32 s23, {sidx}, 2")
    a("s_add_u32 s22, s22, s23")
    a(f"s_add_u32 s22, s22, {FL_P + off}")
    a("s_add_u32 s23, s22, 8192")
    a(f"v_mov_b32 v{v0}, s100")
    a(f"v_mov_b32 v{v0+1}, 0")
    a("s_mov_b64 exec, 1")
    a("s_waitcnt vmcnt(0)")
    a(f"buffer_store_dword v{v0}, v{v0+1}, s[36:39], s22 offen")
    a(f"buffer_store_dword v{v0}, v{v0+1}, s[36:39], s23 offen {SC}")
    a("s_mov_b64 exec, -1")
def leader(a, off, n4, gflag, v0, sleep=2):
    L = newlabel("LD")
    a(f"v_min_u32 v{v0}, {n4-1}, v1")
    a(f"v_lshlrev_b32 v{v0}, 4, v{v0}")
    a("s_lshl_b32 s20, s3, 10")
    a(f"s_add_u32 s20, s20, {FL_P + off}")
    a("s_mov_b32 s21, 0")
    a(L + ":")
    a(f"s_sleep {sleep}")
    a("s_add_u32 s21, s21, 1")
    a("s_and_b32 s22, s21, 31")
    a("s_cmp_eq_u32 s22, 0")
    a("s_cselect_b32 s22, 8192, 0")
    a("s_add_u32 s22, s22, s20")
    a(f"buffer_load_dwordx4 v[{v0+2}:{v0+5}], v{v0}, s[36:39], s22 offen {SC}")
    a("s_waitcnt vmcnt(0)")
    check_tags(a, [v0+2, v0+3, v0+4, v0+5], L)
    a("s_lshl_b32 s22, s3, 7")
    a(f"s_add_u32 s22, s22, {gflag}")
    store1(a, "s100", "s22", v0, SC)

def C_stub(a):
    st = Stream()
    srd(st, 40, 52, 1728*1280)
    st("s_lshl_b32 s18, s44, 2")
    st("s_add_u32 s18, s18, s13")
    st("s_mul_i32 s19, s13, 20480")
    st("v_lshrrev_b32 v8, 3, v1")
    st("v_and_b32 v9, 7, v1")
    st("v_mul_u32_u24 v8, 1280, v8")
    st("v_lshl_add_u32 v8, v9, 4, v8")
    NB = 5
    st("s_lshr_b32 s21, s18, 1")
    st("s_and_b32 s20, s18, 1")
    st("s_mul_i32 s22, s20, 640")
    st("s_mul_i32 s23, s21, 40960")
    st("s_add_u32 s22, s22, s23")
    for k in range(4):
        for i in range(NB):
            st(f"s_add_u32 m0, s19, {i*4096 + k*1024 - 128*i}")
            st("s_nop 0")
            st(f"buffer_load_dwordx4 v8, s[40:43], s22 offen offset:{128*i} lds")
        if k < 3: st("s_add_u32 s22, s22, 10240")
    st(f"s_mul_i32 s64, s20, {20*HS}")
    st("s_lshl_b32 s23, s21, 10")
    st("s_add_u32 s64, s64, s23")
    st(f"s_add_u32 s64, s64, {WS_W2P}")
    st("s_cmp_lt_u32 s21, 54")
    st(f"s_cselect_b32 s64, s64, {OOB}")
    for i in range(1, NB): st(f"s_add_u32 s{64+i}, s64, {i*4*HS}")
    resolve(st.items, a)
    a("s_branch GC")
def C_work(a):
    st = Stream()
    NB = 5
    ptr_rest(st)
    st("v_lshrrev_b32 v9, 2, v1")
    st("v_lshlrev_b32 v10, 7, v9")
    st("v_and_b32 v9, 3, v1")
    st("v_lshl_add_u32 v10, v9, 3, v10")
    st("v_add_u32 v10, s19, v10")
    st("v_lshlrev_b32 v12, 4, v1")
    for dl in range(1, 4): st(f"v_add_u32 v{12+dl}, {dl*HS}, v12")
    tag_ready(st)
    LN1(st, 20)
    st("s_barrier")
    for i in range(NB):
        st.wait("vm", ("wl", i))
        b = 16 + i*16
        for dl in range(4):
            st(f"ds_read_b64_tr_b16 v[{b+4*dl}:{b+4*dl+1}], v10 offset:{i*4096 + 32*dl}", tag=("wr", i, dl))
            st(f"ds_read_b64_tr_b16 v[{b+4*dl+2}:{b+4*dl+3}], v10 offset:{i*4096 + 32*dl + 2048}", tag=("wr", i, dl))
        for dl in range(4):
            st.wait("lg", ("wr", i, dl))
            st(f"buffer_store_dwordx4 v[{b+4*dl}:{b+4*dl+3}], v{12+dl}, s[36:39], s{64+i} offen {SC}")
    stamp(st, 1)
    resolve(st.items, a, vmq=[("wl", i) for k in range(4) for i in range(NB)])
    a("s_and_b32 s21, s18, 15")
    p_signal(a, "s21", 128, 204)
    stamp(a, 2)

def emit_G(a):
    a(f"s_setprio {P['GPRIO']}")
    G_setup(a)
    LN1(a, 4)
    stamp(a, 1)
    a("s_barrier")
    a("s_lshl_b32 s22, s16, 1")
    a("s_add_u32 s22, s22, s19")
    a("s_cmp_eq_u32 s22, 27")
    a("s_cbranch_scc1 G_SKIP")
    G_loop(a)
    poll_global(a, [f"buffer_load_dwordx2 v[{vGRN+2*rt}:{vGRN+1+2*rt}], v15, s[36:39], s60 offen offset:{128*rt} {SC}" for rt in range(4)],
                [vGRN+1, vGRN+3, vGRN+5, vGRN+7], preissued=True)
    xcc_val(a, "s22")
    a(f"v_cmp_ne_u32 vcc, s22, v{vTB}")
    a("s_or_b32 s69, vcc_lo, vcc_hi")
    if not P["LOCAL"]: a("s_mov_b32 s69, 1")
    g2_addr(a)
    a(f"v_cmp_ne_u32 vcc, s100, v{vTB+1}")
    a("s_or_b32 s72, vcc_lo, vcc_hi")
    if P["WG0"] > 4: a("s_mov_b32 s72, 1")
    a("s_cmp_lg_u32 s72, 0")
    a("s_cselect_b32 s64, 0, s64")
    G_gelu(a)
    stamp(a, 4)
    a("s_lshl_b32 s22, s15, 1")
    a("s_add_u32 s22, s22, s18")
    a("s_lshl_b32 s22, s22, 7")
    a("s_lshl_b32 s23, s16, 1")
    a("s_add_u32 s23, s23, s19")
    a("s_lshl_b32 s23, s23, 2")
    a("s_add_u32 s22, s22, s23")
    a(f"s_add_u32 s68, s22, {FL_H}")
    a("s_cmp_lg_u32 s69, 0")
    a(f"s_cselect_b32 s67, s68, {OOB}")
    a(f"s_cselect_b32 s68, {OOB}, s68")
    a("v_mov_b32 v250, s100")
    a("v_mov_b32 v251, 0")
    a("s_mov_b64 exec, 1")
    a(f"s_waitcnt vmcnt({5 if P['WG0'] == 4 else 0})")
    a("buffer_store_dword v250, v251, s[36:39], s68 offen")
    a(f"buffer_store_dword v250, v251, s[36:39], s67 offen {SC}")
    a("s_mov_b64 exec, -1")
    stamp(a, 5)
    a("s_cmp_eq_u32 s72, 0")
    a("s_cbranch_scc1 G2B")
    a.label("G2")
    G2(a)
    a.label("G_SKIP")
    a("s_waitcnt vmcnt(0)")
    a("s_mov_b32 s22, 9")
    a.label("G_BL")
    a("s_barrier")
    a("s_sub_u32 s22, s22, 1")
    a("s_cmp_lg_u32 s22, 0")
    a("s_cbranch_scc1 G_BL")
    a("s_branch G2")
    a.label("GC")
    a(f"s_setprio {P['GPRIO']}")
    C_work(a)
    a("s_branch G2")

def cbar(a):
    L = newlabel("CB")
    a("s_cmp_ge_u32 s14, 28")
    a(f"s_cbranch_scc1 {L}")
    a("s_barrier")
    a(L + ":")
def chan0(a, d):
    a(f"s_mul_i32 {d}, s14, 3")
    a("s_lshl_b32 s22, s14, 1")
    a("s_add_u32 s22, s22, 24")
    a("s_cmp_lt_u32 s14, 24")
    a(f"s_cselect_b32 {d}, {d}, s22")
def K_stub(a):
    a("s_cmp_ge_u32 s14, 28")
    a("s_cbranch_scc1 KC")
    chan0(a, "s59")
    a("s_cselect_b32 s22, 3, 2")
    a("s_cmp_ge_u32 s13, s22")
    a("s_cbranch_scc1 M_END")
    a("s_add_u32 s59, s59, s13")
    a("s_mul_i32 s47, s3, 80")
    a("s_add_u32 s47, s47, s59")
    resolve(kconv.kload().items, a)
    a("s_branch M_K")
def xcc_publish(a):
    xcc_val(a, "s23")
    a("s_lshl_b32 s22, s101, 2")
    a(f"s_add_u32 s22, s22, {FL_T}")
    a("s_cmp_eq_u32 s12, 5")
    a(f"s_cselect_b32 s22, s22, {OOB}")
    store1(a, "s23", "s22", 2, "")
def emit_KC(a):
    a.label("KC")
    a("s_waitcnt lgkmcnt(0)")
    ptr_rest(a)
    tag_ready(a)
    xcc_publish(a)
    a("s_barrier")
    a("s_cmp_lg_u32 s12, 4")
    a("s_cbranch_scc1 KC_A")
    stamp(a, 1)
    LN2(a, 4)
    stamp(a, 2)
    p_signal(a, "s14", 0, 2)
    stamp(a, 3)
    prof_flush(a, 4, 36, 12)
    a("s_endpgm")
    a.label("KC_A")
    a("s_cmp_lg_u32 s12, 5")
    a("s_cbranch_scc1 M_END")
    a("s_cmp_lg_u32 s14, 31")
    a("s_cbranch_scc1 LD_N1")
    leader(a, 0, 8, FL_X, 34)
    stamp(a, 1)
    a.label("LD_N1")
    a("s_cmp_lg_u32 s14, 29")
    a("s_cbranch_scc1 LD_N2")
    leader(a, 128, 4, FL_X+1024, 34)
    stamp(a, 1)
    a.label("LD_N2")
    a("s_cmp_lg_u32 s14, 30")
    a("s_cbranch_scc1 LD_N3")
    leader(a, 256, 20, FL_Y, 34, sleep=8)
    stamp(a, 1)
    a.label("LD_N3")
    prof_flush(a, 2, 36, 12)
    a("s_endpgm")
def emit_K(a):
    ptr_rest(a)
    a(f"s_mul_i32 s46, s13, {kconv.KREG}")
    a(f"s_add_u32 s46, s46, {L_K}")
    a("s_lshl_b32 s45, s13, 4")
    a(f"s_add_u32 s45, s45, {L_U}")
    pre, kg = kconv.kgen()
    items = kg.items
    itail = [i for i, it in enumerate(items) if it[0] == ("mark", "tail")][0]
    iearly = [i for i, it in enumerate(items) if it[0] == ("mark", "early_end")][0]
    print("kgen items", len(items), "early_end", iearly, "tail at", itail)
    resolve(pre.items, a)
    tag_ready(a)
    xcc_publish(a)
    a("s_waitcnt vmcnt(1)")
    stamp(a, 6)
    if Cfg.PROF: a("s_waitcnt lgkmcnt(0)")
    lgq = []; pos = 0
    def sl(n):
        nonlocal pos
        e = min(pos+n, itail)
        resolve(items[pos:e], a, lgq=lgq); pos = e
    sl(P["KPRE"])
    ilow = [i for i, it in enumerate(items) if it[0] == ("mark", "low_regs")][0]
    assert P["KPRE"] < ilow
    a("s_barrier")
    a("s_cmp_lg_u32 s12, 4")
    a("s_cbranch_scc1 K_A")
    LN2(a, 4)
    a.label("K_A")
    for t in range(1, 10):
        sl(P["KSL"] if t > 1 else P["KSL"]//2)
        a("s_barrier")
        if t == P["FB"]:
            a("s_cmp_lg_u32 s12, 4")
            a("s_cbranch_scc1 K_B")
            p_signal(a, "s14", 0, 252)
            stamp(a, 7)
            if Cfg.PROF: a("s_waitcnt lgkmcnt(0)")
            a.label("K_B")
    assert pos >= itail, "kgen V part unfinished: %d" % (itail-pos)
    if P["KPRIO"]: a("s_setprio 3")
    resolve(items[itail:], a, lgq=lgq)
    if P["KPRIO"]: a("s_setprio 0")
    stamp(a, 1)
    a(f"v_mov_b32 v252, {L_WF+4}")
    spin_lds(a, 252, 253, "s100")
    st = Stream()
    stamp(st, 2)
    if Cfg.PROF: st("s_waitcnt lgkmcnt(0)")
    st.extend(kconv.conv(SC))
    stamp(st, 4)
    resolve(st.items, a)
    p_signal(a, "s59", 256, 4)
    stamp(a, 5)
    prof_flush(a, 8, 36, 12)
    a("s_endpgm")

def lstamp(a, k=None):
    if not P["LDBG"]: return
    a("s_memrealtime s[76:77]"); a("s_waitcnt lgkmcnt(0)")
    if k is None:
        a("s_sub_u32 m0, s40, 2"); a("v_writelane_b32 v100, s76, m0")
    else: a(f"v_writelane_b32 v100, s76, {k}")
def emit_L(a):
    NL = P["NL"]
    a(f"v_mov_b32 v26, {L_WF}")
    a("v_mov_b32 v28, 0")
    a("v_mov_b32 v29, 0")
    a("ds_write_b64 v26, v[28:29]")
    a("s_cmp_ge_u32 s14, 28")
    a("s_cbranch_scc1 LC")
    a(f"s_setprio {P['LPRIO']}")
    a("s_mul_i32 s17, s17, 5")
    a("s_add_u32 s17, s17, s16")
    a(f"s_mul_i32 s22, s3, {P['XROT']}")
    a("s_add_u32 s17, s17, s22")
    a("s_mul_i32 s22, s17, 6554")
    a("s_lshr_b32 s22, s22, 16")
    a("s_mul_i32 s22, s22, 10")
    a("s_sub_u32 s17, s17, s22")
    a("v_lshrrev_b32 v22, 4, v1")
    a("v_bfe_u32 v21, v1, 1, 3")
    a("v_xor_b32 v21, v21, v22")
    a("v_and_b32 v23, 1, v1")
    a("v_lshl_add_u32 v21, v21, 1, v23")
    a("v_xor_b32 v23, 8, v21")
    a("v_mul_u32_u24 v24, 3456, v22")
    a("v_lshl_add_u32 v10, v21, 4, v24")
    a("v_lshl_add_u32 v11, v23, 4, v24")
    a("s_cmp_eq_u32 s16, 13")
    a("s_cselect_b32 s22, 8, 16")
    a(f"v_mov_b32 v25, {OOB}")
    a("v_cmp_gt_u32 vcc, s22, v21")
    a("v_cndmask_b32 v10, v25, v10, vcc")
    a("v_cmp_gt_u32 vcc, s22, v23")
    a("v_cndmask_b32 v11, v25, v11, vcc")
    ws = 8*3456-1024
    a(f"v_add_u32 v12, {2*ws}, v10")
    a(f"v_add_u32 v13, {3*ws}, v11")
    a(f"v_add_u32 v11, {ws}, v11")
    a("v_lshrrev_b32 v20, 3, v1")
    a("v_and_b32 v21, 7, v1")
    a("v_xor_b32 v21, v21, v22")
    a("v_mul_u32_u24 v2, 1280, v20")
    a("v_lshl_add_u32 v2, v21, 4, v2")
    a("v_xor_b32 v6, 64, v2")
    for i in range(1, 4):
        a(f"v_add_u32 v{2+i}, {i*(20480-1024)}, v2")
        a(f"v_add_u32 v{6+i}, {i*(20480-1024)}, v6")
    a("s_mul_i32 s18, s15, 163840")
    a("s_lshl_b32 s20, s16, 8")
    a("s_mov_b32 s19, 0")
    a("s_mov_b32 s40, 0")
    a("s_waitcnt lgkmcnt(0)")
    srd(a, 24, 4, 2048*1280)
    srd(a, 28, 48, 640*3456)
    ptr_rest(a)
    a.label("L_LOOP")
    a("s_cmp_lt_u32 s40, 2")
    a("s_cbranch_scc1 L_ISS")
    a("s_waitcnt vmcnt(32) lgkmcnt(0)")
    a("s_barrier")
    lstamp(a)
    a.label("L_ISS")
    a("s_lshl_b32 s22, s17, 7")
    a("s_add_u32 s22, s22, s18")
    a(f"s_mul_i32 s23, s17, {64*3456}")
    a("s_add_u32 s23, s23, s20")
    xo = [0, 10240, 81920, 92160]; wo = [0, 4*3456, 32*3456, 36*3456]
    for g in range(4):
        a(f"s_add_u32 m0, s19, {16384 + g*4096}")
        a(f"s_add_u32 s41, s23, {wo[g]}")
        for i in range(4):
            a(f"buffer_load_dwordx4 v{10+i}, s[28:31], s41 offen offset:{1024*i} lds")
        if g == 3: a("s_waitcnt vmcnt(59)")
        a(f"s_add_u32 m0, s19, {g*4096}")
        a(f"s_add_u32 s41, s22, {xo[g]}")
        for i in range(4):
            a(f"buffer_load_dwordx4 v{2+4*(g&1)+i}, s[24:27], s41 offen offset:{1024*i} lds")
    a("s_add_u32 s17, s17, 1")
    a("s_cmp_eq_u32 s17, 10")
    a("s_cselect_b32 s17, 0, s17")
    a(f"s_add_u32 s19, s19, {SLOT}")
    a(f"s_cmp_eq_u32 s19, {3*SLOT}")
    a("s_cselect_b32 s19, 0, s19")
    a("s_add_u32 s40, s40, 1")
    a("s_cmp_lt_u32 s40, 10")
    a("s_cbranch_scc1 L_LOOP")
    a("s_branch L_TAIL")
    a.label("LC")
    if P["CPREF"]:
        a("s_getpc_b64 s[10:11]")
        a.label("PCREF")
        a("s_sub_u32 s10, s10, PCREF-KSTART")
        a("s_subb_u32 s11, s11, 0")
        a("v_lshlrev_b32 v5, 7, v1")
        a("s_and_b32 s22, s14, 3")
        a("s_lshl_b32 s22, s22, 14")
        a("v_add_u32 v5, s22, v5")
        for k in range(2):
            a("v_min_u32 v2, M_END-KSTART, v5")
            a("v_mov_b32 v3, s11")
            a("v_add_co_u32 v2, vcc, s10, v2")
            a("v_addc_co_u32 v3, vcc, 0, v3, vcc")
            a("global_load_dword v50, v[2:3], off")
            a("v_add_u32 v5, 8192, v5")
    a("s_waitcnt lgkmcnt(0)")
    ptr_rest(a)
    a("s_branch L_TAIL")

def emit_L_tail(a):
    NL = P["NL"]
    xpoll = f"buffer_load_dword v32, v30, s[36:39], s59 offen {SC}"
    a.label("L_TAIL")
    tag_ready(a)
    a("v_lshlrev_b32 v14, 4, v1")
    for dl in range(1, 4): a(f"v_add_u32 v{14+dl}, {dl*(HS-1024)}, v14")
    a(f"v_add_u32 v18, {4*HS}, v14")
    g2_rot(a)
    a("v_and_b32 v30, 7, v1")
    a("v_lshlrev_b32 v30, 7, v30")
    a(f"s_mov_b32 s59, {FL_X}")
    for k in range(3):
        a(f"v_add_u32 v36, {64*k}, v1")
        a("v_mul_u32_u24 v37, 21846, v36")
        a("v_lshrrev_b32 v37, 16, v37")
        a(f"v_mul_u32_u24 v37, {10240-48}, v37")
        a(f"v_lshl_add_u32 v{40+k}, v1, 4, v37")
    chan0(a, "s65")
    a("s_mul_i32 s23, s3, 80")
    a("s_add_u32 s65, s65, s23")
    a("s_lshl_b32 s65, s65, 4")
    a(f"s_add_u32 s65, s65, {WS_XNT}")
    a("s_cmp_lt_u32 s14, 28")
    a(f"s_cselect_b32 s65, s65, {OOB}")
    a(f"v_mov_b32 v8, {L_WF}")
    a("v_mov_b32 v9, s100")
    a("s_mov_b32 s42, 0")
    a("s_cmp_lt_u32 s14, 28")
    a("s_cbranch_scc1 LW_REG")
    a("s_barrier")
    a("s_branch LW_POLL")
    a.label("LW_REG")
    a("s_waitcnt vmcnt(32)")
    a("s_barrier")
    lstamp(a, 8)
    a(xpoll)
    a("s_waitcnt vmcnt(1)")
    a("s_barrier")
    lstamp(a, 9)
    stamp(a, 1)
    a("s_waitcnt vmcnt(0)")
    a("v_cmp_ne_u32 vcc, s100, v32")
    a("s_cbranch_vccz LW_U")
    a.label("LW_POLL")
    poll_global(a, [xpoll], [32])
    a.label("LW_U")
    wpoll = f"buffer_load_dword v33, v30, s[36:39], s59 offen offset:1024 {SC}"
    a(wpoll)
    for g in range(4):
        a(f"s_mov_b32 m0, {L_U + 1440 + 3072*g}")
        for k in range(3):
            a(f"buffer_load_dwordx4 v{40+k}, s[36:39], s65 offen offset:{1024*k} {SC} lds")
        if g < 3: a("s_add_u32 s65, s65, 655360")
    a("s_waitcnt vmcnt(12)")
    a("v_cmp_ne_u32 vcc, s100, v33")
    a("s_cbranch_vccz LW_LOOP")
    a("s_waitcnt vmcnt(0)")
    a("s_mov_b64 exec, 1")
    a("ds_write_b32 v8, v9 offset:4")
    a("s_mov_b64 exec, -1")
    poll_global(a, [wpoll], [33])
    a.label("LW_LOOP")
    a("s_add_u32 s40, s46, s42")
    a("s_add_u32 s40, s40, 4")
    a("s_sub_u32 s22, s40, 14")
    a("s_cmp_ge_u32 s40, 14")
    a("s_cselect_b32 s40, s22, s40")
    a("s_mul_i32 s43, s42, 5120")
    a(f"s_add_u32 s43, s43, {SLOT-5120}")
    a("s_cmp_eq_u32 s42, 0")
    a(f"s_cselect_b32 s43, {L_X}, s43")
    a("s_cselect_b32 s20, 0, 10240")
    a("s_add_u32 s21, s20, 5120")
    for w in range(4):
        a("s_lshl_b32 s41, s40, 10")
        a("s_add_u32 s41, s41, s57")
        a(f"s_add_u32 s41, s41, {w*14336}")
        if w == 3:
            a("s_cmp_lt_u32 s40, 12")
            a(f"s_cselect_b32 s41, s41, {OOB}")
        a(f"s_waitcnt vmcnt({P['WWIN']-5})")
        a("s_mov_b32 m0, s43")
        for dl in range(4):
            a(f"buffer_load_dwordx4 v{14+dl}, s[36:39], s41 offen offset:{1024*dl} {SC} lds")
        a("s_add_u32 m0, s43, 4096")
        a("s_add_u32 s43, s43, s21")
        a(f"buffer_load_dwordx4 v18, s[36:39], s41 offen {SC} lds")
    a("s_cmp_lg_u32 s42, 0")
    a("s_cbranch_scc1 LW_NU")
    a("s_waitcnt vmcnt(20)")
    a("s_mov_b64 exec, 1")
    a("ds_write_b32 v8, v9 offset:4")
    a("s_mov_b64 exec, -1")
    a.label("LW_NU")
    a("s_add_u32 s42, s42, 1")
    a(f"s_cmp_lt_u32 s42, {NL}")
    a("s_cbranch_scc1 LW_LOOP")
    a("s_waitcnt vmcnt(0)")
    a("s_mov_b64 exec, 1")
    a("ds_write_b32 v8, v9")
    a("s_mov_b64 exec, -1")
    stamp(a, 2)
    if P["LDBG"]:
        a("s_lshl_b32 s22, s2, 6"); a(f"s_add_u32 s22, s22, {WS_PROF + (1<<18)}")
        a("v_lshlrev_b32 v2, 2, v1"); a("s_mov_b64 exec, 0xffff")
        a("buffer_store_dword v100, v2, s[36:39], s22 offen"); a("s_mov_b64 exec, -1")
    prof_flush(a, 3, 36, 12)
    a("s_endpgm")

def mega():
    a = Asm()
    a.label("KSTART")
    setup(a)
    a("s_cmp_eq_u32 s12, 7")
    a("s_cbranch_scc1 M_L")
    a("s_cmp_ge_u32 s12, 4")
    a("s_cbranch_scc1 M_KS")
    G_stub(a)
    a.label("M_KS")
    K_stub(a)
    a.label("M_L")
    emit_L(a)
    a.label("M_CS")
    C_stub(a)
    a.label("M_K")
    emit_K(a)
    a.label("M_G")
    emit_G(a)
    emit_L_tail(a)
    emit_KC(a)
    a.label("M_END")
    a("s_endpgm")
    return a.finish(True)

if __name__ == "__main__":
    Cfg.PROF = "--noprof" not in sys.argv
    Cfg.CYC = "--cyc" in sys.argv
    for x in sys.argv[2:]:
        if "=" in x:
            k, v = x.split("="); assert k in P, k; P[k] = int(v) if v.lstrip("-").isdigit() else v.replace("_", " ")
    name = "parallel_sum__ssm_conv_s4__dense_activation_gelu__prompt_kernel"
    body = mega()
    code, kd = kernel_text(name, body, 256)
    hdr = f"; @launch grid=(256,1,1) block=(512,1,1) lds={LDS_TOTAL}\n.amdgcn_target \"amdgcn-amd-amdhsa--gfx950\"\n"
    open(sys.argv[1], "w").write(hdr + code + kd)
```

```python
import struct
from asmlib import Asm, kernel_text
WS_H    = 0
WS_W2P  = 8 << 20
WS_XNT  = 12 << 20
WS_KR   = 16 << 20
KR_STRIDE = 4224
WS_AT   = 20 << 20
WS_STATS = 24 << 20
WS_PROF = 25 << 20
WS_SIZE = 32 << 20
class Cfg:
    PROF = True
    CYC = False
def srd(a, d, lo, size):
    a(f"s_mov_b32 s{d}, s{lo}")
    a(f"s_and_b32 s{d+1}, s{lo+1}, 0xffff")
    a(f"s_mov_b32 s{d+2}, {size}")
    a(f"s_mov_b32 s{d+3}, 0x20000")
def f32bits(x):
    return "0x%08x" % struct.unpack("<I", struct.pack("<f", x))[0]
def stamp(a, i):
    if Cfg.PROF: a(f"{'s_memtime' if Cfg.CYC else 's_memrealtime'} s[{80+2*i}:{81+2*i}]")
def prof_flush(a, n, srdws, swave, nw=8, kidx=0):
    if not Cfg.PROF: return
    a("s_waitcnt lgkmcnt(0)")
    a(f"s_mul_i32 s77, s2, {nw}")
    a(f"s_add_u32 s77, s77, s{swave}")
    a("s_lshl_b32 s77, s77, 6")
    a(f"s_add_u32 s77, s77, {WS_PROF + kidx*(1<<18)}")
    a("v_mov_b32 v1, 0")
    a("s_mov_b64 exec, 1")
    for i in range(n):
        a(f"v_mov_b32 v2, s{80+2*i}")
        a(f"buffer_store_dword v2, v1, s[{srdws}:{srdws+3}], s77 offen offset:{4*i}")
    a("s_mov_b64 exec, -1")
GELU_K1 = -2.0*0.7978845608028654*1.4426950408889634
GELU_K2 = GELU_K1*0.044715
```

```python
import sys, math
from common import *
from asmlib import Stream, resolve
import kconv

SC = "sc1"
NST = 10; SLOT = 32768; HS = 55296
WS_FL = 26 << 20
FL_R = WS_FL; FL_X = WS_FL + 1024; FL_T = WS_FL + 3072; FL_H = WS_FL + 4096; FL_Y = WS_FL + 8192
FL_P = WS_FL + 16384
OOB = "0x7f000000"
L_K = 98304; L_U = L_K + 3*kconv.KREG; L_X = L_U + kconv.USIZE
L_LN = L_X
L_WF = 163328; L_CS = 163584
LDS_TOTAL = 163840
P = dict(GRS=16, HPRE=8, HRATE=2, XD=6, NROT=7, GPRIO=2, LPRIO=3, KPRE=180, KSL=60, KS1=16, KS2=36, YSLEEP=4, CPREF=2, CSLEEP=40, LOCAL=1, WROT=2, XROT=1, PSLEEP=4, WWIN=24, NL=4, LDBG=0, FB=5, YI=12, WG0=9, GK=4, NOWL=0, W1T=0, NOMM=0, LSTR=1, STEND=0, HT=3, BDBG=0, GDBG=0, UROT=2, UW=4, HFL='sc1', PADTO=0, KPRIO=0, OUTFL='', SPIN_MAX=20000, DBGOUT=0)
_l = [0]
def newlabel(p):
    _l[0] += 1; return f"{p}_{_l[0]}"

def spin_tail(a, again):
    out = newlabel("CT")
    a(f"s_cbranch_vccz {out}")
    a("s_add_u32 s79, s79, 1")
    a(f"s_cmp_lt_u32 s79, {P['SPIN_MAX']}")
    a(f"s_cbranch_scc1 {again}")
    a(out + ":")
def check_tags(a, regs, again):
    a(f"v_cmp_ne_u32 vcc, s100, v{regs[0]}")
    for r in regs[1:]:
        a(f"v_cmp_ne_u32 s[62:63], s100, v{r}")
        a("s_or_b64 vcc, vcc, s[62:63]")
    spin_tail(a, again)
def poll_global(a, loads, regs, preissued=False):
    L = newlabel("PG"); F = newlabel("PF")
    a(f"s_branch {F}")
    a(L + ":")
    a(f"s_sleep {P['PSLEEP']}")
    if not preissued: a(F + ":")
    for l in loads: a(l)
    if preissued: a(F + ":")
    a("s_waitcnt vmcnt(0)")
    check_tags(a, regs, L)
def spin_lds(a, vaddr, vtmp, sval):
    L = newlabel("SL"); O = newlabel("SO")
    a(L + ":")
    a(f"ds_read_b32 v{vtmp}, v{vaddr}")
    a("s_waitcnt lgkmcnt(0)")
    a(f"v_cmp_ne_u32 vcc, {sval}, v{vtmp}")
    a(f"s_cbranch_vccz {O}")
    a("s_sleep 1")
    a("s_add_u32 s79, s79, 1")
    a(f"s_cmp_lt_u32 s79, {10*P['SPIN_MAX']}")
    a(f"s_cbranch_scc1 {L}")
    a(O + ":")
def store1(a, val, soff, v0, fl):
    a(f"v_mov_b32 v{v0}, {val}")
    a(f"v_mov_b32 v{v0+1}, 0")
    a("s_mov_b64 exec, 1")
    a(f"buffer_store_dword v{v0}, v{v0+1}, s[36:39], {soff} offen {fl}")
    a("s_mov_b64 exec, -1")
def arrive(a, srdc, soff, count, flag_soff, v0):
    L = newlabel("AR")
    a(f"v_mov_b32 v{v0}, 1")
    a(f"v_mov_b32 v{v0+1}, 0")
    a("s_mov_b64 exec, 1")
    a(f"buffer_atomic_add v{v0}, v{v0+1}, s[{srdc}:{srdc+3}], {soff} offen sc0 sc1")
    a("s_waitcnt vmcnt(0)")
    if count & (count-1) == 0: a(f"v_and_b32 v{v0}, {count-1}, v{v0}")
    a(f"v_cmp_ne_u32 vcc, {count-1}, v{v0}")
    a(f"s_cbranch_vccnz {L}")
    a(f"v_mov_b32 v{v0}, s100")
    a(f"buffer_store_dword v{v0}, v{v0+1}, s[36:39], {flag_soff} offen {SC}")
    a(L + ":")
    a("s_mov_b64 exec, -1")
def ptr_rest(a):
    a(f"s_add_u32 s8, s6, {FL_R}")
    a("s_addc_u32 s9, s7, 0")
    a("s_load_dword s100, s[8:9], 0")
    srd(a, 36, 6, WS_SIZE)
def tag_ready(a):
    a("s_waitcnt lgkmcnt(0)")
    a("s_mul_i32 s100, s100, 1664525")
    a("s_add_u32 s100, s100, 1013904223")
    a("s_or_b32 s100, s100, 0x100")
def xcc_val(a, d):
    a(f"s_getreg_b32 {d}, hwreg(HW_REG_XCC_ID, 0, 4)")
    a(f"s_add_u32 {d}, {d}, 1")
    a(f"s_xor_b32 {d}, {d}, s100")

bl = {}
def bar(a, who, k=None):
    if P["BDBG"]:
        a("s_memtime s[98:99]"); a("s_waitcnt lgkmcnt(0)")
        if k is None: a("s_sub_u32 m0, s40, 2"); a("v_writelane_b32 v255, s98, m0")
        else: a(f"v_writelane_b32 v255, s98, {k}")
    a("s_barrier")
def bdump(a):
    if not P["BDBG"]: return
    a("s_lshl_b32 s22, s2, 3"); a("s_add_u32 s22, s22, s12"); a("s_lshl_b32 s22, s22, 6"); a(f"s_add_u32 s22, s22, {WS_PROF + (2<<18)}")
    a("v_lshlrev_b32 v254, 2, v1"); a("s_mov_b64 exec, 0xffff")
    a("buffer_store_dword v255, v254, s[36:39], s22 offen"); a("s_mov_b64 exec, -1")
def setup(a):
    a("s_cmp_ge_u32 s2, 256")
    a("s_cbranch_scc1 M_END")
    stamp(a, 0)
    a("s_load_dwordx2 s[6:7], s[0:1], 128")
    a("s_load_dwordx2 s[4:5], s[0:1], 0")
    a("s_load_dwordx8 s[48:55], s[0:1], 80")
    a("s_load_dwordx16 s[60:75], s[0:1], 8")
    a("s_mov_b32 s79, 0")
    a("v_and_b32 v1, 63, v0")
    a("v_lshrrev_b32 v6, 6, v0")
    a("v_readfirstlane_b32 s12, v6")
    a("s_and_b32 s3, s2, 7")
    a("s_lshr_b32 s14, s2, 3")
    a("s_lshl_b32 s101, s3, 5")
    a("s_add_u32 s101, s101, s14")
    a("s_and_b32 s17, s14, 3")
    a("s_lshr_b32 s15, s3, 1")
    a("s_lshl_b32 s15, s15, 2")
    a("s_add_u32 s15, s15, s17")
    a("s_lshr_b32 s45, s14, 2")
    a("s_and_b32 s78, s3, 1")
    a("s_mul_i32 s16, s78, 7")
    a("s_add_u32 s16, s16, s45")
    a("s_lshl_b32 s44, s3, 2")
    a("s_add_u32 s44, s44, s17")
    a("s_and_b32 s13, s12, 3")

vACC = 16; vCS = 80; vFR = 96; vONE = 160; vGRN = 164; vB1 = 172; vTB = 176
def G_setup(a):
    a("s_lshr_b32 s18, s13, 1")
    a("s_and_b32 s19, s13, 1")
    a("v_and_b32 v10, 15, v1")
    a("v_lshrrev_b32 v11, 4, v1")
    a("v_lshlrev_b32 v12, 1, v10")
    a("s_lshl_b32 s22, s16, 8")
    a("s_lshl_b32 s23, s19, 7")
    a("s_add_u32 s22, s22, s23")
    srd(a, 32, 50, 3456)
    for c in range(4):
        a(f"buffer_load_ushort v{vB1+c}, v12, s[32:35], s22 offen offset:{32*c}")
    ptr_rest(a)
    a("v_lshrrev_b32 v12, 2, v1")
    a("v_and_b32 v13, 7, v12")
    a("s_lshl_b32 s22, s19, 2")
    a("v_xor_b32 v13, s22, v13")
    a("v_lshlrev_b32 v13, 5, v13")
    a("v_lshl_add_u32 v13, v12, 8, v13")
    a("v_and_b32 v12, 3, v1")
    a("v_lshl_add_u32 v13, v12, 3, v13")
    a("v_add_u32 v2, 16384, v13")
    for c in range(1, 4): a(f"v_xor_b32 v{2+c}, {32*c}, v2")
    a("v_lshrrev_b32 v12, 1, v10")
    a("v_xor_b32 v12, v12, v11")
    a("v_lshlrev_b32 v12, 4, v12")
    a("v_and_b32 v13, 7, v10")
    a("v_lshl_add_u32 v12, v13, 7, v12")
    a("v_lshrrev_b32 v13, 3, v10")
    a("v_lshl_add_u32 v12, v13, 12, v12")
    a("s_lshl_b32 s22, s18, 13")
    a("v_add_u32 v8, s22, v12")
    a("v_xor_b32 v9, 64, v8")
    a("v_lshlrev_b32 v14, 4, v1")
    a("v_lshlrev_b32 v15, 3, v10")
    a("s_lshl_b32 s60, s15, 10")
    a("s_lshl_b32 s22, s18, 9")
    a("s_add_u32 s60, s60, s22")
    a(f"s_add_u32 s60, s60, {WS_STATS}")
    a("v_and_b32 v13, 31, v1")
    a("v_lshlrev_b32 v13, 2, v13")
    a("s_lshl_b32 s61, s3, 7")
    a(f"s_add_u32 s61, s61, {FL_T}")
    a("v_and_b32 v12, 7, v1")
    a("v_lshlrev_b32 v12, 7, v12")
    a(f"s_mov_b32 s63, {FL_X+1024}")
    for r in range(4): a(f"v_mov_b32 v{vONE+r}, 0x3f803f80")
    tag_ready(a)

def G_loop(a):
    def reads(s):
        t, ks2 = divmod(s, 2)
        off = ((t % 3) % 2)*SLOT
        b = vFR + (s % 2)*32
        L = []
        for c in range(4):
            L.append(f"ds_read_b64_tr_b16 v[{b+4*c}:{b+4*c+1}], v{2+c} offset:{off + ks2*8192}")
            L.append(f"ds_read_b64_tr_b16 v[{b+4*c+2}:{b+4*c+3}], v{2+c} offset:{off + ks2*8192 + 4096}")
            L.append(f"ds_read_b128 v[{b+16+4*c}:{b+16+4*c+3}], v{8+ks2} offset:{off + c*1024}")
        return L
    stamp(a, 2)
    for x in reads(0): a(x)
    for s in range(20):
        t, ks2 = divmod(s, 2)
        b = vFR + (s % 2)*32
        a("s_waitcnt lgkmcnt(0)")
        pre = []
        if ks2 == 1 and t+1 < NST:
            bar(a, "G", t+1)
            if (t+1) % 3 != 1 and t+1 < NST:
                pre = [f"v_xor_b32 v{r}, 0x10000, v{r}" for r in (2, 8, 3, 4, 5, 9)]
        rr = reads(s+1) if s+1 < 20 else []
        if s == P["GRS"]:
            for rt in range(4):
                rr.append(f"buffer_load_dwordx2 v[{vGRN+2*rt}:{vGRN+1+2*rt}], v15, s[36:39], s60 offen offset:{128*rt} {SC}")
            rr.append(f"buffer_load_dword v{vTB}, v13, s[36:39], s61 offen {SC}")
        mm = []
        for c in range(4):
            for rt in range(4):
                acc = vACC + (rt*4+c)*4
                C = f"v[{acc}:{acc+3}]" if s else "0"
                mm.append(f"v_mfma_f32_16x16x32_bf16 v[{acc}:{acc+3}], v[{b+4*c}:{b+4*c+3}], v[{b+16+4*rt}:{b+16+4*rt+3}], {C}")
            C = f"v[{vCS+4*c}:{vCS+4*c+3}]" if s else "0"
            mm.append(f"v_mfma_f32_16x16x32_bf16 v[{vCS+4*c}:{vCS+4*c+3}], v[{vONE}:{vONE+3}], v[{b+4*c}:{b+4*c+3}], {C}")
        fill = [pre[i:i+2] for i in range(0, len(pre), 2)] + [[x] for x in rr]
        assert len(fill) <= len(mm)
        for i, x in enumerate(mm):
            a(x)
            if i < len(fill):
                for y in fill[i]: a(y)
    stamp(a, 3)
    bdump(a)

def spin_ge(a, vaddr, vtmp, thr):
    L = newlabel("SG"); O = newlabel("SO")
    a(L + ":")
    a(f"ds_read_b32 v{vtmp}, v{vaddr}")
    a("s_waitcnt lgkmcnt(0)")
    a(f"v_cmp_gt_u32 vcc, {thr}, v{vtmp}")
    a(f"s_cbranch_vccz {O}")
    a("s_sleep 1")
    a("s_add_u32 s79, s79, 1")
    a(f"s_cmp_lt_u32 s79, {10*P['SPIN_MAX']}")
    a(f"s_cbranch_scc1 {L}")
    a(O + ":")
def gsig(a, lev):
    a("s_lshl_b32 s22, s13, 2")
    a(f"s_add_u32 s22, s22, {L_WF+8}")
    a("v_mov_b32 v250, s22")
    a(f"v_mov_b32 v251, {lev}")
    a("s_mov_b64 exec, 1")
    a("ds_write_b32 v250, v251")
    a("s_mov_b64 exec, -1")
def G_gelu(a):
    vA = 96; vB = 104; vK = 112; vT = 124; vO = 132; late = []
    a("s_mov_b32 s65, 0xffff0000")
    a("v_cmp_gt_u32 s[70:71], 16, v1")
    a("s_mov_b32 s66, 0x01000100")
    for rt in range(4):
        g = vGRN+2*rt
        a(f"v_perm_b32 v{vB+2*rt}, v{g}, v{g}, s66")
        a(f"v_xor_b32 v{vB+2*rt}, 0x80008000, v{vB+2*rt}")
        a(f"v_lshrrev_b32 v{vB+2*rt+1}, 16, v{g}")
    for c in range(4):
        cs = vCS+4*c
        a(f"v_cvt_pk_bf16_f32 v{cs+1}, v{cs}, v{cs}")
        a(f"v_and_b32 v{cs+1}, s65, v{cs+1}")
        a(f"v_sub_f32 v{cs+1}, v{cs}, v{cs+1}")
        a(f"v_cvt_pk_bf16_f32 v{cs+2}, v{cs}, v{cs+1}")
        a(f"v_cndmask_b32 v{vA+2*c}, 0, v{cs+2}, s[70:71]")
        a(f"v_cndmask_b32 v{vA+2*c+1}, 0, v{vB1+c}, s[70:71]")
    for rt in range(4):
        for c in range(4):
            acc = vACC + (rt*4+c)*4
            a(f"v_mfma_f32_16x16x16_bf16 v[{acc}:{acc+3}], v[{vA+2*c}:{vA+2*c+1}], v[{vB+2*rt}:{vB+2*rt+1}], v[{acc}:{acc+3}]")
        g = vGRN+2*rt; k = vK+3*rt
        a(f"v_and_b32 v{k+2}, s65, v{g}")
        a(f"v_rcp_f32 v{k}, v{k+2}")
        a(f"v_mul_f32 v{k+1}, v{k}, v{k}")
        a(f"v_mul_f32 v{k+1}, v{k+1}, v{k}")
        a(f"v_mul_f32 v{k+1}, {f32bits(GELU_K2)}, v{k+1}")
        a(f"v_mul_f32 v{k}, {f32bits(GELU_K1)}, v{k}")
    a("s_lshl_b32 s66, s15, 3")
    a("s_lshl_b32 s67, s18, 2")
    a("s_add_u32 s66, s66, s67")
    a(f"s_mul_i32 s66, s66, {HS}")
    a("s_lshl_b32 s67, s16, 12")
    a("s_add_u32 s66, s66, s67")
    a("s_lshl_b32 s67, s19, 11")
    a("s_add_u32 s66, s66, s67")
    a("s_cmp_lg_u32 s69, 0")
    a(f"s_cselect_b32 s67, s66, {OOB}")
    a(f"s_cselect_b32 s66, {OOB}, s66")
    for rt in range(4):
        k = vK+3*rt
        for p in range(2):
            accs = [vACC + (rt*4+2*p)*4 + r for r in range(8)]
            ts = [vT + r for r in range(8)]
            for x, t in zip(accs, ts): a(f"v_mul_f32 v{t}, v{x}, v{x}")
            for x, t in zip(accs, ts): a(f"v_fma_f32 v{t}, v{t}, v{k+1}, v{k}")
            for x, t in zip(accs, ts): a(f"v_mul_f32 v{t}, v{x}, v{t}")
            for x, t in zip(accs, ts): a(f"v_exp_f32 v{t}, v{t}")
            for x, t in zip(accs, ts): a(f"v_fma_f32 v{t}, v{t}, v{k+2}, v{k+2}")
            for x, t in zip(accs, ts): a(f"v_rcp_f32 v{t}, v{t}")
            for x, t in zip(accs, ts): a(f"v_mul_f32 v{x}, v{x}, v{t}")
            o = vO + 4*p if not P["STEND"] else 180 + 8*rt + 4*p
            for i in range(4): a(f"v_cvt_pk_bf16_f32 v{o+i}, v{accs[2*i]}, v{accs[2*i+1]}")
            def stores(rt=rt, p=p, o=o):
                a(f"buffer_store_dwordx4 v[{o}:{o+3}], v14, s[36:39], s66 offen offset:{1024*p}")
                a(f"buffer_store_dwordx4 v[{o}:{o+3}], v14, s[36:39], s67 offen offset:{1024*p} {SC}")
                if p == 1 and rt < 3: a(f"s_add_u32 s66, s66, {HS}"); a(f"s_add_u32 s67, s67, {HS}")
            if P["STEND"]: late.append(stores)
            else: stores()
            if rt*2 + p + 1 == P["GK"]: gsig(a, 2)
    for f in late: f()

WS_EX = WS_KR; FL_E = WS_FL + 65536
def g2_rot(a):
    a("s_and_b32 s46, s14, 3")
    a("s_mul_i32 s46, s46, 7")
    a("s_lshr_b32 s22, s3, 1")
    a(f"s_mul_i32 s22, s22, {P['WROT']}")
    a("s_add_u32 s46, s46, s22")
    a("s_lshr_b32 s22, s14, 2")
    a(f"s_mul_i32 s22, s22, {P['NROT']}")
    a("s_lshr_b32 s22, s22, 1")
    a("s_add_u32 s46, s46, s22")
    a("s_sub_u32 s22, s46, 28")
    a("s_cmp_ge_u32 s46, 28")
    a("s_cselect_b32 s46, s22, s46")
    a("s_and_b32 s78, s3, 1")
    a("s_lshl_b32 s64, s78, 1")
    a("s_sub_u32 s64, 28, s64")
def hflag_addr(a, v, vt, sreg):
    a(f"v_min_u32 v{v}, 27, v1")
    a("s_and_b32 s22, s3, 1")
    a(f"v_subrev_u32 v{vt}, s22, v{v}")
    a(f"v_cmp_eq_u32 vcc, 13, v{v}")
    a(f"v_cmp_eq_u32 s[62:63], 27, v{v}")
    a("s_or_b64 vcc, vcc, s[62:63]")
    a(f"v_cndmask_b32 v{v}, v{v}, v{vt}, vcc")
    a(f"v_lshlrev_b32 v{v}, 2, v{v}")
    a(f"s_lshl_b32 {sreg}, s15, 1")
    a(f"s_add_u32 {sreg}, {sreg}, s22")
    a(f"s_lshl_b32 {sreg}, {sreg}, 7")
    a(f"s_add_u32 {sreg}, {sreg}, {FL_H}")

gl = [0]
def glog(a):
    if not P["GDBG"]: return
    a("s_memrealtime s[76:77]"); a("s_waitcnt lgkmcnt(0)"); a(f"v_writelane_b32 v255, s76, {gl[0]}"); gl[0] += 1
def G2(a):
    vWB = 56; vH = 96; NHB = 16; HPRE = P["HPRE"]; D = P["XD"]
    glog(a)
    a("s_load_dwordx4 s[8:11], s[0:1], 104")
    a("s_load_dwordx2 s[4:5], s[0:1], 0")
    hflag_addr(a, 96, 97, "s59")
    hp = f"buffer_load_dword v15, v96, s[36:39], s59 offen {SC}"
    a(hp)
    g2_rot(a)
    a("v_lshlrev_b32 v2, 4, v1")
    a(f"v_add_u32 v3, {L_X}, v2")
    a(f"v_add_u32 v4, {SLOT}, v2")
    a("s_lshl_b32 s57, s15, 1")
    a("s_add_u32 s57, s57, s78")
    a("s_lshl_b32 s57, s57, 2")
    a("s_add_u32 s57, s57, s13")
    a("s_xor_b32 s22, s57, 4")
    a(f"s_mul_i32 s22, s22, {HS}")
    a("v_add_u32 v7, s22, v2")
    a(f"s_mul_i32 s22, s57, {HS}")
    a("v_add_u32 v8, s22, v2")
    a("s_mul_i32 s56, s78, 28672")
    for k in range(3):
        a(f"v_add_u32 v11, {64*k}, v1")
        a("v_mul_u32_u24 v12, 6554, v11")
        a("v_lshrrev_b32 v12, 16, v12")
        a(f"v_mul_u32_u24 v{240+k}, {1280-160}, v12")
        a(f"v_lshl_add_u32 v{240+k}, v11, 4, v{240+k}")
    a("s_mul_i32 s58, s57, 20480")
    a("s_mul_i32 s22, s45, 160")
    a("s_add_u32 s58, s58, s22")
    a("v_mov_b32 v254, 0")
    a("s_lshl_b32 s73, s45, 7")
    a(f"s_add_u32 s73, s73, {FL_Y}")
    a("v_lshrrev_b32 v11, 3, v1")
    a("v_lshlrev_b32 v11, 12, v11")
    a("v_and_b32 v12, 7, v1")
    a("v_lshl_add_u32 v11, v12, 4, v11")
    a("s_lshl_b32 s61, s45, 2")
    a("s_add_u32 s61, s61, s13")
    a(f"s_mul_i32 s61, s61, {20*4096}")
    a("s_lshr_b32 s23, s57, 2")
    a("s_lshl_b32 s23, s23, 7")
    a("s_add_u32 s61, s61, s23")
    a(f"s_add_u32 s61, s61, {WS_AT}")
    a("v_lshrrev_b32 v12, 4, v1")
    a("v_lshlrev_b32 v14, 3, v12")
    a("s_mul_i32 s60, s13, 5120")
    a(f"s_add_u32 s60, s60, {L_X}")
    a("v_add_u32 v253, s60, v2")
    a(f"v_mov_b32 v5, {L_WF}")
    a("v_and_b32 v13, 15, v1")
    a("v_mul_u32_u24 v13, 160, v13")
    a("v_add3_u32 v13, v13, v14, s60")
    a("v_and_b32 v248, 3, v1")
    a("v_lshlrev_b32 v248, 3, v248")
    a("s_lshl_b32 s22, s13, 5")
    a(f"s_add_u32 s22, s22, {L_X + 2560}")
    a("v_add_u32 v248, s22, v248")
    for dl in range(5):
        a("v_lshrrev_b32 v249, 2, v1")
        a(f"v_add_u32 v249, {16*dl}, v249")
        a("v_mul_u32_u24 v252, 3277, v249")
        a("v_lshrrev_b32 v252, 16, v252")
        a(f"v_mul_u32_u24 v252, {5120-2560}, v252")
        a("v_lshl_add_u32 v252, v249, 7, v252")
        a(f"v_add_u32 v{243+dl}, v252, v248")
    a("s_lshl_b32 s66, s2, 2")
    a("s_add_u32 s66, s66, s13")
    a("s_xor_b32 s67, s66, 4")
    a("s_lshl_b32 s68, s66, 7")
    a(f"s_add_u32 s68, s68, {FL_E}")
    a("s_lshl_b32 s69, s67, 7")
    a(f"s_add_u32 s69, s69, {FL_E}")
    a("s_mul_i32 s66, s66, 3072")
    a(f"s_add_u32 s66, s66, {WS_EX}")
    a("s_mul_i32 s67, s67, 3072")
    a(f"s_add_u32 s67, s67, {WS_EX}")
    a("s_waitcnt lgkmcnt(0)")
    srd(a, 48, 10, 2048*1280)
    srd(a, 52, 8, 1280)
    srd(a, 24, 4, 2048*1280)
    old, P["PSLEEP"] = P["PSLEEP"], 1
    poll_global(a, [hp], [15], preissued=True)
    P["PSLEEP"] = old
    glog(a)
    st = Stream()
    def hl(i):
        b = vH + (i % NHB)*8
        pre = ["s_lshl_b32 s22, s46, 10", "s_add_u32 s22, s22, s56", "s_cmp_lt_u32 s46, s64", f"s_cselect_b32 s22, s22, {OOB}"]
        post = ["s_add_u32 s46, s46, 1", "s_cmp_eq_u32 s46, 28", "s_cselect_b32 s46, 0, s46"]
        return [[(x, None) for x in pre] + [(f"buffer_load_dwordx4 v[{b}:{b+3}], v7, s[36:39], s22 offen {P['HFL']}", ("k", i))],
                [(f"buffer_load_dwordx4 v[{b+4}:{b+7}], v8, s[36:39], s22 offen {P['HFL']}", ("k", i))] + [(x, None) for x in post]]
    def wslot(j):
        if j >= 22: j -= 18
        if j < 4: return 3, j*5120
        if j < 16: return 4, (j-4)*5120
        return 2, (j-16)*5120
    sched = [(i, (0, 1)) for i in range(28-D)] + [(i, (0,)) for i in range(28-D, 28)] + [(i, (1,)) for i in range(28-D, 28)]
    def wr(n):
        j = sched[n][0]; ad, off = wslot(j); b = vWB + (n % 2)*20
        return [[(f"ds_read_b128 v[{b+4*dl}:{b+3+4*dl}], v{ad} offset:{off + dl*1024}", ("w", n))] for dl in range(5)]
    nh = 0
    for i in range(HPRE):
        for g in hl(i): st.items.extend(g)
    nh = HPRE
    stamp(st, 6)
    miles = {0: 4, 4: 10, 10: 16, 16: 22, 22: 28}
    spin_ge(st, 5, 6, 4)
    for g in wr(0): st.items.extend(g)
    used = set()
    ypoll = f"buffer_load_dword v252, v254, s[36:39], s73 offen {SC}"
    vB2 = 224
    def at_loads(o):
        for k in range(3):
            if k == 2: o("s_mov_b32 exec_hi, 0")
            o(f"s_add_u32 m0, s60, {2560 + 1024*k}")
            o("s_nop 0")
            o(f"buffer_load_dwordx4 v11, s[36:39], s61 offen {SC} lds")
            if k < 2: o("s_add_u32 s61, s61, 32768")
        o("s_mov_b64 exec, -1")
    for n, (i, halves) in enumerate(sched):
        st.wait("vm", ("k", i))
        st.wait("lg", ("w", n))
        if n % 2 == 0: glog(st)
        fill = []
        if n + 1 < len(sched):
            j = sched[n+1][0]
            if n + 1 < 28 and j in miles and j > 0: spin_ge(st, 5, 6, miles[j])
            fill += wr(n+1)
        if n == 10:
            gsig(st, 3)
        k = 0
        while nh < 28 and nh - NHB < i and k < P["HRATE"] and n < 28:
            fill += hl(nh); nh += 1; k += 1
        if n == 22:
            assert nh == 28
            g = [(ypoll, "y")]
            for kk in range(3):
                if kk == 2: g.append(("s_mov_b32 exec_hi, 0", None))
                g += [(f"s_add_u32 m0, s60, {1024*kk}", None), ("s_nop 0", None), (f"buffer_load_dwordx4 v{240+kk}, s[24:27], s58 offen lds", "x")]
            g.append(("s_mov_b64 exec, -1", None))
            fill.append(g)
            fill.append([("s_mul_i32 s22, s45, 160", None)] + [(f"buffer_load_dwordx2 v[{vB2+2*dl}:{vB2+1+2*dl}], v14, s[52:55], s22 offen offset:{32*dl}", "x") for dl in range(5)])
        bw = vWB + (n % 2)*20; bh = vH + (i % NHB)*8
        mm = []
        for dl in range(5):
            for hf in halves:
                c = vACC + (hf*5+dl)*4
                C = f"v[{c}:{c+3}]" if c in used else "0"; used.add(c)
                mm.append(f"v_mfma_f32_16x16x32_bf16 v[{c}:{c+3}], v[{bw+4*dl}:{bw+3+4*dl}], v[{bh+4*hf}:{bh+3+4*hf}], {C}")
        for q, x in enumerate(mm):
            st(x)
            if q < len(fill): st.items.extend(fill[q])
        for g in fill[len(mm):]: st.items.extend(g)
        if n == 27:
            vS = vH + ((28-D-2) % NHB)*8 if D <= 12 else None
            vS = 96 + ((28 - D - 3) % NHB)*8
            if (28-D-3) % NHB == NHB-1: vS = 96 + ((28-D-4) % NHB)*8
            for q in range(10): st(f"v_cvt_pk_bf16_f32 v{vS+q}, v{vACC+2*q}, v{vACC+2*q+1}")
            for q in range(3): st(f"buffer_store_dwordx4 v[{vS+4*q}:{vS+3+4*q}], v2, s[36:39], s66 offen offset:{1024*q} {SC}", tag="ex")
            st.wait("vm", "y")
            st("s_mov_b32 s65, 0")
            st("v_cmp_ne_u32 vcc, s100, v252")
            st("s_cbranch_vccnz Y_LATE")
            st("s_mov_b32 s65, 1")
            st("Y_LATE:")
            stamp(st, 7)
    st("s_mov_b32 s59, 0xffff0000")
    K = vACC + 20
    def unpack_add(acc, src):
        st(f"v_lshlrev_b32 v236, 16, v{src}")
        st(f"v_and_b32 v237, s59, v{src}")
        st(f"v_lshlrev_b32 v238, 16, v{src+1}")
        st(f"v_and_b32 v239, s59, v{src+1}")
        for r in range(4): st(f"v_add_f32 v{acc+r}, v{acc+r}, v{236+r}")
    st.waitall("vm")
    store1(st, "s100", "s68", 250, SC)
    resolve(st.items, a)
    a("s_cmp_eq_u32 s65, 1")
    a("s_cbranch_scc1 Y_OK")
    poll_global(a, [ypoll], [252])
    a.label("Y_OK")
    at_loads(a)
    ep = f"buffer_load_dword v15, v254, s[36:39], s69 offen {SC}"
    a(ep)
    st = Stream()
    for dl in range(5):
        st(f"ds_read_b64 v[{56+2*dl}:{57+2*dl}], v13 offset:{32*dl}", tag=("xr", dl))
    for dl in range(5): unpack_add(K+4*dl, vB2+2*dl)
    for dl in range(5):
        st.wait("lg", ("xr", dl))
        unpack_add(K+4*dl, 56+2*dl)
    resolve(st.items, a)
    old, P["PSLEEP"] = P["PSLEEP"], 1
    poll_global(a, [ep], [15], preissued=True)
    P["PSLEEP"] = old
    st = Stream()
    for q in range(3): st(f"buffer_load_dwordx4 v[{96+4*q}:{99+4*q}], v2, s[36:39], s67 offen offset:{1024*q} {SC}", tag="pp")
    st("s_barrier")
    stamp(st, 8)
    for dl in range(5):
        st(f"ds_read_b64_tr_b16 v[{70+2*dl}:{71+2*dl}], v{243+dl}", tag=("r", dl))
    for dl in range(5):
        st.wait("lg", ("r", dl))
        unpack_add(K+4*dl, 70+2*dl)
    st.wait("vm", "pp")
    for dl in range(5):
        c = K + 4*dl
        unpack_add(c, 96+2*dl)
        st(f"v_cvt_pk_bf16_f32 v{120+2*dl}, v{c}, v{c+1}")
        st(f"v_cvt_pk_bf16_f32 v{121+2*dl}, v{c+2}, v{c+3}")
        st(f"ds_write_b64 v13, v[{120+2*dl}:{121+2*dl}] offset:{32*dl}")
    for k in range(3):
        st(f"ds_read_b128 v[{164+4*k}:{167+4*k}], v253 offset:{1024*k}", tag=("o", k))
    for k in range(3):
        st.wait("lg", ("o", k))
        if k == 2: st("s_mov_b32 exec_hi, 0")
        st(f"buffer_store_dwordx4 v[{164+4*k}:{167+4*k}], v{240+k}, s[48:51], s58 offen {P['OUTFL']}")
    st("s_mov_b64 exec, -1")
    if Cfg.PROF: st.waitall("vm")
    stamp(st, 9)
    resolve(st.items, a)
    a("s_or_b32 s22, s2, s12")
    a("s_cmp_lg_u32 s22, 0")
    a("s_cbranch_scc1 G_NOR")
    a("v_and_b32 v3, 7, v1")
    a("v_lshlrev_b32 v3, 7, v3")
    a(f"s_mov_b32 s59, {FL_Y}")
    poll_global(a, [f"buffer_load_dword v4, v3, s[36:39], s59 offen {SC}"], [4])
    a(f"s_mov_b32 s22, {FL_R}")
    store1(a, "s100", "s22", 4, SC)
    if P["PADTO"]:
        a.label("PADL")
        a("s_memrealtime s[76:77]"); a("s_waitcnt lgkmcnt(0)")
        a("s_sub_u32 s76, s76, s80"); a(f"s_cmp_lt_u32 s76, {P['PADTO']*100}"); a("s_cbranch_scc1 PADL")
    a.label("G_NOR")
    if P["GDBG"]:
        a("s_lshl_b32 s22, s2, 2"); a("s_add_u32 s22, s22, s13"); a("s_lshl_b32 s22, s22, 7"); a(f"s_add_u32 s22, s22, {WS_PROF + (2<<18)}")
        a("v_lshlrev_b32 v2, 2, v1"); a("s_mov_b32 exec_hi, 0")
        a("buffer_store_dword v255, v2, s[36:39], s22 offen"); a("s_mov_b64 exec, -1")
    prof_flush(a, 10, 36, 12)
    if P["DBGOUT"]:
        a("s_cmp_lg_u32 s2, 9"); a("s_cbranch_scc1 DBG_E")
        a("s_cmp_lg_u32 s12, 0"); a("s_cbranch_scc1 DBG_E")
        a("s_load_dwordx2 s[8:9], s[0:1], 120"); a("s_waitcnt lgkmcnt(0)")
        srd(a, 40, 8, 256)
        a("v_mov_b32 v1, 0"); a("s_mov_b64 exec, 1")
        for i, slot in zip(range(1, 10), [1, 2, 3, 5, 6, 7, 9, 10, 11]):
            a(f"s_sub_u32 s22, s{80+2*i}, s80"); a("v_mov_b32 v2, s22")
            a(f"buffer_store_dword v2, v1, s[40:43], 0 offen offset:{4*slot}")
        a.label("DBG_E")
    a("s_endpgm")

vR = 200; vT = 212
def G_stub(a):
    a("v_lshrrev_b32 v6, 5, v1")
    a("v_and_b32 v7, 31, v1")
    a("v_mul_u32_u24 v2, 1280, v6")
    a("v_lshl_add_u32 v2, v7, 3, v2")
    a("s_mul_i32 s22, s101, 10240")
    a("s_mul_i32 s23, s13, 2560")
    a("s_add_u32 s22, s22, s23")
    a("s_waitcnt lgkmcnt(0)")
    srd(a, 24, 4, 2048*1280)
    for k in range(5):
        a(f"buffer_load_dwordx2 v[{vR+2*k}:{vR+1+2*k}], v2, s[24:27], s22 offen offset:{256*k}")
    a("s_cmp_lt_u32 s14, 28")
    a("s_cbranch_scc1 M_G")
    a("s_branch M_CS")
def LN1(a, younger):
    a(f"v_mov_b32 v{vT+8}, 0x3f803f80")
    a(f"v_mov_b32 v{vT+9}, 0xffff0000")
    for k in range(4): a(f"v_mov_b32 v{vT+k}, 0")
    a("s_mul_i32 s22, s13, 2688")
    a(f"s_add_u32 s22, s22, {L_LN}")
    a(f"v_mul_u32_u24 v{vT+14}, 1344, v6")
    a(f"v_lshl_add_u32 v{vT+14}, v7, 3, v{vT+14}")
    a(f"v_add_u32 v{vT+14}, s22, v{vT+14}")
    a(f"v_lshlrev_b32 v{vT+15}, 3, v6")
    a("s_lshl_b32 s22, s101, 6")
    a("s_lshl_b32 s23, s13, 4")
    a("s_add_u32 s22, s22, s23")
    a(f"s_add_u32 s22, s22, {WS_STATS}")
    a("s_add_u32 s23, s22, 65536")
    a(f"s_waitcnt vmcnt({younger})")
    for k in range(10):
        a(f"v_dot2_f32_bf16 v{vT+(k&1)}, v{vR+k}, v{vT+8}, v{vT+(k&1)}")
        a(f"v_dot2_f32_bf16 v{vT+2+(k&1)}, v{vR+k}, v{vR+k}, v{vT+2+(k&1)}")
    m = vT; q = vT+2
    a(f"v_add_f32 v{m}, v{m}, v{m+1}")
    a(f"v_add_f32 v{q}, v{q}, v{q+1}")
    for dpp in ("quad_perm:[1,0,3,2]", "quad_perm:[2,3,0,1]", "row_half_mirror", "row_mirror"):
        a(f"v_add_f32_dpp v{m}, v{m}, v{m} {dpp} row_mask:0xf bank_mask:0xf")
        a(f"v_add_f32_dpp v{q}, v{q}, v{q} {dpp} row_mask:0xf bank_mask:0xf")
    a(f"v_mov_b32 v{m+1}, v{m}")
    a(f"v_mov_b32 v{q+1}, v{q}")
    a(f"v_permlane16_swap_b32 v{m}, v{m+1}")
    a(f"v_permlane16_swap_b32 v{q}, v{q+1}")
    a(f"v_add_f32 v{m}, v{m}, v{m+1}")
    a(f"v_add_f32 v{q}, v{q}, v{q+1}")
    def rbf(r):
        a(f"v_cvt_pk_bf16_f32 v{r}, v{r}, v{r}")
        a(f"v_lshlrev_b32 v{r}, 16, v{r}")
    a(f"v_mul_f32 v{m}, {f32bits(1/640.)}, v{m}")
    a(f"v_mul_f32 v{q}, {f32bits(1/640.)}, v{q}")
    a(f"v_fma_f32 v{q}, -v{m}, v{m}, v{q}")
    a(f"v_max_f32 v{q}, 0, v{q}")
    rbf(q)
    a(f"v_add_f32 v{q}, {f32bits(1e-5)}, v{q}")
    rbf(q)
    a(f"v_sqrt_f32 v{q}, v{q}")
    a(f"v_mov_b32 v{vT+5}, s100")
    a(f"v_cvt_pk_bf16_f32 v{vT+4}, v{m}, v{q}")
    a("s_mov_b32 exec_lo, 1")
    a("s_mov_b32 exec_hi, 1")
    a(f"buffer_store_dwordx2 v[{vT+4}:{vT+5}], v{vT+15}, s[36:39], s22 offen {SC}")
    a("s_mov_b64 exec, -1")
    a(f"v_and_b32 v{q}, v{vT+9}, v{vT+4}")
    a(f"v_lshlrev_b32 v{m}, 16, v{vT+4}")
    a(f"v_rcp_f32 v{q}, v{q}")
    for k2 in range(5):
        xs = [vR+2*k2, vR+2*k2+1]; ts = [(vT+10, vT+11), (vT+12, vT+13)]
        def two(fmt):
            for x, (t0, t1) in zip(xs, ts): a(fmt.format(x=x, t0=t0, t1=t1, m=m, q=q, k=vT+9))
        two("v_lshlrev_b32 v{t0}, 16, v{x}")
        two("v_and_b32 v{t1}, v{k}, v{x}")
        two("v_sub_f32 v{t0}, v{t0}, v{m}")
        two("v_sub_f32 v{t1}, v{t1}, v{m}")
        two("v_cvt_pk_bf16_f32 v{x}, v{t0}, v{t1}")
        two("v_lshlrev_b32 v{t0}, 16, v{x}")
        two("v_and_b32 v{t1}, v{k}, v{x}")
        two("v_mul_f32 v{t0}, v{t0}, v{q}")
        two("v_mul_f32 v{t1}, v{t1}, v{q}")
        two("v_cvt_pk_bf16_f32 v{x}, v{t0}, v{t1}")
        a(f"ds_write_b64 v{vT+14}, v[{xs[0]}:{xs[1]}] offset:{256*k2}")
    a("s_waitcnt lgkmcnt(0)")
def LN2_pre(a, vb):
    a(f"v_bfe_u32 v{vb}, v1, 2, 2")
    a(f"v_mul_u32_u24 v{vb+1}, 1344, v{vb}")
    a(f"v_lshrrev_b32 v{vb}, 4, v1")
    a(f"v_lshl_add_u32 v{vb+1}, v{vb}, 5, v{vb+1}")
    a(f"v_and_b32 v{vb}, 3, v1")
    a(f"v_lshl_add_u32 v{vb+1}, v{vb}, 3, v{vb+1}")
    a("s_mul_i32 s22, s13, 640")
    a(f"s_add_u32 s22, s22, {L_LN}")
    a(f"v_add_u32 v{vb+1}, s22, v{vb+1}")
    a(f"v_lshlrev_b32 v{vb+2}, 4, v1")
    a(f"v_add_u32 v{vb+3}, 4096, v{vb+2}")
    a("s_mul_i32 s43, s101, 10240")
    a("s_mul_i32 s22, s13, 5120")
    a("s_add_u32 s43, s43, s22")
    a(f"s_add_u32 s43, s43, {WS_XNT}")
    a("s_cmp_lt_u32 s13, 2")
    a(f"s_cselect_b32 s43, s43, {OOB}")
def LN2_rd(a, vb):
    for c in range(5):
        b = vb+4+4*c
        a(f"ds_read_b64_tr_b16 v[{b}:{b+1}], v{vb+1} offset:{c*128}")
        a(f"ds_read_b64_tr_b16 v[{b+2}:{b+3}], v{vb+1} offset:{c*128+4*1344}")
def LN2_st(vb):
    return [f"buffer_store_dwordx4 v[{vb+4+4*c}:{vb+7+4*c}], v{vb+2+c//4}, s[36:39], s43 offen offset:{1024*(c%4)} {SC}" for c in range(5)]
def p_signal(a, sidx, off, v0):
    a("s_lshl_b32 s22, s3, 10")
    a(f"s_lshl_b32 s23, {sidx}, 2")
    a("s_add_u32 s22, s22, s23")
    a(f"s_add_u32 s22, s22, {FL_P + off}")
    a("s_add_u32 s23, s22, 8192")
    a(f"v_mov_b32 v{v0}, s100")
    a(f"v_mov_b32 v{v0+1}, 0")
    a("s_mov_b64 exec, 1")
    a("s_waitcnt vmcnt(0)")
    a(f"buffer_store_dword v{v0}, v{v0+1}, s[36:39], s22 offen")
    a(f"buffer_store_dword v{v0}, v{v0+1}, s[36:39], s23 offen {SC}")
    a("s_mov_b64 exec, -1")
def leader(a, off, n4, gflag, v0, sleep=2):
    L = newlabel("LD")
    a(f"v_min_u32 v{v0}, {n4-1}, v1")
    a(f"v_lshlrev_b32 v{v0}, 4, v{v0}")
    a("s_lshl_b32 s20, s3, 10")
    a(f"s_add_u32 s20, s20, {FL_P + off}")
    a("s_mov_b32 s21, 0")
    a(L + ":")
    a(f"s_sleep {sleep}")
    a("s_add_u32 s21, s21, 1")
    a("s_and_b32 s22, s21, 31")
    a("s_cmp_eq_u32 s22, 0")
    a("s_cselect_b32 s22, 8192, 0")
    a("s_add_u32 s22, s22, s20")
    a(f"buffer_load_dwordx4 v[{v0+2}:{v0+5}], v{v0}, s[36:39], s22 offen {SC}")
    a("s_waitcnt vmcnt(0)")
    check_tags(a, [v0+2, v0+3, v0+4, v0+5], L)
    a("s_lshl_b32 s22, s3, 7")
    a(f"s_add_u32 s22, s22, {gflag}")
    store1(a, "s100", "s22", v0, SC)

def C_stub(a):
    st = Stream()
    srd(st, 40, 52, 1728*1280)
    st("s_lshl_b32 s18, s44, 2")
    st("s_add_u32 s18, s18, s13")
    st("s_mul_i32 s19, s13, 20480")
    st("v_lshrrev_b32 v8, 3, v1")
    st("v_and_b32 v9, 7, v1")
    st("v_mul_u32_u24 v8, 1280, v8")
    st("v_lshl_add_u32 v8, v9, 4, v8")
    NB = 5
    st("s_lshr_b32 s21, s18, 1")
    st("s_and_b32 s20, s18, 1")
    st("s_mul_i32 s22, s20, 640")
    st("s_mul_i32 s23, s21, 40960")
    st("s_add_u32 s22, s22, s23")
    for k in range(4):
        for i in range(NB):
            st(f"s_add_u32 m0, s19, {i*4096 + k*1024 - 128*i}")
            st("s_nop 0")
            st(f"buffer_load_dwordx4 v8, s[40:43], s22 offen offset:{128*i} lds")
        if k < 3: st("s_add_u32 s22, s22, 10240")
    st(f"s_mul_i32 s64, s20, {20*HS}")
    st("s_lshl_b32 s23, s21, 10")
    st("s_add_u32 s64, s64, s23")
    st(f"s_add_u32 s64, s64, {WS_W2P}")
    st("s_cmp_lt_u32 s21, 54")
    st(f"s_cselect_b32 s64, s64, {OOB}")
    for i in range(1, NB): st(f"s_add_u32 s{64+i}, s64, {i*4*HS}")
    resolve(st.items, a)
    a("s_branch GC")
def C_work(a):
    st = Stream()
    NB = 5
    ptr_rest(st)
    st("v_lshrrev_b32 v9, 2, v1")
    st("v_lshlrev_b32 v10, 7, v9")
    st("v_and_b32 v9, 3, v1")
    st("v_lshl_add_u32 v10, v9, 3, v10")
    st("v_add_u32 v10, s19, v10")
    st("v_lshlrev_b32 v12, 4, v1")
    for dl in range(1, 4): st(f"v_add_u32 v{12+dl}, {dl*HS}, v12")
    tag_ready(st)
    LN1(st, 20)
    st("s_barrier")
    for i in range(NB):
        st.wait("vm", ("wl", i))
        b = 16 + i*16
        for dl in range(4):
            st(f"ds_read_b64_tr_b16 v[{b+4*dl}:{b+4*dl+1}], v10 offset:{i*4096 + 32*dl}", tag=("wr", i, dl))
            st(f"ds_read_b64_tr_b16 v[{b+4*dl+2}:{b+4*dl+3}], v10 offset:{i*4096 + 32*dl + 2048}", tag=("wr", i, dl))
        for dl in range(4):
            st.wait("lg", ("wr", i, dl))
            st(f"buffer_store_dwordx4 v[{b+4*dl}:{b+4*dl+3}], v{12+dl}, s[36:39], s{64+i} offen {SC}")
    stamp(st, 1)
    resolve(st.items, a, vmq=[("wl", i) for k in range(4) for i in range(NB)])
    a("s_and_b32 s21, s18, 15")
    p_signal(a, "s21", 256, 204)
    stamp(a, 2)

def htouch(a):
    a("v_lshrrev_b32 v178, 5, v1")
    a(f"v_mul_u32_u24 v178, {HS}, v178")
    a("v_and_b32 v179, 31, v1")
    a("v_lshl_add_u32 v178, v179, 7, v178")
    a("s_lshl_b32 s22, s15, 2")
    a("s_add_u32 s22, s22, s13")
    a(f"s_mul_i32 s22, s22, {2*HS}")
    a("s_lshl_b32 s23, s16, 12")
    a("s_add_u32 s22, s22, s23")
    a(f"buffer_load_dword v179, v178, s[36:39], s22 offen {SC}")
def emit_G(a):
    a(f"s_setprio {P['GPRIO']}")
    G_setup(a)
    if P["HT"] == 4: htouch(a)
    LN1(a, (1 if P["HT"] == 4 else 0) + 4)
    if P["HT"] == 3: htouch(a)
    stamp(a, 1)
    bar(a, "G", 0)
    a("s_lshl_b32 s22, s16, 1")
    a("s_add_u32 s22, s22, s19")
    a("s_cmp_eq_u32 s22, 27")
    a("s_cbranch_scc1 G_SKIP")
    G_loop(a)
    gsig(a, 1 if P["GK"] else 2)
    poll_global(a, [f"buffer_load_dwordx2 v[{vGRN+2*rt}:{vGRN+1+2*rt}], v15, s[36:39], s60 offen offset:{128*rt} {SC}" for rt in range(4)],
                [vGRN+1, vGRN+3, vGRN+5, vGRN+7], preissued=True)
    xcc_val(a, "s22")
    a(f"v_cmp_ne_u32 vcc, s22, v{vTB}")
    a("s_or_b32 s69, vcc_lo, vcc_hi")
    if not P["LOCAL"]: a("s_mov_b32 s69, 1")
    G_gelu(a)
    stamp(a, 4)
    a("s_lshl_b32 s22, s15, 1")
    a("s_and_b32 s23, s3, 1")
    a("s_add_u32 s22, s22, s23")
    a("s_lshl_b32 s22, s22, 7")
    a("s_mul_i32 s23, s18, 7")
    a("s_add_u32 s23, s23, s45")
    a("s_lshl_b32 s23, s23, 1")
    a("s_add_u32 s23, s23, s19")
    a("s_lshl_b32 s23, s23, 2")
    a("s_add_u32 s22, s22, s23")
    a(f"s_add_u32 s68, s22, {FL_H}")
    a("s_cmp_lg_u32 s69, 0")
    a(f"s_cselect_b32 s67, s68, {OOB}")
    a(f"s_cselect_b32 s68, {OOB}, s68")
    a("v_mov_b32 v250, s100")
    a("v_mov_b32 v251, 0")
    a("s_mov_b64 exec, 1")
    a("s_waitcnt vmcnt(0)")
    a("buffer_store_dword v250, v251, s[36:39], s68 offen")
    a(f"buffer_store_dword v250, v251, s[36:39], s67 offen {SC}")
    a("s_mov_b64 exec, -1")
    stamp(a, 5)
    a.label("G2")
    G2(a)
    a.label("G_SKIP")
    a("s_waitcnt vmcnt(0)")
    a("s_mov_b32 s22, 9")
    a.label("G_BL")
    a("s_barrier")
    a("s_sub_u32 s22, s22, 1")
    a("s_cmp_lg_u32 s22, 0")
    a("s_cbranch_scc1 G_BL")
    gsig(a, 2)
    a("s_branch G2")
    a.label("GC")
    a(f"s_setprio {P['GPRIO']}")
    C_work(a)
    gsig(a, 2)
    a("s_branch G2")

def cbar(a):
    L = newlabel("CB")
    a("s_cmp_ge_u32 s14, 28")
    a(f"s_cbranch_scc1 {L}")
    a("s_barrier")
    a(L + ":")
def chan0(a, d):
    a(f"s_mul_i32 {d}, s14, 3")
    a("s_lshl_b32 s22, s14, 1")
    a("s_add_u32 s22, s22, 24")
    a("s_cmp_lt_u32 s14, 24")
    a(f"s_cselect_b32 {d}, {d}, s22")
def K_stub(a):
    a("s_cmp_ge_u32 s14, 28")
    a("s_cbranch_scc1 KC")
    chan0(a, "s59")
    a("s_cselect_b32 s22, 3, 2")
    a("s_cmp_ge_u32 s13, s22")
    a("s_cbranch_scc1 M_END")
    a("s_add_u32 s59, s59, s13")
    a("s_mul_i32 s47, s3, 80")
    a("s_add_u32 s47, s47, s59")
    resolve(kconv.kload().items, a)
    a("s_branch M_K")
def xcc_publish(a):
    xcc_val(a, "s23")
    a("s_lshl_b32 s22, s101, 2")
    a(f"s_add_u32 s22, s22, {FL_T}")
    a("s_cmp_eq_u32 s12, 5")
    a(f"s_cselect_b32 s22, s22, {OOB}")
    store1(a, "s23", "s22", 2, "")
def emit_KC(a):
    a.label("KC")
    a("s_waitcnt lgkmcnt(0)")
    ptr_rest(a)
    tag_ready(a)
    xcc_publish(a)
    LN2_pre(a, 4)
    a("s_barrier")
    a("s_cmp_eq_u32 s12, 6")
    a("s_cbranch_scc1 KC_A")
    LN2_rd(a, 4)
    a("s_waitcnt lgkmcnt(0)")
    for x in LN2_st(4): a(x)
    a("s_lshl_b32 s21, s14, 1")
    a("s_add_u32 s21, s21, s13")
    p_signal(a, "s21", 0, 2)
    a("s_cmp_eq_u32 s12, 4")
    a("s_cbranch_scc1 M_END")
    a.label("KC_A")
    a("s_cmp_eq_u32 s12, 5")
    a("s_cbranch_scc1 KC_B")
    if P["CPREF"] > 1:
        hflag_addr(a, 13, 14, "s59")
        a("v_and_b32 v16, 7, v1")
        a("v_lshlrev_b32 v16, 7, v16")
        a("s_lshl_b32 s60, s15, 10")
        a(f"s_add_u32 s60, s60, {WS_STATS}")
        a.label("KC_R")
        a(f"s_sleep {P['CSLEEP']}")
        cpref(a)
        a(f"buffer_load_dword v17, v16, s[36:39], s60 offen {SC}")
        a(f"buffer_load_dword v15, v13, s[36:39], s59 offen {SC}")
        a("s_waitcnt vmcnt(0)")
        check_tags(a, [15], "KC_R")
    a("s_endpgm")
    a.label("KC_B")
    a("s_cmp_lg_u32 s14, 31")
    a("s_cbranch_scc1 LD_N1")
    leader(a, 0, 16, FL_X, 34)
    stamp(a, 1)
    a.label("LD_N1")
    a("s_cmp_lg_u32 s14, 29")
    a("s_cbranch_scc1 LD_N2")
    leader(a, 256, 4, FL_X+1024, 34)
    stamp(a, 1)
    a.label("LD_N2")
    a("s_cmp_lg_u32 s14, 30")
    a("s_cbranch_scc1 LD_N3")
    leader(a, 384, 20, FL_Y, 34, sleep=P["YSLEEP"])
    stamp(a, 1)
    a.label("LD_N3")
    prof_flush(a, 2, 36, 12)
    a("s_endpgm")
def emit_K(a):
    ptr_rest(a)
    a(f"s_mul_i32 s46, s13, {kconv.KREG}")
    a(f"s_add_u32 s46, s46, {L_K}")
    a("s_lshl_b32 s45, s13, 4")
    a(f"s_add_u32 s45, s45, {L_U}")
    pre, kg = kconv.kgen()
    items = kg.items
    itail = [i for i, it in enumerate(items) if it[0] == ("mark", "tail")][0]
    iearly = [i for i, it in enumerate(items) if it[0] == ("mark", "early_end")][0]
    print("kgen items", len(items), "early_end", iearly, "tail at", itail)
    resolve(pre.items, a)
    tag_ready(a)
    xcc_publish(a)
    LN2_pre(a, 4)
    a("s_waitcnt vmcnt(1)")
    stamp(a, 6)
    if Cfg.PROF: a("s_waitcnt lgkmcnt(0)")
    lgq = []; pos = 0
    def sl(n):
        nonlocal pos
        e = min(pos+n, itail)
        resolve(items[pos:e], a, lgq=lgq); pos = e
    sl(P["KPRE"])
    ilow = [i for i, it in enumerate(items) if it[0] == ("mark", "low_regs")][0]
    assert P["KPRE"] < ilow
    bar(a, "K", 0)
    LN2_rd(a, 4)
    lgq.extend(["ln2"]*10)
    for t in range(1, 10):
        if t == 1: sl(P["KS1"])
        elif t in (2, 3):
            sts = LN2_st(4)[:3] if t == 2 else LN2_st(4)[3:]
            if t == 2: a("s_waitcnt lgkmcnt(0)"); del lgq[:]
            for x in sts:
                a(x); sl(P["KS2"]//len(sts))
            if t == 3: assert pos < ilow
        else: sl(P["KSL"])
        bar(a, "K", t)
        if t == P["FB"]:
            a("s_cmp_eq_u32 s12, 6")
            a("s_cbranch_scc1 K_B")
            a("s_lshl_b32 s21, s14, 1")
            a("s_add_u32 s21, s21, s13")
            p_signal(a, "s21", 0, 252)
            a.label("K_B")
    print('V left after B_9:', itail-pos); itail = pos
    bdump(a)
    if P["KPRIO"]: a("s_setprio 3")
    resolve(items[itail:], a, lgq=lgq)
    if P["KPRIO"]: a("s_setprio 0")
    stamp(a, 1)
    a(f"v_mov_b32 v252, {L_WF+4}")
    spin_lds(a, 252, 253, "s100")
    if P["GK"]:
        a("s_lshl_b32 s22, s13, 2")
        a(f"s_add_u32 s22, s22, {L_WF+8}")
        a("v_mov_b32 v252, s22")
        spin_ge(a, 252, 253, 2)
    st = Stream()
    stamp(st, 2)
    if Cfg.PROF: st("s_waitcnt lgkmcnt(0)")
    st.extend(kconv.conv(SC))
    stamp(st, 4)
    resolve(st.items, a)
    p_signal(a, "s59", 384, 4)
    stamp(a, 5)
    prof_flush(a, 8, 36, 12)
    a("s_endpgm")

def lstamp(a, k=None):
    if not P["LDBG"]: return
    a("s_memrealtime s[76:77]"); a("s_waitcnt lgkmcnt(0)")
    if k is None:
        a("s_sub_u32 m0, s40, 2"); a("v_writelane_b32 v100, s76, m0")
    else: a(f"v_writelane_b32 v100, s76, {k}")
def cpref(a):
    L = newlabel("PC")
    a("s_getpc_b64 s[10:11]")
    a(L + ":")
    a(f"s_sub_u32 s10, s10, {L}-KSTART")
    a("s_subb_u32 s11, s11, 0")
    a("v_lshlrev_b32 v55, 7, v1")
    a("s_and_b32 s22, s14, 3")
    a("s_lshl_b32 s22, s22, 14")
    a("v_add_u32 v55, s22, v55")
    for k in range(2):
        a("v_min_u32 v52, M_END-KSTART, v55")
        a("v_mov_b32 v53, s11")
        a("v_add_co_u32 v52, vcc, s10, v52")
        a("v_addc_co_u32 v53, vcc, 0, v53, vcc")
        a("global_load_dword v56, v[52:53], off sc1")
        a("v_add_u32 v55, 8192, v55")
def L_setup2(a):
    tag_ready(a)
    a("v_lshlrev_b32 v14, 4, v1")
    for dl in range(1, 4): a(f"v_add_u32 v{14+dl}, {dl*(HS-1024)}, v14")
    a(f"v_add_u32 v18, {4*HS}, v14")
    g2_rot(a)
    a(f"s_mul_i32 s57, s45, {5*HS}")
    a("s_mul_i32 s22, s78, 28672")
    a("s_add_u32 s57, s57, s22")
    a(f"s_add_u32 s57, s57, {WS_W2P}")
    a("v_and_b32 v46, 3, v1")
    a("v_lshlrev_b32 v46, 2, v46")
    a(f"v_add_u32 v46, {L_WF+8}, v46")
    a("v_lshrrev_b32 v49, 5, v1")
    a(f"v_mul_u32_u24 v49, {HS}, v49")
    a("v_and_b32 v30, 31, v1")
    a("v_lshl_add_u32 v49, v30, 7, v49")
    a(f"s_mul_i32 s68, s15, {8*HS}")
    a("s_lshl_b32 s22, s16, 12")
    a("s_add_u32 s68, s68, s22")
    a("v_and_b32 v30, 7, v1")
    a("v_lshlrev_b32 v30, 7, v30")
    a(f"s_mov_b32 s59, {FL_X}")
    for k in range(3):
        a(f"v_add_u32 v36, {64*k}, v1")
        a("v_mul_u32_u24 v37, 21846, v36")
        a("v_lshrrev_b32 v37, 16, v37")
        a(f"v_mul_u32_u24 v37, {10240-48}, v37")
        a(f"v_lshl_add_u32 v{40+k}, v1, 4, v37")
    chan0(a, "s65")
    a("s_mul_i32 s23, s3, 80")
    a("s_add_u32 s65, s65, s23")
    a("s_lshl_b32 s65, s65, 4")
    a(f"s_add_u32 s65, s65, {WS_XNT}")
    a("s_cmp_lt_u32 s14, 28")
    a(f"s_cselect_b32 s65, s65, {OOB}")
    a(f"v_mov_b32 v44, {L_WF}")
    a("v_mov_b32 v45, s100")
    a("s_mov_b32 s42, 0")
def emit_L(a):
    NL = P["NL"]
    a(f"v_mov_b32 v26, {L_WF}")
    a("v_lshl_add_u32 v26, v1, 2, v26")
    a("v_mov_b32 v28, 0")
    a("ds_write_b32 v26, v28")
    a("s_cmp_ge_u32 s14, 28")
    a("s_cbranch_scc1 LC")
    a(f"s_setprio {P['LPRIO']}")
    a("s_mul_i32 s17, s17, 5")
    a("s_mul_i32 s22, s45, 3")
    a("s_add_u32 s17, s17, s22")
    a(f"s_mul_i32 s22, s3, {P['XROT']}")
    a("s_add_u32 s17, s17, s22")
    a("s_lshr_b32 s17, s17, 1")
    a("s_mul_i32 s22, s17, 6554")
    a("s_lshr_b32 s22, s22, 16")
    a("s_mul_i32 s22, s22, 10")
    a("s_sub_u32 s17, s17, s22")
    a("v_lshrrev_b32 v22, 4, v1")
    a("v_bfe_u32 v21, v1, 1, 3")
    a("v_xor_b32 v21, v21, v22")
    a("v_and_b32 v23, 1, v1")
    a("v_lshl_add_u32 v21, v21, 1, v23")
    a("v_xor_b32 v23, 8, v21")
    a("v_mul_u32_u24 v24, 3456, v22")
    a("v_lshl_add_u32 v10, v21, 4, v24")
    a("v_lshl_add_u32 v11, v23, 4, v24")
    a("s_cmp_eq_u32 s16, 13")
    a("s_cselect_b32 s22, 8, 16")
    a(f"v_mov_b32 v25, {OOB}")
    a("v_cmp_gt_u32 vcc, s22, v21")
    a("v_cndmask_b32 v10, v25, v10, vcc")
    a("v_cmp_gt_u32 vcc, s22, v23")
    a("v_cndmask_b32 v11, v25, v11, vcc")
    ws = 8*3456-1024
    a(f"v_add_u32 v12, {2*ws}, v10")
    a(f"v_add_u32 v13, {3*ws}, v11")
    a(f"v_add_u32 v11, {ws}, v11")
    a("v_lshrrev_b32 v20, 3, v1")
    a("v_and_b32 v21, 7, v1")
    a("v_xor_b32 v21, v21, v22")
    a("v_mul_u32_u24 v2, 1280, v20")
    a("v_lshl_add_u32 v2, v21, 4, v2")
    a("v_xor_b32 v6, 64, v2")
    for i in range(1, 4):
        a(f"v_add_u32 v{2+i}, {i*(20480-1024)}, v2")
        a(f"v_add_u32 v{6+i}, {i*(20480-1024)}, v6")
    a("s_mul_i32 s18, s15, 163840")
    a("s_lshl_b32 s20, s16, 8")
    a("s_mov_b32 s19, 0")
    a("s_mov_b32 s40, 0")
    a("s_waitcnt lgkmcnt(0)")
    srd(a, 24, 4, 2048*1280)
    srd(a, 28, 48, 640*3456)
    ptr_rest(a)
    def issue():
        a("s_lshl_b32 s22, s17, 7")
        a("s_add_u32 s22, s22, s18")
        a(f"s_mul_i32 s23, s17, {64*3456}")
        a("s_add_u32 s23, s23, s20")
        xo = [0, 10240, 81920, 92160]; wo = [0, 4*3456, 32*3456, 36*3456]
        for g in range(4):
            a(f"s_add_u32 m0, s19, {16384 + g*4096}")
            a(f"s_add_u32 s41, s23, {wo[g]}")
            for i in range(4):
                a(f"buffer_load_dwordx4 v{10+i}, s[28:31], s41 offen offset:{1024*i} lds")
            if g == 3: a("s_waitcnt vmcnt(59)")
            a(f"s_add_u32 m0, s19, {g*4096}")
            a(f"s_add_u32 s41, s22, {xo[g]}")
            for i in range(4):
                a(f"buffer_load_dwordx4 v{2+4*(g&1)+i}, s[24:27], s41 offen offset:{1024*i} lds")
        a("s_add_u32 s17, s17, 1")
        a("s_cmp_eq_u32 s17, 10")
        a("s_cselect_b32 s17, 0, s17")
        a(f"s_add_u32 s19, s19, {SLOT}")
        a(f"s_cmp_eq_u32 s19, {3*SLOT}")
        a("s_cselect_b32 s19, 0, s19")
        a("s_add_u32 s40, s40, 1")
    a.label("L_P")
    issue()
    a("s_cmp_lt_u32 s40, 2")
    a("s_cbranch_scc1 L_P")
    L_setup2(a)
    a.label("L_LOOP")
    a("s_waitcnt vmcnt(32)")
    bar(a, "L")
    issue()
    a("s_cmp_lt_u32 s40, 10")
    a("s_cbranch_scc1 L_LOOP")
    emit_L_tail(a)
    a.label("LC")
    if P["CPREF"]: cpref(a)
    a("s_waitcnt lgkmcnt(0)")
    ptr_rest(a)
    L_setup2(a)
    a("s_barrier")
    a("s_branch LW_POLL")


def emit_L_tail(a):
    NL = P["NL"]
    xpoll = f"buffer_load_dword v32, v30, s[36:39], s59 offen {SC}"
    if P["HT"] == 1:
        a("s_waitcnt vmcnt(58)")
        for k in range(4):
            a(f"buffer_load_dword v50, v49, s[36:39], s68 offen {SC}")
            a(f"s_add_u32 s68, s68, {2*HS}")
    a(f"s_waitcnt vmcnt({36 if P['HT'] == 1 else 32})")
    bar(a, "L", 8)
    if P["HT"] == 2:
        for k in range(4):
            a(f"buffer_load_dword v50, v49, s[36:39], s68 offen {SC}")
            a(f"s_add_u32 s68, s68, {2*HS}")
    a(xpoll)
    a(f"s_waitcnt vmcnt({5 if P['HT'] in (1, 2) else 1})")
    bar(a, "L", 9)
    bdump(a)
    stamp(a, 1)
    a("s_waitcnt vmcnt(0)")
    a("v_cmp_ne_u32 vcc, s100, v32")
    a("s_cbranch_vccz LW_U")
    a.label("LW_POLL")
    poll_global(a, [xpoll], [32])
    a.label("LW_U")
    wpoll = f"buffer_load_dword v33, v30, s[36:39], s59 offen offset:1024 {SC}"
    a(wpoll)
    for g in range(4):
        a(f"s_mov_b32 m0, {L_U + 1440 + 3072*g}")
        for k in range(3):
            a(f"buffer_load_dwordx4 v{40+k}, s[36:39], s65 offen offset:{1024*k} {SC} lds")
        if g < 3: a("s_add_u32 s65, s65, 655360")
    a("s_waitcnt vmcnt(12)")
    a("v_cmp_ne_u32 vcc, s100, v33")
    a("s_cbranch_vccz LW_LOOP")
    a("s_waitcnt vmcnt(0)")
    a("s_mov_b64 exec, 1")
    a("ds_write_b32 v44, v45 offset:4")
    a("s_mov_b64 exec, -1")
    poll_global(a, [wpoll], [33])
    a.label("LW_LOOP")
    def pub(val, off=0):
        a(f"v_mov_b32 v47, {val}")
        a("s_mov_b64 exec, 1")
        a(f"ds_write_b32 v44, v47 offset:{off}")
        a("s_mov_b64 exec, -1")
    def units(j0, j1, base):
        L = newlabel("UN")
        a(f"s_mov_b32 s43, {base}")
        a(f"s_mov_b32 s42, {j0}")
        a(L + ":")
        a("s_lshl_b32 s41, s46, 10")
        a("s_add_u32 s41, s41, s57")
        a("s_cmp_lt_u32 s46, s64")
        a(f"s_cselect_b32 s41, s41, {OOB}")
        a(f"s_waitcnt vmcnt({P['WWIN']-5})")
        a("s_mov_b32 m0, s43")
        for dl in range(4):
            a(f"buffer_load_dwordx4 v{14+dl}, s[36:39], s41 offen offset:{1024*dl} {SC} lds")
        a("s_add_u32 m0, s43, 4096")
        a("s_add_u32 s43, s43, 5120")
        a(f"buffer_load_dwordx4 v18, s[36:39], s41 offen {SC} lds")
        a("s_add_u32 s46, s46, 1")
        a("s_cmp_eq_u32 s46, 28")
        a("s_cselect_b32 s46, 0, s46")
        a("s_add_u32 s42, s42, 1")
        a(f"s_cmp_lt_u32 s42, {j1}")
        a(f"s_cbranch_scc1 {L}")
    units(0, 4, L_X)
    a("s_waitcnt vmcnt(20)"); pub("s100", 4)
    units(4, 8, SLOT)
    a("s_waitcnt vmcnt(20)"); pub(4)
    units(8, 14, SLOT + 4*5120)
    a("s_waitcnt vmcnt(20)"); pub(10)
    units(14, 16, SLOT + 10*5120)
    spin_ge(a, 46, 48, 1)
    units(16, 20, 0)
    a("s_waitcnt vmcnt(20)"); pub(16)
    units(20, 22, 4*5120)
    a("s_waitcnt vmcnt(0)"); pub(22)
    stamp(a, 2)
    spin_ge(a, 46, 48, 3)
    units(22, 28, SLOT)
    a("s_waitcnt vmcnt(0)"); pub(28)
    if P["LDBG"]:
        a("s_lshl_b32 s22, s2, 6"); a(f"s_add_u32 s22, s22, {WS_PROF + (1<<18)}")
        a("v_lshlrev_b32 v2, 2, v1"); a("s_mov_b64 exec, 0xffff")
        a("buffer_store_dword v100, v2, s[36:39], s22 offen"); a("s_mov_b64 exec, -1")
    prof_flush(a, 3, 36, 12)
    a("s_endpgm")

def mega():
    a = Asm()
    a.label("KSTART")
    setup(a)
    a("s_cmp_eq_u32 s12, 7")
    a("s_cbranch_scc1 M_L")
    a("s_cmp_ge_u32 s12, 4")
    a("s_cbranch_scc1 M_KS")
    G_stub(a)
    a.label("M_KS")
    K_stub(a)
    a.label("M_L")
    emit_L(a)
    a.label("M_CS")
    C_stub(a)
    a.label("M_K")
    emit_K(a)
    a.label("M_G")
    emit_G(a)
    emit_KC(a)
    a.label("M_END")
    a("s_endpgm")
    return a.finish(True)

if __name__ == "__main__":
    Cfg.PROF = "--noprof" not in sys.argv
    Cfg.CYC = "--cyc" in sys.argv
    for x in sys.argv[2:]:
        if "=" in x:
            k, v = x.split("="); assert k in P, k; P[k] = int(v) if v.lstrip("-").isdigit() else v.replace("_", " ")
    name = "parallel_sum__ssm_conv_s4__dense_activation_gelu__prompt_kernel"
    body = mega()
    code, kd = kernel_text(name, body, 256)
    hdr = f"; @launch grid=(256,1,1) block=(512,1,1) lds={LDS_TOTAL}\n.amdgcn_target \"amdgcn-amd-amdhsa--gfx950\"\n"
    open(sys.argv[1], "w").write(hdr + code + kd)
```

```python
import re

TRANS = ("v_exp_f32","v_log_f32","v_rcp_f32","v_rsq_f32","v_sqrt_f32","v_sin_f32","v_cos_f32","v_rcp_iflag_f32")
def regs_of(tok):
    tok = tok.strip()
    neg = re.sub(r"^-|^\||\|$", "", tok)
    m = re.fullmatch(r"abs\((.*)\)", neg)
    if m: neg = m.group(1)
    tok = neg
    m = re.fullmatch(r"([vsa])(\d+)", tok)
    if m: return [(m.group(1), int(m.group(2)))]
    m = re.fullmatch(r"([vsa])\[(\d+):(\d+)\]", tok)
    if m: return [(m.group(1), i) for i in range(int(m.group(2)), int(m.group(3))+1)]
    if tok == "vcc": return [("s", 106), ("s", 107)]
    if tok == "vcc_lo": return [("s", 106)]
    if tok == "vcc_hi": return [("s", 107)]
    if tok == "exec": return [("s", 126), ("s", 127)]
    if tok == "m0": return [("s", 124)]
    return []

def split_ops(s):
    out = []; depth = 0; cur = ""
    for ch in s:
        if ch in "[(": depth += 1
        if ch in "])": depth -= 1
        if ch == "," and depth == 0:
            out.append(cur.strip()); cur = ""
        else:
            cur += ch
    if cur.strip(): out.append(cur.strip())
    return out

class I:
    __slots__ = ("text","mn","kind","dst","src","srcC","srcAB","passes","ws","label","wide_store","isbranch","ldsdma","addr_s")
    def __init__(self, text):
        self.text = text
        t = text.split(";")[0].strip()
        self.label = t.endswith(":")
        self.dst = set(); self.src = set(); self.srcC = set(); self.srcAB = set(); self.passes = 0; self.ws = 1
        self.wide_store = set(); self.isbranch = False; self.ldsdma = False; self.addr_s = set()
        if self.label or not t or t.startswith("."):
            self.mn = ""; self.kind = "none"; self.ws = 0; return
        parts = t.split(None, 1)
        mn = parts[0]; self.mn = mn
        rest = parts[1] if len(parts) > 1 else ""
        ops = split_ops(rest)
        if ops:
            last = ops[-1].split()
            mods = last[1:]; ops[-1] = last[0] if last else ""
        else:
            mods = []
        base = re.sub(r"_e32$|_e64$|_dpp$|_sdwa$", "", mn)
        R = lambda k: set(regs_of(ops[k])) if k < len(ops) else set()
        if mn == "s_nop":
            self.kind = "salu"; self.ws = int(ops[0], 0) + 1
        elif mn.startswith("v_mfma"):
            self.kind = "mfma"; self.dst = R(0); self.srcAB = R(1) | R(2); self.srcC = R(3); self.src = self.srcAB | self.srcC
            if "32x32x16" in mn or "32x32x8" in mn: self.passes = 8
            elif "16x16x32" in mn or "16x16x16" in mn: self.passes = 4
            elif "16x16x4_f32" in mn: self.passes = 8
            elif "32x32x2_f32" in mn: self.passes = 16
            else: raise ValueError("unknown mfma " + mn)
        elif mn.startswith("v_"):
            self.kind = "trans" if base in TRANS else "valu"
            if base.startswith("v_cmpx"):
                self.dst = R(0) | {("s",126),("s",127)}; self.src = R(1) | R(2)
            elif base.startswith("v_cmp"):
                self.dst = R(0); self.src = R(1) | R(2)
            elif base in ("v_add_co_u32","v_sub_co_u32","v_subrev_co_u32"):
                self.dst = R(0) | R(1); self.src = R(2) | R(3)
            elif base in ("v_addc_co_u32","v_subb_co_u32"):
                self.dst = R(0) | R(1); self.src = R(2) | R(3) | R(4)
            elif base.startswith("v_permlane") and "swap" in base:
                self.dst = R(0) | R(1); self.src = R(0) | R(1)
            elif base == "v_nop":
                pass
            else:
                self.dst = R(0)
                for k in range(1, len(ops)): self.src |= R(k)
                if base in ("v_fmac_f32","v_pk_fmac_f16","v_dot2c_f32_bf16","v_writelane_b32") or "d16" in base: self.src |= R(0)
                if base == "v_cndmask_b32" and len(ops) == 3: self.src |= {("s",106),("s",107)}
        elif mn.startswith("ds_"):
            self.kind = "ds"
            if mn.startswith("ds_read") or mn.startswith("ds_bpermute") or mn.startswith("ds_permute") or mn.startswith("ds_swizzle") or "_rtn" in mn:
                self.dst = R(0)
                for k in range(1, len(ops)): self.src |= R(k)
                if "d16" in mn: self.src |= R(0)
            else:
                for k in range(0, len(ops)): self.src |= R(k)
        elif mn.startswith("buffer_") or mn.startswith("global_"):
            self.kind = "vmem"
            lds = "lds" in mods or "_lds_" in mn
            self.ldsdma = lds
            if mn.startswith("buffer_wb") or mn.startswith("buffer_inv"):
                pass
            elif "load" in mn:
                k0 = 0 if lds else 1
                if not lds: self.dst = R(0)
                for k in range(k0, len(ops)): self.src |= R(k)
                if "d16" in mn: self.src |= R(0)
            elif "atomic" in mn:
                for k in range(0, len(ops)): self.src |= R(k)
                if "sc0" in mods:
                    self.dst = R(0)
            else:
                for k in range(0, len(ops)): self.src |= R(k)
                if "x4" in mn or "x3" in mn:
                    self.wide_store = R(0) if mn.startswith("buffer_") else R(1)
            self.addr_s = {r for r in self.src if r[0] == "s"}
        elif mn.startswith("s_"):
            self.kind = "salu"
            if mn.startswith("s_cbranch") or mn == "s_branch" or mn == "s_endpgm" or mn.startswith("s_setpc"):
                self.isbranch = True
            elif mn.startswith("s_cmp") or mn in ("s_waitcnt","s_barrier","s_setprio","s_sleep","s_bitcmp0_b32","s_bitcmp1_b32"):
                for k in range(0, len(ops)): self.src |= R(k)
            elif mn.startswith("s_load") or mn.startswith("s_buffer_load") or mn.startswith("s_mem") or mn.startswith("s_getreg") or mn.startswith("s_getpc"):
                self.kind = "smem" if not mn.startswith("s_get") else "salu"
                self.dst = R(0)
                for k in range(1, len(ops)): self.src |= R(k)
            else:
                self.dst = R(0)
                for k in range(1, len(ops)): self.src |= R(k)
                if "saveexec" in mn: self.dst |= {("s",126),("s",127)}
        else:
            raise ValueError("unknown instr: " + text)

def V(rs): return {r for r in rs if r[0] in "va"}
def S(rs): return {r for r in rs if r[0] == "s"}
EXEC = {("s",126),("s",127)}

def need(p, c):
    n = 0
    pv = p.kind in ("valu","trans")
    cv = c.kind in ("valu","trans")
    if pv and c.kind == "mfma" and (V(p.dst) & c.src): n = max(n, 2)
    if pv and c.kind == "mfma" and (p.dst & EXEC): n = max(n, 4)
    if p.kind == "mfma":
        P = p.passes
        xdl = "_f32_16x16x4_f32" not in p.mn and "32x32x2_f32" not in p.mn
        if c.kind == "mfma":
            if p.dst & c.srcAB: n = max(n, (P+4) if xdl else (P+2))
            if p.dst & c.srcC:
                if p.dst == c.srcC and p.passes == c.passes: n = max(n, 0)
                else: n = max(n, (P+2) if xdl else P)
            elif (p.dst & c.dst): n = max(n, P+2)
        elif cv:
            if p.dst & (c.src | c.dst): n = max(n, (P+4) if xdl else (P+2))
            if xdl and (p.srcC & c.dst): n = max(n, P-1)
        elif c.kind in ("vmem","ds"):
            if p.dst & (c.src | c.dst): n = max(n, (P+4) if xdl else (P+2))
    if p.kind == "trans" and c.kind in ("valu",) and (p.dst & c.src): n = max(n, 1)
    if p.kind == "trans" and c.kind in ("vmem","ds","trans") and (p.dst & c.src): n = max(n, 1)
    if pv and S(p.dst):
        if c.kind == "vmem" and (S(p.dst) & c.addr_s): n = max(n, 5)
        if cv and (S(p.dst) - EXEC) & c.src:
            n = max(n, 4 if c.mn.startswith("v_readlane") or c.mn.startswith("v_writelane") else 2)
        if cv and (p.dst & EXEC) and (c.mn.startswith("v_readlane") or c.mn.startswith("v_readfirstlane") or c.mn.startswith("v_writelane") or c.mn.startswith("v_permlane")): n = max(n, 4)
        if cv and (p.dst & EXEC) and "dpp" in c.text: n = max(n, 5)
        if c.kind == "salu" and (S(p.dst) & c.src): n = max(n, 3)
    if pv and cv and (V(p.dst) & c.src):
        if c.mn.startswith("v_readlane") or c.mn.startswith("v_readfirstlane"): n = max(n, 1)
        if c.mn.startswith("v_permlane"): n = max(n, 2)
        if "dpp" in c.text or "row_" in c.text or "quad_perm" in c.text: n = max(n, 2)
        if ("op_sel" in p.text or "sdwa" in p.text or "dst_sel" in p.text) : n = max(n, 1)
    if p.mn.startswith("v_dot") and (V(p.dst) & (c.src | c.dst)):
        if not (c.mn == p.mn and c.text.split(",")[-1].split()[0].strip() == p.text.split()[1].rstrip(",") and not any(x.strip() == p.text.split()[1].rstrip(",") for x in c.text.split(",")[1:3])):
            n = max(n, 3)
    if p.wide_store and (p.wide_store & c.dst): n = max(n, 2 if cv else 1)
    if p.kind == "salu" and (("s",124) in p.dst) and (c.ldsdma or "addtid" in c.mn or c.mn.startswith("s_movrel")): n = max(n, 1)
    return n

class Asm:
    def __init__(self):
        self.lines = []
    def __call__(self, text):
        for l in text.split("\n"):
            l = l.strip()
            if l: self.lines.append(l)
    def label(self, name): self.lines.append(name + ":")
    def finish(self, verbose=False):
        out = []
        nins = 0
        merged = []
        for l in self.lines:
            if merged and l.startswith("s_waitcnt") and merged[-1].startswith("s_waitcnt"):
                d = {}
                for x in (merged[-1], l):
                    for k, v in re.findall(r"(vmcnt|lgkmcnt)\((\d+)\)", x): d[k] = min(int(v), d.get(k, 99))
                merged[-1] = "s_waitcnt " + " ".join(f"{k}({v})" for k, v in d.items())
            else: merged.append(l)
        self.lines = merged
        for l in self.lines:
            c = I(l)
            if c.kind != "none":
                dist = 0; req = 0
                for p in reversed(out):
                    if p.kind == "none": continue
                    if p.mn in ("s_branch", "s_endpgm"): break
                    n = need(p, c)
                    if n > dist: req = max(req, n - dist)
                    dist += p.ws
                    if dist > 24: break
                while req > 0:
                    k = min(req, 16)
                    out.append(I("s_nop %d" % (k-1))); nins += 1
                    req -= k
            out.append(c)
        if verbose: print("inserted nops:", nins)
        return "\n".join(("" if i.label else "  ") + i.text for i in out)

def kernel_text(name, body, vgpr, sgpr=102, accum=None):
    if accum is None: accum = (vgpr + 3)//4*4
    code = f""".text
.globl {name}
.p2align 8
.type {name},@function
{name}:
{body}
"""
    kd = f""".section .rodata,"a"
.p2align 6
.amdhsa_kernel {name}
  .amdhsa_next_free_vgpr {vgpr}
  .amdhsa_next_free_sgpr {sgpr}
  .amdhsa_accum_offset {accum}
  .amdhsa_group_segment_fixed_size 0
  .amdhsa_kernarg_size 136
  .amdhsa_user_sgpr_count 2
  .amdhsa_user_sgpr_kernarg_segment_ptr 1
  .amdhsa_system_sgpr_workgroup_id_x 1
.end_amdhsa_kernel
"""
    return code, kd


class Stream:
    def __init__(self):
        self.items = []
    def __call__(self, text, tag=None):
        for l in text.split("\n"):
            l = l.strip()
            if l: self.items.append((l, tag))
    def wait(self, kind, tag): self.items.append((("wait", kind, tag), None))
    def waitall(self, kind): self.items.append((("wait", kind, None), None))
    def mark(self, name): self.items.append((("mark", name), None))
    def atomic(self, lines):
        self.items.append((("group", lines), None))
    def extend(self, other): self.items.extend(other.items)

def flatten(items):
    out = []
    for it, tag in items:
        if isinstance(it, tuple) and it[0] == "group":
            out.extend(flatten(it[1]))
        else:
            out.append((it, tag))
    return out

def resolve(items, asm, vmq=None, lgq=None):
    vmq = [] if vmq is None else vmq
    lgq = [] if lgq is None else lgq
    smem = False
    for it, tag in flatten(items):
        if isinstance(it, tuple):
            if it[0] == "mark": continue
            _, kind, t = it
            q = vmq if kind == "vm" else lgq
            name = "vmcnt" if kind == "vm" else "lgkmcnt"
            mx = 63 if kind == "vm" else 15
            if t is None:
                if q or (kind == "lg" and smem): asm(f"s_waitcnt {name}(0)")
                del q[:]
                if kind == "lg": smem = False
                continue
            tags = t if isinstance(t, (list, set)) else [t]
            idxs = [i for i, x in enumerate(q) if x in tags]
            if not idxs: continue
            idx = max(idxs)
            rem = len(q) - 1 - idx
            if kind == "lg" and smem:
                rem = 0; smem = False
            rem = min(rem, mx)
            asm(f"s_waitcnt {name}({rem})")
            del q[:len(q) - rem]
            continue
        mn = it.split()[0]
        if mn.startswith("buffer_") or mn.startswith("global_"):
            vmq.append(tag)
            assert len(vmq) <= 63, "too many vm ops outstanding: %d at %s" % (len(vmq), it)
        elif mn.startswith("ds_"):
            lgq.append(tag)
        elif mn.startswith("s_load") or mn.startswith("s_mem") or mn.startswith("s_buffer_load"):
            lgq.append(tag); smem = True
        elif mn == "s_waitcnt":
            m = re.search(r"vmcnt\((\d+)\)", it)
            if m:
                k = int(m.group(1)); del vmq[:max(0, len(vmq) - k)]
            m = re.search(r"lgkmcnt\((\d+)\)", it)
            if m:
                k = int(m.group(1)); del lgq[:max(0, len(lgq) - k)]
                if k == 0: smem = False
        asm(it)
    return vmq, lgq

def interleave(main_items, bg_items, slots):
    marks = [i for i, (it, _) in enumerate(main_items) if isinstance(it, tuple) and it[0] == "mark" and it[1] == "slot"]
    n = len(bg_items); k = len(marks)
    out = []; pos = 0; mi = 0
    for i, x in enumerate(main_items):
        out.append(x)
        if mi < k and i == marks[mi]:
            mi += 1
            end = n if mi == k else (min(n, pos + slots) if slots else (n*mi)//k)
            out.extend(bg_items[pos:end]); pos = end
    assert pos == n
    return out
```

```python
import sys, math
from common import *
from asmlib import Stream, resolve
import kconv

SC = "sc1"
NST = 10; SLOT = 32768; HS = 55296
WS_FL = 26 << 20
FL_R = WS_FL; FL_X = WS_FL + 1024; FL_T = WS_FL + 3072; FL_H = WS_FL + 4096; FL_Y = WS_FL + 8192
FL_P = WS_FL + 16384
OOB = "0x7f000000"
L_K = 98304; L_U = L_K + 3*kconv.KREG; L_X = L_U + kconv.USIZE
L_LN = L_X
L_WF = 163328; L_CS = 163584
LDS_TOTAL = 163840
P = dict(GRS=16, HPRE=8, HRATE=2, XD=12, CTW=4, CTX=0, CTN=40, YA=1, YP=26, RT=0, XF=4, RW=3, NROT=7, GPRIO=2, LPRIO=3, KPRE=180, KSL=60, KS1=16, KS2=36, YSLEEP=4, CPREF=2, CSLEEP=40, LOCAL=1, WROT=2, XROT=1, PSLEEP=4, WWIN=24, NL=4, LDBG=0, FB=4, YI=12, WG0=9, GK=4, NOWL=0, W1T=0, NOMM=0, LSTR=1, STEND=0, HT=0, CT=1, CTD=30, W2WARM=1, BDBG=0, GDBG=0, UROT=2, UW=4, HFL='sc1', PADTO=0, KPRIO=0, OUTFL='', SPIN_MAX=20000, DBGOUT=0)
_l = [0]
def newlabel(p):
    _l[0] += 1; return f"{p}_{_l[0]}"

def spin_tail(a, again):
    out = newlabel("CT")
    a(f"s_cbranch_vccz {out}")
    a("s_add_u32 s79, s79, 1")
    a(f"s_cmp_lt_u32 s79, {P['SPIN_MAX']}")
    a(f"s_cbranch_scc1 {again}")
    a(out + ":")
def check_tags(a, regs, again):
    a(f"v_cmp_ne_u32 vcc, s100, v{regs[0]}")
    for r in regs[1:]:
        a(f"v_cmp_ne_u32 s[62:63], s100, v{r}")
        a("s_or_b64 vcc, vcc, s[62:63]")
    spin_tail(a, again)
def poll_global(a, loads, regs, preissued=False):
    L = newlabel("PG"); F = newlabel("PF")
    a(f"s_branch {F}")
    a(L + ":")
    a(f"s_sleep {P['PSLEEP']}")
    if not preissued: a(F + ":")
    for l in loads: a(l)
    if preissued: a(F + ":")
    a("s_waitcnt vmcnt(0)")
    check_tags(a, regs, L)
def spin_lds(a, vaddr, vtmp, sval):
    L = newlabel("SL"); O = newlabel("SO")
    a(L + ":")
    a(f"ds_read_b32 v{vtmp}, v{vaddr}")
    a("s_waitcnt lgkmcnt(0)")
    a(f"v_cmp_ne_u32 vcc, {sval}, v{vtmp}")
    a(f"s_cbranch_vccz {O}")
    a("s_sleep 1")
    a("s_add_u32 s79, s79, 1")
    a(f"s_cmp_lt_u32 s79, {10*P['SPIN_MAX']}")
    a(f"s_cbranch_scc1 {L}")
    a(O + ":")
def store1(a, val, soff, v0, fl):
    a(f"v_mov_b32 v{v0}, {val}")
    a(f"v_mov_b32 v{v0+1}, 0")
    a("s_mov_b64 exec, 1")
    a(f"buffer_store_dword v{v0}, v{v0+1}, s[36:39], {soff} offen {fl}")
    a("s_mov_b64 exec, -1")
def arrive(a, srdc, soff, count, flag_soff, v0):
    L = newlabel("AR")
    a(f"v_mov_b32 v{v0}, 1")
    a(f"v_mov_b32 v{v0+1}, 0")
    a("s_mov_b64 exec, 1")
    a(f"buffer_atomic_add v{v0}, v{v0+1}, s[{srdc}:{srdc+3}], {soff} offen sc0 sc1")
    a("s_waitcnt vmcnt(0)")
    if count & (count-1) == 0: a(f"v_and_b32 v{v0}, {count-1}, v{v0}")
    a(f"v_cmp_ne_u32 vcc, {count-1}, v{v0}")
    a(f"s_cbranch_vccnz {L}")
    a(f"v_mov_b32 v{v0}, s100")
    a(f"buffer_store_dword v{v0}, v{v0+1}, s[36:39], {flag_soff} offen {SC}")
    a(L + ":")
    a("s_mov_b64 exec, -1")
def ptr_rest(a):
    a(f"s_add_u32 s8, s6, {FL_R}")
    a("s_addc_u32 s9, s7, 0")
    a("s_load_dword s100, s[8:9], 0")
    srd(a, 36, 6, WS_SIZE)
def tag_ready(a):
    a("s_waitcnt lgkmcnt(0)")
    a("s_mul_i32 s100, s100, 1664525")
    a("s_add_u32 s100, s100, 1013904223")
    a("s_or_b32 s100, s100, 0x100")
def xcc_val(a, d):
    a(f"s_getreg_b32 {d}, hwreg(HW_REG_XCC_ID, 0, 4)")
    a(f"s_add_u32 {d}, {d}, 1")
    a(f"s_xor_b32 {d}, {d}, s100")

bl = {}
def bar(a, who, k=None):
    if P["BDBG"]:
        a("s_memtime s[98:99]"); a("s_waitcnt lgkmcnt(0)")
        if k is None: a("s_sub_u32 m0, s40, 2"); a("v_writelane_b32 v255, s98, m0")
        else: a(f"v_writelane_b32 v255, s98, {k}")
    a("s_barrier")
def bdump(a):
    if not P["BDBG"]: return
    a("s_lshl_b32 s22, s2, 3"); a("s_add_u32 s22, s22, s12"); a("s_lshl_b32 s22, s22, 6"); a(f"s_add_u32 s22, s22, {WS_PROF + (2<<18)}")
    a("v_lshlrev_b32 v254, 2, v1"); a("s_mov_b64 exec, 0xffff")
    a("buffer_store_dword v255, v254, s[36:39], s22 offen"); a("s_mov_b64 exec, -1")
def setup(a):
    a("s_cmp_ge_u32 s2, 256")
    a("s_cbranch_scc1 M_END")
    stamp(a, 0)
    a("s_load_dwordx2 s[6:7], s[0:1], 128")
    a("s_load_dwordx2 s[4:5], s[0:1], 0")
    a("s_load_dwordx8 s[48:55], s[0:1], 80")
    a("s_load_dwordx16 s[60:75], s[0:1], 8")
    a("s_mov_b32 s79, 0")
    a("v_and_b32 v1, 63, v0")
    a("v_lshrrev_b32 v6, 6, v0")
    a("v_readfirstlane_b32 s12, v6")
    a("s_and_b32 s3, s2, 7")
    a("s_lshr_b32 s14, s2, 3")
    a("s_lshl_b32 s101, s3, 5")
    a("s_add_u32 s101, s101, s14")
    a("s_and_b32 s17, s14, 3")
    a("s_lshr_b32 s15, s3, 1")
    a("s_lshl_b32 s15, s15, 2")
    a("s_add_u32 s15, s15, s17")
    a("s_lshr_b32 s45, s14, 2")
    a("s_and_b32 s78, s3, 1")
    a("s_mul_i32 s16, s78, 7")
    a("s_add_u32 s16, s16, s45")
    a("s_lshl_b32 s44, s3, 2")
    a("s_add_u32 s44, s44, s17")
    a("s_and_b32 s13, s12, 3")

vACC = 16; vCS = 80; vFR = 96; vONE = 160; vGRN = 164; vB1 = 172; vTB = 176
def G_setup(a):
    a("s_lshr_b32 s18, s13, 1")
    a("s_and_b32 s19, s13, 1")
    a("v_and_b32 v10, 15, v1")
    a("v_lshrrev_b32 v11, 4, v1")
    a("v_lshlrev_b32 v12, 1, v10")
    a("s_lshl_b32 s22, s16, 8")
    a("s_lshl_b32 s23, s19, 7")
    a("s_add_u32 s22, s22, s23")
    srd(a, 32, 50, 3456)
    for c in range(4):
        a(f"buffer_load_ushort v{vB1+c}, v12, s[32:35], s22 offen offset:{32*c}")
    ptr_rest(a)
    a("v_lshrrev_b32 v12, 2, v1")
    a("v_and_b32 v13, 7, v12")
    a("s_lshl_b32 s22, s19, 2")
    a("v_xor_b32 v13, s22, v13")
    a("v_lshlrev_b32 v13, 5, v13")
    a("v_lshl_add_u32 v13, v12, 8, v13")
    a("v_and_b32 v12, 3, v1")
    a("v_lshl_add_u32 v13, v12, 3, v13")
    a("v_add_u32 v2, 16384, v13")
    for c in range(1, 4): a(f"v_xor_b32 v{2+c}, {32*c}, v2")
    a("v_lshrrev_b32 v12, 1, v10")
    a("v_xor_b32 v12, v12, v11")
    a("v_lshlrev_b32 v12, 4, v12")
    a("v_and_b32 v13, 7, v10")
    a("v_lshl_add_u32 v12, v13, 7, v12")
    a("v_lshrrev_b32 v13, 3, v10")
    a("v_lshl_add_u32 v12, v13, 12, v12")
    a("s_lshl_b32 s22, s18, 13")
    a("v_add_u32 v8, s22, v12")
    a("v_xor_b32 v9, 64, v8")
    a("v_lshlrev_b32 v14, 4, v1")
    a("v_lshlrev_b32 v15, 3, v10")
    a("s_lshl_b32 s60, s15, 10")
    a("s_lshl_b32 s22, s18, 9")
    a("s_add_u32 s60, s60, s22")
    a(f"s_add_u32 s60, s60, {WS_STATS}")
    a("v_and_b32 v13, 31, v1")
    a("v_lshlrev_b32 v13, 2, v13")
    a("s_lshl_b32 s61, s3, 7")
    a(f"s_add_u32 s61, s61, {FL_T}")
    a("v_and_b32 v12, 7, v1")
    a("v_lshlrev_b32 v12, 7, v12")
    a(f"s_mov_b32 s63, {FL_X+1024}")
    for r in range(4): a(f"v_mov_b32 v{vONE+r}, 0x3f803f80")
    tag_ready(a)

def G_loop(a):
    def reads(s):
        t, ks2 = divmod(s, 2)
        off = ((t % 3) % 2)*SLOT
        b = vFR + (s % 2)*32
        L = []
        for c in range(4):
            L.append(f"ds_read_b64_tr_b16 v[{b+4*c}:{b+4*c+1}], v{2+c} offset:{off + ks2*8192}")
            L.append(f"ds_read_b64_tr_b16 v[{b+4*c+2}:{b+4*c+3}], v{2+c} offset:{off + ks2*8192 + 4096}")
            L.append(f"ds_read_b128 v[{b+16+4*c}:{b+16+4*c+3}], v{8+ks2} offset:{off + c*1024}")
        return L
    stamp(a, 2)
    for x in reads(0): a(x)
    for s in range(20):
        t, ks2 = divmod(s, 2)
        b = vFR + (s % 2)*32
        a("s_waitcnt lgkmcnt(0)")
        pre = []
        if ks2 == 1 and t+1 < NST:
            bar(a, "G", t+1)
            if (t+1) % 3 != 1 and t+1 < NST:
                pre = [f"v_xor_b32 v{r}, 0x10000, v{r}" for r in (2, 8, 3, 4, 5, 9)]
        rr = reads(s+1) if s+1 < 20 else []
        if s == P["GRS"]:
            for rt in range(4):
                rr.append(f"buffer_load_dwordx2 v[{vGRN+2*rt}:{vGRN+1+2*rt}], v15, s[36:39], s60 offen offset:{128*rt} {SC}")
            rr.append(f"buffer_load_dword v{vTB}, v13, s[36:39], s61 offen {SC}")
        mm = []
        for c in range(4):
            for rt in range(4):
                acc = vACC + (rt*4+c)*4
                C = f"v[{acc}:{acc+3}]" if s else "0"
                mm.append(f"v_mfma_f32_16x16x32_bf16 v[{acc}:{acc+3}], v[{b+4*c}:{b+4*c+3}], v[{b+16+4*rt}:{b+16+4*rt+3}], {C}")
            C = f"v[{vCS+4*c}:{vCS+4*c+3}]" if s else "0"
            mm.append(f"v_mfma_f32_16x16x32_bf16 v[{vCS+4*c}:{vCS+4*c+3}], v[{vONE}:{vONE+3}], v[{b+4*c}:{b+4*c+3}], {C}")
        fill = [pre[i:i+2] for i in range(0, len(pre), 2)] + [[x] for x in rr]
        assert len(fill) <= len(mm)
        for i, x in enumerate(mm):
            a(x)
            if i < len(fill):
                for y in fill[i]: a(y)
    stamp(a, 3)
    bdump(a)

def spin_ge(a, vaddr, vtmp, thr):
    L = newlabel("SG"); O = newlabel("SO")
    a(L + ":")
    a(f"ds_read_b32 v{vtmp}, v{vaddr}")
    a("s_waitcnt lgkmcnt(0)")
    a(f"v_cmp_gt_u32 vcc, {thr}, v{vtmp}")
    a(f"s_cbranch_vccz {O}")
    a("s_sleep 1")
    a("s_add_u32 s79, s79, 1")
    a(f"s_cmp_lt_u32 s79, {10*P['SPIN_MAX']}")
    a(f"s_cbranch_scc1 {L}")
    a(O + ":")
def gsig(a, lev):
    a("s_lshl_b32 s22, s13, 2")
    a(f"s_add_u32 s22, s22, {L_WF+8}")
    a("v_mov_b32 v250, s22")
    a(f"v_mov_b32 v251, {lev}")
    a("s_mov_b64 exec, 1")
    a("ds_write_b32 v250, v251")
    a("s_mov_b64 exec, -1")
def G_gelu(a):
    vA = 96; vB = 104; vK = 112; vT = 124; vO = 132; late = []
    a("s_mov_b32 s65, 0xffff0000")
    a("v_lshlrev_b32 v140, 7, v1")
    a("v_cmp_gt_u32 s[70:71], 16, v1")
    a("s_mov_b32 s66, 0x01000100")
    for rt in range(4):
        g = vGRN+2*rt
        a(f"v_perm_b32 v{vB+2*rt}, v{g}, v{g}, s66")
        a(f"v_xor_b32 v{vB+2*rt}, 0x80008000, v{vB+2*rt}")
        a(f"v_lshrrev_b32 v{vB+2*rt+1}, 16, v{g}")
    for c in range(4):
        cs = vCS+4*c
        a(f"v_cvt_pk_bf16_f32 v{cs+1}, v{cs}, v{cs}")
        a(f"v_and_b32 v{cs+1}, s65, v{cs+1}")
        a(f"v_sub_f32 v{cs+1}, v{cs}, v{cs+1}")
        a(f"v_cvt_pk_bf16_f32 v{cs+2}, v{cs}, v{cs+1}")
        a(f"v_cndmask_b32 v{vA+2*c}, 0, v{cs+2}, s[70:71]")
        a(f"v_cndmask_b32 v{vA+2*c+1}, 0, v{vB1+c}, s[70:71]")
    for rt in range(4):
        for c in range(4):
            acc = vACC + (rt*4+c)*4
            a(f"v_mfma_f32_16x16x16_bf16 v[{acc}:{acc+3}], v[{vA+2*c}:{vA+2*c+1}], v[{vB+2*rt}:{vB+2*rt+1}], v[{acc}:{acc+3}]")
        g = vGRN+2*rt; k = vK+3*rt
        a(f"v_and_b32 v{k+2}, s65, v{g}")
        a(f"v_rcp_f32 v{k}, v{k+2}")
        a(f"v_mul_f32 v{k+1}, v{k}, v{k}")
        a(f"v_mul_f32 v{k+1}, v{k+1}, v{k}")
        a(f"v_mul_f32 v{k+1}, {f32bits(GELU_K2)}, v{k+1}")
        a(f"v_mul_f32 v{k}, {f32bits(GELU_K1)}, v{k}")
    a("s_lshl_b32 s66, s15, 3")
    a("s_lshl_b32 s67, s18, 2")
    a("s_add_u32 s66, s66, s67")
    a(f"s_mul_i32 s66, s66, {HS}")
    a("s_lshl_b32 s67, s16, 12")
    a("s_add_u32 s66, s66, s67")
    a("s_lshl_b32 s67, s19, 11")
    a("s_add_u32 s66, s66, s67")
    a("s_cmp_lg_u32 s69, 0")
    a(f"s_cselect_b32 s67, s66, {OOB}")
    a(f"s_cselect_b32 s66, {OOB}, s66")
    for rt in range(4):
        k = vK+3*rt
        for p in range(2):
            accs = [vACC + (rt*4+2*p)*4 + r for r in range(8)]
            ts = [vT + r for r in range(8)]
            for x, t in zip(accs, ts): a(f"v_mul_f32 v{t}, v{x}, v{x}")
            for x, t in zip(accs, ts): a(f"v_fma_f32 v{t}, v{t}, v{k+1}, v{k}")
            for x, t in zip(accs, ts): a(f"v_mul_f32 v{t}, v{x}, v{t}")
            for x, t in zip(accs, ts): a(f"v_exp_f32 v{t}, v{t}")
            for x, t in zip(accs, ts): a(f"v_fma_f32 v{t}, v{t}, v{k+2}, v{k+2}")
            for x, t in zip(accs, ts): a(f"v_rcp_f32 v{t}, v{t}")
            for x, t in zip(accs, ts): a(f"v_mul_f32 v{x}, v{x}, v{t}")
            o = vO + 4*p if not P["STEND"] else 180 + 8*rt + 4*p
            for i in range(4): a(f"v_cvt_pk_bf16_f32 v{o+i}, v{accs[2*i]}, v{accs[2*i+1]}")
            def stores(rt=rt, p=p, o=o):
                a(f"buffer_store_dwordx4 v[{o}:{o+3}], v14, s[36:39], s66 offen offset:{1024*p}")
                a(f"buffer_store_dwordx4 v[{o}:{o+3}], v14, s[36:39], s67 offen offset:{1024*p} {SC}")
                if P["HT"] == 5 and p == 1:
                    a("s_mov_b64 exec, 0xffff")
                    a(f"buffer_load_dword v141, v140, s[36:39], s66 offen {SC}")
                    a("s_mov_b64 exec, -1")
                if P["HT"] == 6:
                    a("s_mov_b64 exec, 0xff")
                    a(f"buffer_load_dword v141, v140, s[36:39], s66 offen offset:{1024*p} {SC}")
                    a("s_mov_b64 exec, -1")
                if p == 1 and rt < 3: a(f"s_add_u32 s66, s66, {HS}"); a(f"s_add_u32 s67, s67, {HS}")
            if P["STEND"]: late.append(stores)
            else: stores()
            if rt*2 + p + 1 == P["GK"]: gsig(a, 2)
    for f in late: f()

WS_EX = WS_KR; FL_E = WS_FL + 65536
def g2_rot(a):
    a("s_and_b32 s46, s14, 3")
    a("s_mul_i32 s46, s46, 7")
    a("s_lshr_b32 s22, s3, 1")
    a(f"s_mul_i32 s22, s22, {P['WROT']}")
    a("s_add_u32 s46, s46, s22")
    a("s_lshr_b32 s22, s14, 2")
    a(f"s_mul_i32 s22, s22, {P['NROT']}")
    a("s_lshr_b32 s22, s22, 1")
    a("s_add_u32 s46, s46, s22")
    a("s_sub_u32 s22, s46, 28")
    a("s_cmp_ge_u32 s46, 28")
    a("s_cselect_b32 s46, s22, s46")
    a("s_and_b32 s78, s3, 1")
    a("s_lshl_b32 s64, s78, 1")
    a("s_sub_u32 s64, 28, s64")
def hflag_addr(a, v, vt, sreg):
    a(f"v_min_u32 v{v}, 27, v1")
    a("s_and_b32 s22, s3, 1")
    a(f"v_subrev_u32 v{vt}, s22, v{v}")
    a(f"v_cmp_eq_u32 vcc, 13, v{v}")
    a(f"v_cmp_eq_u32 s[62:63], 27, v{v}")
    a("s_or_b64 vcc, vcc, s[62:63]")
    a(f"v_cndmask_b32 v{v}, v{v}, v{vt}, vcc")
    a(f"v_lshlrev_b32 v{v}, 2, v{v}")
    a(f"s_lshl_b32 {sreg}, s15, 1")
    a(f"s_add_u32 {sreg}, {sreg}, s22")
    a(f"s_lshl_b32 {sreg}, {sreg}, 7")
    a(f"s_add_u32 {sreg}, {sreg}, {FL_H}")

gl = [0]
def glog(a):
    if not P["GDBG"]: return
    a("s_memrealtime s[76:77]"); a("s_waitcnt lgkmcnt(0)"); a(f"v_writelane_b32 v255, s76, {gl[0]}"); gl[0] += 1
def G2(a):
    RW = P['RW']; vWB = 56; vH = 56 + 20*RW; HPRE = P["HPRE"]; D = P["XD"]
    glog(a)
    a("s_load_dwordx4 s[8:11], s[0:1], 104")
    a("s_load_dwordx2 s[4:5], s[0:1], 0")
    hflag_addr(a, 200, 201, "s59")
    hp = f"buffer_load_dword v15, v200, s[36:39], s59 offen {SC}"
    a(hp)
    g2_rot(a)
    a("v_lshlrev_b32 v2, 4, v1")
    a("v_lshlrev_b32 v10, 3, v1")
    a("v_lshrrev_b32 v9, 2, v1")
    a("v_mul_u32_u24 v9, 160, v9")
    a("v_and_b32 v3, 3, v1")
    a("v_lshl_add_u32 v9, v3, 3, v9")
    a(f"v_add_u32 v3, {L_X}, v9")
    a(f"v_add_u32 v4, {SLOT}, v9")
    a("s_lshl_b32 s57, s15, 1")
    a("s_add_u32 s57, s57, s78")
    a("s_lshl_b32 s57, s57, 2")
    a("s_add_u32 s57, s57, s13")
    a("s_xor_b32 s22, s57, 4")
    a(f"s_mul_i32 s22, s22, {HS}")
    a("v_add_u32 v7, s22, v2")
    a(f"s_mul_i32 s22, s57, {HS}")
    a("v_add_u32 v8, s22, v2")
    a("s_mul_i32 s56, s78, 28672")
    for k in range(3):
        a(f"v_add_u32 v11, {64*k}, v1")
        a("v_mul_u32_u24 v12, 6554, v11")
        a("v_lshrrev_b32 v12, 16, v12")
        a(f"v_mul_u32_u24 v{240+k}, {1280-160}, v12")
        a(f"v_lshl_add_u32 v{240+k}, v11, 4, v{240+k}")
    a("s_mul_i32 s58, s57, 20480")
    a("s_mul_i32 s22, s45, 160")
    a("s_add_u32 s58, s58, s22")
    a("v_mov_b32 v254, 0")
    a("s_lshl_b32 s73, s45, 7")
    a(f"s_add_u32 s73, s73, {FL_Y}")
    a("v_lshrrev_b32 v11, 3, v1")
    a("v_lshlrev_b32 v11, 12, v11")
    a("v_and_b32 v12, 7, v1")
    a("v_lshl_add_u32 v11, v12, 4, v11")
    a("s_lshl_b32 s61, s45, 2")
    a("s_add_u32 s61, s61, s13")
    a(f"s_mul_i32 s61, s61, {20*4096}")
    a("s_lshr_b32 s23, s57, 2")
    a("s_lshl_b32 s23, s23, 7")
    a("s_add_u32 s61, s61, s23")
    a(f"s_add_u32 s61, s61, {WS_AT}")
    a("v_lshrrev_b32 v12, 4, v1")
    a("v_lshlrev_b32 v14, 3, v12")
    a("s_mul_i32 s60, s13, 5120")
    a(f"s_add_u32 s60, s60, {L_X}")
    a("v_add_u32 v253, s60, v2")
    a(f"v_mov_b32 v5, {L_WF}")
    a("v_and_b32 v13, 15, v1")
    a("v_mul_u32_u24 v13, 160, v13")
    a("v_add3_u32 v13, v13, v14, s60")
    a("v_and_b32 v248, 3, v1")
    a("v_lshlrev_b32 v248, 3, v248")
    a("s_lshl_b32 s22, s13, 5")
    a(f"s_add_u32 s22, s22, {L_X + 2560}")
    a("v_add_u32 v248, s22, v248")
    for dl in range(5):
        a("v_lshrrev_b32 v249, 2, v1")
        a(f"v_add_u32 v249, {16*dl}, v249")
        a("v_mul_u32_u24 v252, 3277, v249")
        a("v_lshrrev_b32 v252, 16, v252")
        a(f"v_mul_u32_u24 v252, {5120-2560}, v252")
        a("v_lshl_add_u32 v252, v249, 7, v252")
        a(f"v_add_u32 v{243+dl}, v252, v248")
    a("s_lshl_b32 s66, s2, 2")
    a("s_add_u32 s66, s66, s13")
    a("s_xor_b32 s67, s66, 4")
    a("s_lshl_b32 s68, s66, 7")
    a(f"s_add_u32 s68, s68, {FL_E}")
    a("s_lshl_b32 s69, s67, 7")
    a(f"s_add_u32 s69, s69, {FL_E}")
    a("s_mul_i32 s66, s66, 3072")
    a(f"s_add_u32 s66, s66, {WS_EX}")
    a("s_mul_i32 s67, s67, 3072")
    a(f"s_add_u32 s67, s67, {WS_EX}")
    a("s_waitcnt lgkmcnt(0)")
    srd(a, 48, 10, 2048*1280)
    srd(a, 52, 8, 1280)
    srd(a, 24, 4, 2048*1280)
    old, P["PSLEEP"] = P["PSLEEP"], 1
    poll_global(a, [hp], [15], preissued=True)
    P["PSLEEP"] = old
    glog(a)
    st = Stream()
    hun = []
    for i in range(28-D): hun += [(i, 0), (i, 1)]
    hun += [(i, 0) for i in range(28-D, 28)] + [(i, 1) for i in range(28-D, 28)]
    hidx = {u: q for q, u in enumerate(hun)}
    NQ = (224 - vH)//4
    def hreg(u): return vH + (hidx[u] % NQ)*4
    def hl(q):
        i, hf = hun[q]; b = hreg(hun[q]); g = []
        first = hf == 0 or i >= 28-D
        last = hf == 1 or i >= 28-D
        if (i, hf) == (28-D, 0): g.append(("s_mov_b32 s47, s46", None))
        if (i, hf) == (28-D, 1): g.append(("s_mov_b32 s46, s47", None))
        if first: g += [(x, None) for x in ["s_lshl_b32 s72, s46, 10", "s_add_u32 s72, s72, s56", "s_cmp_lt_u32 s46, s64", f"s_cselect_b32 s72, s72, {OOB}"]]
        g.append((f"buffer_load_dwordx4 v[{b}:{b+3}], v{7+hf}, s[36:39], s72 offen {P['HFL']}", ("k", i, hf)))
        if last: g += [(x, None) for x in ["s_add_u32 s46, s46, 1", "s_cmp_eq_u32 s46, 28", "s_cselect_b32 s46, 0, s46"]]
        return g
    def wslot(j):
        if j >= 22: j -= 18
        if j < 4: return 3, j*5120
        if j < 16: return 4, (j-4)*5120
        return 9, (j-16)*5120
    sched = [(i, (0, 1)) for i in range(28-D)] + [(i, (0,)) for i in range(28-D, 28)] + [(i, (1,)) for i in range(28-D, 28)]
    def wr(n):
        j = sched[n][0]; ad, off = wslot(j); b = vWB + (n % RW)*20
        return [[(f"ds_read_b64_tr_b16 v[{b+4*dl+2*h}:{b+4*dl+2*h+1}], v{ad} offset:{off + 32*dl + 2560*h}", ("w", n))] for dl in range(5) for h in range(2)]
    for q in range(2*HPRE): st.items.extend(hl(q))
    nh = 2*HPRE
    stamp(st, 6)
    miles = {0: 4, 4: 10, 10: 16, 16: 22, 22: 28}
    spin_ge(st, 5, 6, 4)
    for n0 in range(RW-1):
        for g in wr(n0): st.items.extend(g)
    used = set()
    ypoll = f"buffer_load_dword v252, v254, s[36:39], s73 offen {SC}"
    vB2 = 224
    def at_loads(o, sr="s61"):
        for k in range(3):
            if k == 2: o("s_mov_b32 exec_hi, 0")
            o(f"s_add_u32 m0, s60, {2560 + 1024*k}")
            o("s_nop 0")
            o(f"buffer_load_dwordx4 v11, s[36:39], {sr} offen {SC} lds")
            if k < 2: o(f"s_add_u32 {sr}, {sr}, 32768")
        o("s_mov_b64 exec, -1")
    vS = 216
    NS_ = len(sched); xdone = False
    for n, (i, halves) in enumerate(sched):
        st.wait("vm", [("k", i, hf) for hf in halves])
        st.wait("lg", ("w", n))
        if n % 3 == 0: glog(st)
        fill = []
        nn = n + RW - 1
        if nn < NS_:
            j = sched[nn][0]
            if nn < 28 and j in miles and j > 0: spin_ge(st, 5, 6, miles[j])
            fill += wr(nn)
        if n == 10:
            gsig(st, 3)
        k = 0; cons = hidx[(i, halves[0])]
        while nh < 56 and nh - NQ < cons and k < P["HRATE"]*len(halves):
            fill.insert(min(len(fill), 2+3*k), hl(nh)); nh += 1; k += 1
        if not xdone and nh == 56 and n >= 22:
            xdone = True
            g = []
            for kk in range(3):
                if kk == 2: g.append(("s_mov_b32 exec_hi, 0", None))
                g += [(f"s_add_u32 m0, s60, {1024*kk}", None), ("s_nop 0", None), (f"buffer_load_dwordx4 v{240+kk}, s[24:27], s58 offen lds", "x")]
            g.append(("s_mov_b64 exec, -1", None))
            fill.append(g)
            fill.append([("s_mul_i32 s22, s45, 160", None)] + [(f"buffer_load_dwordx2 v[{vB2+2*dl}:{vB2+1+2*dl}], v14, s[52:55], s22 offen offset:{32*dl}", "x") for dl in range(5)])
        if n == P["YP"]:
            assert xdone
            fill.append([(ypoll, "y")])
        bw = vWB + (n % RW)*20
        mm = []
        for dl in range(5):
            for hf in halves:
                c = vACC + (hf*5+dl)*4; bh = hreg((i, hf))
                C = f"v[{c}:{c+3}]" if c in used else "0"; used.add(c)
                mm.append(f"v_mfma_f32_16x16x32_bf16 v[{c}:{c+3}], v[{bw+4*dl}:{bw+3+4*dl}], v[{bh}:{bh+3}], {C}")
        per = -(-len(fill) // len(mm))
        for q, x in enumerate(mm):
            st(x)
            for g in fill[q*per:(q+1)*per]: st.items.extend(g)
        if n == 28:
            for q in range(10): st(f"v_cvt_pk_bf16_f32 v{vACC+q}, v{vACC+2*q}, v{vACC+2*q+1}")
            for q in range(2): st(f"buffer_store_dwordx4 v[{vACC+4*q}:{vACC+3+4*q}], v2, s[36:39], s66 offen offset:{1024*q} {SC}", tag="ex")
            st(f"buffer_store_dwordx2 v[{vACC+8}:{vACC+9}], v10, s[36:39], s66 offen offset:2048 {SC}", tag="ex")
            stamp(st, 7)
        if n == 28 + P["YA"]:
            st.wait("vm", "y")
            st("v_cmp_ne_u32 vcc, s100, v252")
            st("s_or_b32 s65, vcc_lo, vcc_hi")
            st("s_cmp_eq_u32 s65, 0")
            st(f"s_cselect_b32 s70, s61, {OOB}")
            at_loads(st, "s70")
        if n == NS_ - 1 - P["XF"]:
            st.wait("vm", "ex")
            store1(st, "s100", "s68", 250, SC)
    assert xdone
    st("s_mov_b32 s59, 0xffff0000")
    K = vACC + 20
    def unpack_add(acc, src):
        st(f"v_lshlrev_b32 v236, 16, v{src}")
        st(f"v_and_b32 v237, s59, v{src}")
        st(f"v_lshlrev_b32 v238, 16, v{src+1}")
        st(f"v_and_b32 v239, s59, v{src+1}")
        for r in range(4): st(f"v_add_f32 v{acc+r}, v{acc+r}, v{236+r}")
    st.wait("vm", "x")
    resolve(st.items, a)
    a("s_cmp_eq_u32 s65, 0")
    a("s_cbranch_scc1 Y_OK")
    poll_global(a, [ypoll], [252])
    at_loads(a)
    a.label("Y_OK")
    ep = f"buffer_load_dword v15, v254, s[36:39], s69 offen {SC}"
    a(ep)
    st = Stream()
    for dl in range(5):
        st(f"ds_read_b64 v[{56+2*dl}:{57+2*dl}], v13 offset:{32*dl}", tag=("xr", dl))
    for dl in range(5): unpack_add(K+4*dl, vB2+2*dl)
    for dl in range(5):
        st.wait("lg", ("xr", dl))
        unpack_add(K+4*dl, 56+2*dl)
    resolve(st.items, a)
    old, P["PSLEEP"] = P["PSLEEP"], 1
    poll_global(a, [ep], [15], preissued=True)
    P["PSLEEP"] = old
    st = Stream()
    for q in range(2): st(f"buffer_load_dwordx4 v[{96+4*q}:{99+4*q}], v2, s[36:39], s67 offen offset:{1024*q} {SC}", tag="pp")
    st(f"buffer_load_dwordx2 v[104:105], v10, s[36:39], s67 offen offset:2048 {SC}", tag="pp")
    st("s_barrier")
    stamp(st, 8)
    for dl in range(5):
        st(f"ds_read_b64_tr_b16 v[{70+2*dl}:{71+2*dl}], v{243+dl}", tag=("r", dl))
    for dl in range(5):
        st.wait("lg", ("r", dl))
        unpack_add(K+4*dl, 70+2*dl)
    st.wait("vm", "pp")
    for dl in range(5):
        c = K + 4*dl
        unpack_add(c, 96+2*dl)
        st(f"v_cvt_pk_bf16_f32 v{120+2*dl}, v{c}, v{c+1}")
        st(f"v_cvt_pk_bf16_f32 v{121+2*dl}, v{c+2}, v{c+3}")
        st(f"ds_write_b64 v13, v[{120+2*dl}:{121+2*dl}] offset:{32*dl}")
    for k in range(3):
        st(f"ds_read_b128 v[{164+4*k}:{167+4*k}], v253 offset:{1024*k}", tag=("o", k))
    for k in range(3):
        st.wait("lg", ("o", k))
        if k == 2: st("s_mov_b32 exec_hi, 0")
        st(f"buffer_store_dwordx4 v[{164+4*k}:{167+4*k}], v{240+k}, s[48:51], s58 offen {P['OUTFL']}")
    st("s_mov_b64 exec, -1")
    if Cfg.PROF: st.waitall("vm")
    stamp(st, 9)
    resolve(st.items, a)
    a("s_or_b32 s22, s2, s12")
    a("s_cmp_lg_u32 s22, 0")
    a("s_cbranch_scc1 G_NOR")
    a("v_and_b32 v3, 7, v1")
    a("v_lshlrev_b32 v3, 7, v3")
    a(f"s_mov_b32 s59, {FL_Y}")
    poll_global(a, [f"buffer_load_dword v4, v3, s[36:39], s59 offen {SC}"], [4])
    a(f"s_mov_b32 s22, {FL_R}")
    store1(a, "s100", "s22", 4, SC)
    if P["PADTO"]:
        a.label("PADL")
        a("s_memrealtime s[76:77]"); a("s_waitcnt lgkmcnt(0)")
        a("s_sub_u32 s76, s76, s80"); a(f"s_cmp_lt_u32 s76, {P['PADTO']*100}"); a("s_cbranch_scc1 PADL")
    a.label("G_NOR")
    if P["GDBG"]:
        a("s_lshl_b32 s22, s2, 2"); a("s_add_u32 s22, s22, s13"); a("s_lshl_b32 s22, s22, 7"); a(f"s_add_u32 s22, s22, {WS_PROF + (2<<18)}")
        a("v_lshlrev_b32 v2, 2, v1"); a("s_mov_b32 exec_hi, 0")
        a("buffer_store_dword v255, v2, s[36:39], s22 offen"); a("s_mov_b64 exec, -1")
    prof_flush(a, 10, 36, 12)
    if P["DBGOUT"]:
        a("s_cmp_lg_u32 s2, 9"); a("s_cbranch_scc1 DBG_E")
        a("s_cmp_lg_u32 s12, 0"); a("s_cbranch_scc1 DBG_E")
        a("s_load_dwordx2 s[8:9], s[0:1], 120"); a("s_waitcnt lgkmcnt(0)")
        srd(a, 40, 8, 256)
        a("v_mov_b32 v1, 0"); a("s_mov_b64 exec, 1")
        for i, slot in zip(range(1, 10), [1, 2, 3, 5, 6, 7, 9, 10, 11]):
            a(f"s_sub_u32 s22, s{80+2*i}, s80"); a("v_mov_b32 v2, s22")
            a(f"buffer_store_dword v2, v1, s[40:43], 0 offen offset:{4*slot}")
        a.label("DBG_E")
    a("s_endpgm")

vR = 200; vT = 212
def G_stub(a):
    a("v_lshrrev_b32 v6, 5, v1")
    a("v_and_b32 v7, 31, v1")
    a("v_mul_u32_u24 v2, 1280, v6")
    a("v_lshl_add_u32 v2, v7, 3, v2")
    a("s_mul_i32 s22, s101, 10240")
    a("s_mul_i32 s23, s13, 2560")
    a("s_add_u32 s22, s22, s23")
    a("s_waitcnt lgkmcnt(0)")
    srd(a, 24, 4, 2048*1280)
    for k in range(5):
        a(f"buffer_load_dwordx2 v[{vR+2*k}:{vR+1+2*k}], v2, s[24:27], s22 offen offset:{256*k}")
    a("s_cmp_lt_u32 s14, 28")
    a("s_cbranch_scc1 M_G")
    a("s_branch GC")
def LN1(a, younger):
    a(f"v_mov_b32 v{vT+8}, 0x3f803f80")
    a(f"v_mov_b32 v{vT+9}, 0xffff0000")
    for k in range(4): a(f"v_mov_b32 v{vT+k}, 0")
    a("s_mul_i32 s22, s13, 2688")
    a(f"s_add_u32 s22, s22, {L_LN}")
    a(f"v_mul_u32_u24 v{vT+14}, 1344, v6")
    a(f"v_lshl_add_u32 v{vT+14}, v7, 3, v{vT+14}")
    a(f"v_add_u32 v{vT+14}, s22, v{vT+14}")
    a(f"v_lshlrev_b32 v{vT+15}, 3, v6")
    a("s_lshl_b32 s22, s101, 6")
    a("s_lshl_b32 s23, s13, 4")
    a("s_add_u32 s22, s22, s23")
    a(f"s_add_u32 s22, s22, {WS_STATS}")
    a("s_add_u32 s23, s22, 65536")
    a(f"s_waitcnt vmcnt({younger})")
    for k in range(10):
        a(f"v_dot2_f32_bf16 v{vT+(k&1)}, v{vR+k}, v{vT+8}, v{vT+(k&1)}")
        a(f"v_dot2_f32_bf16 v{vT+2+(k&1)}, v{vR+k}, v{vR+k}, v{vT+2+(k&1)}")
    m = vT; q = vT+2
    a(f"v_add_f32 v{m}, v{m}, v{m+1}")
    a(f"v_add_f32 v{q}, v{q}, v{q+1}")
    for dpp in ("quad_perm:[1,0,3,2]", "quad_perm:[2,3,0,1]", "row_half_mirror", "row_mirror"):
        a(f"v_add_f32_dpp v{m}, v{m}, v{m} {dpp} row_mask:0xf bank_mask:0xf")
        a(f"v_add_f32_dpp v{q}, v{q}, v{q} {dpp} row_mask:0xf bank_mask:0xf")
    a(f"v_mov_b32 v{m+1}, v{m}")
    a(f"v_mov_b32 v{q+1}, v{q}")
    a(f"v_permlane16_swap_b32 v{m}, v{m+1}")
    a(f"v_permlane16_swap_b32 v{q}, v{q+1}")
    a(f"v_add_f32 v{m}, v{m}, v{m+1}")
    a(f"v_add_f32 v{q}, v{q}, v{q+1}")
    def rbf(r):
        a(f"v_cvt_pk_bf16_f32 v{r}, v{r}, v{r}")
        a(f"v_lshlrev_b32 v{r}, 16, v{r}")
    a(f"v_mul_f32 v{m}, {f32bits(1/640.)}, v{m}")
    a(f"v_mul_f32 v{q}, {f32bits(1/640.)}, v{q}")
    a(f"v_fma_f32 v{q}, -v{m}, v{m}, v{q}")
    a(f"v_max_f32 v{q}, 0, v{q}")
    rbf(q)
    a(f"v_add_f32 v{q}, {f32bits(1e-5)}, v{q}")
    rbf(q)
    a(f"v_sqrt_f32 v{q}, v{q}")
    a(f"v_mov_b32 v{vT+5}, s100")
    a(f"v_cvt_pk_bf16_f32 v{vT+4}, v{m}, v{q}")
    a("s_mov_b32 exec_lo, 1")
    a("s_mov_b32 exec_hi, 1")
    a(f"buffer_store_dwordx2 v[{vT+4}:{vT+5}], v{vT+15}, s[36:39], s22 offen {SC}")
    a("s_mov_b64 exec, -1")
    a(f"v_and_b32 v{q}, v{vT+9}, v{vT+4}")
    a(f"v_lshlrev_b32 v{m}, 16, v{vT+4}")
    a(f"v_rcp_f32 v{q}, v{q}")
    for k2 in range(5):
        xs = [vR+2*k2, vR+2*k2+1]; ts = [(vT+10, vT+11), (vT+12, vT+13)]
        def two(fmt):
            for x, (t0, t1) in zip(xs, ts): a(fmt.format(x=x, t0=t0, t1=t1, m=m, q=q, k=vT+9))
        two("v_lshlrev_b32 v{t0}, 16, v{x}")
        two("v_and_b32 v{t1}, v{k}, v{x}")
        two("v_sub_f32 v{t0}, v{t0}, v{m}")
        two("v_sub_f32 v{t1}, v{t1}, v{m}")
        two("v_cvt_pk_bf16_f32 v{x}, v{t0}, v{t1}")
        two("v_lshlrev_b32 v{t0}, 16, v{x}")
        two("v_and_b32 v{t1}, v{k}, v{x}")
        two("v_mul_f32 v{t0}, v{t0}, v{q}")
        two("v_mul_f32 v{t1}, v{t1}, v{q}")
        two("v_cvt_pk_bf16_f32 v{x}, v{t0}, v{t1}")
        a(f"ds_write_b64 v{vT+14}, v[{xs[0]}:{xs[1]}] offset:{256*k2}")
    a("s_waitcnt lgkmcnt(0)")
def LN2_pre(a, vb):
    a(f"v_bfe_u32 v{vb}, v1, 2, 2")
    a(f"v_mul_u32_u24 v{vb+1}, 1344, v{vb}")
    a(f"v_lshrrev_b32 v{vb}, 4, v1")
    a(f"v_lshl_add_u32 v{vb+1}, v{vb}, 5, v{vb+1}")
    a(f"v_and_b32 v{vb}, 3, v1")
    a(f"v_lshl_add_u32 v{vb+1}, v{vb}, 3, v{vb+1}")
    a("s_mul_i32 s22, s13, 640")
    a(f"s_add_u32 s22, s22, {L_LN}")
    a(f"v_add_u32 v{vb+1}, s22, v{vb+1}")
    a(f"v_lshlrev_b32 v{vb+2}, 4, v1")
    a(f"v_add_u32 v{vb+3}, 4096, v{vb+2}")
    a("s_mul_i32 s43, s101, 10240")
    a("s_mul_i32 s22, s13, 5120")
    a("s_add_u32 s43, s43, s22")
    a(f"s_add_u32 s43, s43, {WS_XNT}")
    a("s_cmp_lt_u32 s13, 2")
    a(f"s_cselect_b32 s43, s43, {OOB}")
def LN2_rd(a, vb):
    for c in range(5):
        b = vb+4+4*c
        a(f"ds_read_b64_tr_b16 v[{b}:{b+1}], v{vb+1} offset:{c*128}")
        a(f"ds_read_b64_tr_b16 v[{b+2}:{b+3}], v{vb+1} offset:{c*128+4*1344}")
def LN2_st(vb):
    return [f"buffer_store_dwordx4 v[{vb+4+4*c}:{vb+7+4*c}], v{vb+2+c//4}, s[36:39], s43 offen offset:{1024*(c%4)} {SC}" for c in range(5)]
def p_signal(a, sidx, off, v0):
    a("s_lshl_b32 s22, s3, 10")
    a(f"s_lshl_b32 s23, {sidx}, 2")
    a("s_add_u32 s22, s22, s23")
    a(f"s_add_u32 s22, s22, {FL_P + off}")
    a("s_add_u32 s23, s22, 8192")
    a(f"v_mov_b32 v{v0}, s100")
    a(f"v_mov_b32 v{v0+1}, 0")
    a("s_mov_b64 exec, 1")
    a("s_waitcnt vmcnt(0)")
    a(f"buffer_store_dword v{v0}, v{v0+1}, s[36:39], s22 offen")
    a(f"buffer_store_dword v{v0}, v{v0+1}, s[36:39], s23 offen {SC}")
    a("s_mov_b64 exec, -1")
def leader(a, off, n4, gflag, v0, sleep=2):
    L = newlabel("LD")
    a(f"v_min_u32 v{v0}, {n4-1}, v1")
    a(f"v_lshlrev_b32 v{v0}, 4, v{v0}")
    a("s_lshl_b32 s20, s3, 10")
    a(f"s_add_u32 s20, s20, {FL_P + off}")
    a("s_mov_b32 s21, 0")
    a(L + ":")
    a(f"s_sleep {sleep}")
    a("s_add_u32 s21, s21, 1")
    a("s_and_b32 s22, s21, 31")
    a("s_cmp_eq_u32 s22, 0")
    a("s_cselect_b32 s22, 8192, 0")
    a("s_add_u32 s22, s22, s20")
    a(f"buffer_load_dwordx4 v[{v0+2}:{v0+5}], v{v0}, s[36:39], s22 offen {SC}")
    a("s_waitcnt vmcnt(0)")
    check_tags(a, [v0+2, v0+3, v0+4, v0+5], L)
    a("s_lshl_b32 s22, s3, 7")
    a(f"s_add_u32 s22, s22, {gflag}")
    store1(a, "s100", "s22", v0, SC)

def C_work(a):
    srd(a, 40, 52, 1728*1280)
    a("s_lshl_b32 s18, s44, 2")
    a("s_add_u32 s18, s18, s13")
    a("s_mul_i32 s22, s18, 17408")
    a("v_lshlrev_b32 v8, 7, v1")
    NW = 3 if P["W2WARM"] else 0
    for k in range(NW):
        if k == 2: a("s_mov_b64 exec, 0xff")
        a("buffer_load_dword v234, v8, s[40:43], s22 offen")
        a("s_add_u32 s22, s22, 8192")
    a("s_mov_b64 exec, -1")
    ptr_rest(a)
    tag_ready(a)
    LN1(a, NW)
    a("s_barrier")
    if P["CT"]:
        a("s_cmp_eq_u32 s14, 31")
        a("s_cbranch_scc1 CT_E")
        a("v_min_u32 v21, 47, v1")
        a("v_lshlrev_b32 v21, 7, v21")
        a("v_and_b32 v30, 7, v1")
        a("v_lshlrev_b32 v30, 7, v30")
        a(f"s_mov_b32 s59, {FL_X}")
        a("s_and_b32 s20, s18, 15")
        a("s_lshr_b32 s21, s3, 1")
        a(f"s_mul_i32 s21, s21, {32*HS}")
        a("s_mul_i32 s22, s78, 28672")
        a("s_add_u32 s21, s21, s22")
        a("v_and_b32 v23, 1, v1")
        a("v_lshlrev_b32 v23, 2, v23")
        a(f"v_add_u32 v23, {L_WF+24}, v23")
        spin_ge(a, 23, 24, 1)
        a.label("CT_L")
        if P["CTX"]: a(f"buffer_load_dword v25, v30, s[36:39], s59 offen {SC}")
        a("s_lshr_b32 s22, s20, 1")
        a("s_and_b32 s41, s22, 7")
        a("s_lshl_b32 s41, s41, 2")
        a("s_lshr_b32 s22, s22, 3")
        a("s_add_u32 s41, s41, s22")
        a(f"s_mul_i32 s41, s41, {HS}")
        a("s_add_u32 s41, s41, s21")
        a("s_and_b32 s22, s20, 1")
        a("s_mul_i32 s22, s22, 14336")
        a("s_add_u32 s41, s41, s22")
        for k in range(2):
            a(f"buffer_load_dword v22, v{8 if k < 1 else 21}, s[36:39], s41 offen {SC}")
            a("s_add_u32 s41, s41, 8192")
        a(f"s_waitcnt vmcnt({P['CTW']})")
        if P["CTX"]:
            a("v_cmp_ne_u32 vcc, s100, v25")
            a("s_cbranch_vccz CT_E")
        a("s_add_u32 s20, s20, 12")
        a(f"s_cmp_lt_u32 s20, {P['CTN']}")
        a("s_cbranch_scc1 CT_L")
        a.label("CT_E")
        stamp(a, 1)

def htouch(a):
    a("v_lshrrev_b32 v178, 5, v1")
    a(f"v_mul_u32_u24 v178, {HS}, v178")
    a("v_and_b32 v179, 31, v1")
    a("v_lshl_add_u32 v178, v179, 7, v178")
    a("s_lshl_b32 s22, s15, 2")
    a("s_add_u32 s22, s22, s13")
    a(f"s_mul_i32 s22, s22, {2*HS}")
    a("s_lshl_b32 s23, s16, 12")
    a("s_add_u32 s22, s22, s23")
    a(f"buffer_load_dword v179, v178, s[36:39], s22 offen {SC}")
def emit_G(a):
    a(f"s_setprio {P['GPRIO']}")
    G_setup(a)
    if P["HT"] == 4: htouch(a)
    LN1(a, (1 if P["HT"] == 4 else 0) + 4)
    if P["HT"] == 3: htouch(a)
    stamp(a, 1)
    bar(a, "G", 0)
    a("s_lshl_b32 s22, s16, 1")
    a("s_add_u32 s22, s22, s19")
    a("s_cmp_eq_u32 s22, 27")
    a("s_cbranch_scc1 G_SKIP")
    G_loop(a)
    gsig(a, 1 if P["GK"] else 2)
    poll_global(a, [f"buffer_load_dwordx2 v[{vGRN+2*rt}:{vGRN+1+2*rt}], v15, s[36:39], s60 offen offset:{128*rt} {SC}" for rt in range(4)],
                [vGRN+1, vGRN+3, vGRN+5, vGRN+7], preissued=True)
    xcc_val(a, "s22")
    a(f"v_cmp_ne_u32 vcc, s22, v{vTB}")
    a("s_or_b32 s69, vcc_lo, vcc_hi")
    if not P["LOCAL"]: a("s_mov_b32 s69, 1")
    G_gelu(a)
    stamp(a, 4)
    a("s_lshl_b32 s22, s15, 1")
    a("s_and_b32 s23, s3, 1")
    a("s_add_u32 s22, s22, s23")
    a("s_lshl_b32 s22, s22, 7")
    a("s_mul_i32 s23, s18, 7")
    a("s_add_u32 s23, s23, s45")
    a("s_lshl_b32 s23, s23, 1")
    a("s_add_u32 s23, s23, s19")
    a("s_lshl_b32 s23, s23, 2")
    a("s_add_u32 s22, s22, s23")
    a(f"s_add_u32 s68, s22, {FL_H}")
    a("s_cmp_lg_u32 s69, 0")
    a(f"s_cselect_b32 s67, s68, {OOB}")
    a(f"s_cselect_b32 s68, {OOB}, s68")
    a("v_mov_b32 v250, s100")
    a("v_mov_b32 v251, 0")
    a("s_mov_b64 exec, 1")
    a(f"s_waitcnt vmcnt({1 if P['HT'] in (5, 6) else 0})")
    a("buffer_store_dword v250, v251, s[36:39], s68 offen")
    a(f"buffer_store_dword v250, v251, s[36:39], s67 offen {SC}")
    a("s_mov_b64 exec, -1")
    stamp(a, 5)
    a.label("G2")
    G2(a)
    a.label("G_SKIP")
    a("s_waitcnt vmcnt(0)")
    a("s_mov_b32 s22, 9")
    a.label("G_BL")
    a("s_barrier")
    a("s_sub_u32 s22, s22, 1")
    a("s_cmp_lg_u32 s22, 0")
    a("s_cbranch_scc1 G_BL")
    gsig(a, 2)
    a("s_branch G2")
    a.label("GC")
    a(f"s_setprio {P['GPRIO']}")
    C_work(a)
    gsig(a, 2)
    a("s_branch G2")

def cbar(a):
    L = newlabel("CB")
    a("s_cmp_ge_u32 s14, 28")
    a(f"s_cbranch_scc1 {L}")
    a("s_barrier")
    a(L + ":")
def chan0(a, d):
    a(f"s_mul_i32 {d}, s14, 3")
    a("s_lshl_b32 s22, s14, 1")
    a("s_add_u32 s22, s22, 24")
    a("s_cmp_lt_u32 s14, 24")
    a(f"s_cselect_b32 {d}, {d}, s22")
def K_stub(a):
    a("s_cmp_ge_u32 s14, 28")
    a("s_cbranch_scc1 KC")
    chan0(a, "s59")
    a("s_cselect_b32 s22, 3, 2")
    a("s_cmp_ge_u32 s13, s22")
    a("s_cbranch_scc1 M_END")
    a("s_add_u32 s59, s59, s13")
    a("s_mul_i32 s47, s3, 80")
    a("s_add_u32 s47, s47, s59")
    resolve(kconv.kload().items, a)
    a("s_branch M_K")
def xcc_publish(a):
    xcc_val(a, "s23")
    a("s_lshl_b32 s22, s101, 2")
    a(f"s_add_u32 s22, s22, {FL_T}")
    a("s_cmp_eq_u32 s12, 5")
    a(f"s_cselect_b32 s22, s22, {OOB}")
    store1(a, "s23", "s22", 2, "")
def emit_KC(a):
    a.label("KC")
    a("s_waitcnt lgkmcnt(0)")
    ptr_rest(a)
    tag_ready(a)
    xcc_publish(a)
    LN2_pre(a, 4)
    a("s_barrier")
    a("s_cmp_eq_u32 s12, 6")
    a("s_cbranch_scc1 KC_A")
    LN2_rd(a, 4)
    a("s_waitcnt lgkmcnt(0)")
    for x in LN2_st(4): a(x)
    a("s_lshl_b32 s21, s14, 1")
    a("s_add_u32 s21, s21, s13")
    p_signal(a, "s21", 0, 2)
    a("s_lshl_b32 s22, s13, 2")
    a(f"s_add_u32 s22, s22, {L_WF+24}")
    a("v_mov_b32 v2, s22")
    a("v_mov_b32 v3, 1")
    a("ds_write_b32 v2, v3")
    a("s_cmp_eq_u32 s12, 4")
    a("s_cbranch_scc1 M_END")
    a.label("KC_A")
    a("s_cmp_eq_u32 s12, 5")
    a("s_cbranch_scc1 KC_B")
    if P["CPREF"] > 1:
        hflag_addr(a, 13, 14, "s59")
        a("v_and_b32 v16, 7, v1")
        a("v_lshlrev_b32 v16, 7, v16")
        a("s_lshl_b32 s60, s15, 10")
        a(f"s_add_u32 s60, s60, {WS_STATS}")
        a.label("KC_R")
        a(f"s_sleep {P['CSLEEP']}")
        cpref(a)
        a(f"buffer_load_dword v17, v16, s[36:39], s60 offen {SC}")
        a(f"buffer_load_dword v15, v13, s[36:39], s59 offen {SC}")
        a("s_waitcnt vmcnt(0)")
        check_tags(a, [15], "KC_R")
    a("s_endpgm")
    a.label("KC_B")
    a("s_cmp_lg_u32 s14, 31")
    a("s_cbranch_scc1 LD_N1")
    leader(a, 0, 16, FL_X, 34)
    stamp(a, 1)
    a.label("LD_N1")
    a("s_cmp_lg_u32 s14, 30")
    a("s_cbranch_scc1 LD_N3")
    leader(a, 384, 20, FL_Y, 34, sleep=P["YSLEEP"])
    stamp(a, 1)
    a.label("LD_N3")
    prof_flush(a, 2, 36, 12)
    a("s_endpgm")
def emit_K(a):
    ptr_rest(a)
    a(f"s_mul_i32 s46, s13, {kconv.KREG}")
    a(f"s_add_u32 s46, s46, {L_K}")
    a("s_lshl_b32 s45, s13, 4")
    a(f"s_add_u32 s45, s45, {L_U}")
    pre, kg = kconv.kgen()
    items = kg.items
    itail = [i for i, it in enumerate(items) if it[0] == ("mark", "tail")][0]
    iearly = [i for i, it in enumerate(items) if it[0] == ("mark", "early_end")][0]
    print("kgen items", len(items), "early_end", iearly, "tail at", itail)
    resolve(pre.items, a)
    tag_ready(a)
    xcc_publish(a)
    LN2_pre(a, 4)
    a("s_waitcnt vmcnt(1)")
    stamp(a, 6)
    if Cfg.PROF: a("s_waitcnt lgkmcnt(0)")
    lgq = []; pos = 0
    def sl(n):
        nonlocal pos
        e = min(pos+n, itail)
        resolve(items[pos:e], a, lgq=lgq); pos = e
    sl(P["KPRE"])
    ilow = [i for i, it in enumerate(items) if it[0] == ("mark", "low_regs")][0]
    assert P["KPRE"] < ilow
    bar(a, "K", 0)
    LN2_rd(a, 4)
    lgq.extend(["ln2"]*10)
    for t in range(1, 10):
        if t == 1: sl(P["KS1"])
        elif t in (2, 3):
            sts = LN2_st(4)[:3] if t == 2 else LN2_st(4)[3:]
            if t == 2: a("s_waitcnt lgkmcnt(0)"); del lgq[:]
            for x in sts:
                a(x); sl(P["KS2"]//len(sts))
            if t == 3: assert pos < ilow
        else: sl(P["KSL"])
        bar(a, "K", t)
        if t == P["FB"]:
            a("s_cmp_eq_u32 s12, 6")
            a("s_cbranch_scc1 K_B")
            a("s_lshl_b32 s21, s14, 1")
            a("s_add_u32 s21, s21, s13")
            p_signal(a, "s21", 0, 252)
            a.label("K_B")
    print('V left after B_9:', itail-pos); itail = pos
    bdump(a)
    if P["KPRIO"]: a("s_setprio 3")
    resolve(items[itail:], a, lgq=lgq)
    if P["KPRIO"]: a("s_setprio 0")
    stamp(a, 1)
    a(f"v_mov_b32 v252, {L_WF+4}")
    spin_lds(a, 252, 253, "s100")
    if P["GK"]:
        a("s_lshl_b32 s22, s13, 2")
        a(f"s_add_u32 s22, s22, {L_WF+8}")
        a("v_mov_b32 v252, s22")
        spin_ge(a, 252, 253, 2)
    st = Stream()
    stamp(st, 2)
    if Cfg.PROF: st("s_waitcnt lgkmcnt(0)")
    st.extend(kconv.conv(SC))
    stamp(st, 4)
    resolve(st.items, a)
    p_signal(a, "s59", 384, 4)
    stamp(a, 5)
    prof_flush(a, 8, 36, 12)
    a("s_endpgm")

def lstamp(a, k=None):
    if not P["LDBG"]: return
    a("s_memrealtime s[76:77]"); a("s_waitcnt lgkmcnt(0)")
    if k is None:
        a("s_sub_u32 m0, s40, 2"); a("v_writelane_b32 v100, s76, m0")
    else: a(f"v_writelane_b32 v100, s76, {k}")
def cpref(a):
    L = newlabel("PC")
    a("s_getpc_b64 s[10:11]")
    a(L + ":")
    a(f"s_sub_u32 s10, s10, {L}-KSTART")
    a("s_subb_u32 s11, s11, 0")
    a("v_lshlrev_b32 v55, 7, v1")
    a("s_and_b32 s22, s14, 3")
    a("s_lshl_b32 s22, s22, 14")
    a("v_add_u32 v55, s22, v55")
    for k in range(2):
        a("v_min_u32 v52, M_END-KSTART, v55")
        a("v_mov_b32 v53, s11")
        a("v_add_co_u32 v52, vcc, s10, v52")
        a("v_addc_co_u32 v53, vcc, 0, v53, vcc")
        a("global_load_dword v56, v[52:53], off sc1")
        a("v_add_u32 v55, 8192, v55")
def L_setup2(a):
    tag_ready(a)
    a("s_load_dwordx2 s[8:9], s[0:1], 96")
    for k in range(5):
        a(f"v_add_u32 v36, {64*k}, v1")
        a("v_mul_u32_u24 v37, 6554, v36")
        a("v_lshrrev_b32 v37, 16, v37")
        a(f"v_mul_u32_u24 v37, {1280-160}, v37")
        a(f"v_lshl_add_u32 v{14+k}, {'v1' if k < 4 else 'v36'}, 4, v37")
    a("s_waitcnt lgkmcnt(0)")
    srd(a, 32, 8, 1728*1280)
    g2_rot(a)
    a("s_mul_i32 s57, s45, 160")
    a(f"s_mul_i32 s22, s78, {28*40960}")
    a("s_add_u32 s57, s57, s22")
    a("v_and_b32 v46, 3, v1")
    a("v_lshlrev_b32 v46, 2, v46")
    a(f"v_add_u32 v46, {L_WF+8}, v46")
    a("v_lshrrev_b32 v49, 5, v1")
    a(f"v_mul_u32_u24 v49, {HS}, v49")
    a("v_and_b32 v30, 31, v1")
    a("v_lshl_add_u32 v49, v30, 7, v49")
    a(f"s_mul_i32 s68, s15, {8*HS}")
    a("s_lshl_b32 s22, s16, 12")
    a("s_add_u32 s68, s68, s22")
    a("v_and_b32 v30, 7, v1")
    a("v_lshlrev_b32 v30, 7, v30")
    a(f"s_mov_b32 s59, {FL_X}")
    for k in range(3):
        a(f"v_add_u32 v36, {64*k}, v1")
        a("v_mul_u32_u24 v37, 21846, v36")
        a("v_lshrrev_b32 v37, 16, v37")
        a(f"v_mul_u32_u24 v37, {10240-48}, v37")
        a(f"v_lshl_add_u32 v{40+k}, v1, 4, v37")
    chan0(a, "s65")
    a("s_mul_i32 s23, s3, 80")
    a("s_add_u32 s65, s65, s23")
    a("s_lshl_b32 s65, s65, 4")
    a(f"s_add_u32 s65, s65, {WS_XNT}")
    a("s_cmp_lt_u32 s14, 28")
    a(f"s_cselect_b32 s65, s65, {OOB}")
    a(f"v_mov_b32 v44, {L_WF}")
    a("v_mov_b32 v45, s100")
    a("s_mov_b32 s42, 0")
def emit_L(a):
    NL = P["NL"]
    a(f"v_mov_b32 v26, {L_WF}")
    a("v_lshl_add_u32 v26, v1, 2, v26")
    a("v_mov_b32 v28, 0")
    a("ds_write_b32 v26, v28")
    a("s_cmp_ge_u32 s14, 28")
    a("s_cbranch_scc1 LC")
    a(f"s_setprio {P['LPRIO']}")
    a("s_mul_i32 s17, s17, 5")
    a("s_mul_i32 s22, s45, 3")
    a("s_add_u32 s17, s17, s22")
    a(f"s_mul_i32 s22, s3, {P['XROT']}")
    a("s_add_u32 s17, s17, s22")
    a("s_lshr_b32 s17, s17, 1")
    a("s_mul_i32 s22, s17, 6554")
    a("s_lshr_b32 s22, s22, 16")
    a("s_mul_i32 s22, s22, 10")
    a("s_sub_u32 s17, s17, s22")
    a("v_lshrrev_b32 v22, 4, v1")
    a("v_bfe_u32 v21, v1, 1, 3")
    a("v_xor_b32 v21, v21, v22")
    a("v_and_b32 v23, 1, v1")
    a("v_lshl_add_u32 v21, v21, 1, v23")
    a("v_xor_b32 v23, 8, v21")
    a("v_mul_u32_u24 v24, 3456, v22")
    a("v_lshl_add_u32 v10, v21, 4, v24")
    a("v_lshl_add_u32 v11, v23, 4, v24")
    a("s_cmp_eq_u32 s16, 13")
    a("s_cselect_b32 s22, 8, 16")
    a(f"v_mov_b32 v25, {OOB}")
    a("v_cmp_gt_u32 vcc, s22, v21")
    a("v_cndmask_b32 v10, v25, v10, vcc")
    a("v_cmp_gt_u32 vcc, s22, v23")
    a("v_cndmask_b32 v11, v25, v11, vcc")
    ws = 8*3456-1024
    a(f"v_add_u32 v12, {2*ws}, v10")
    a(f"v_add_u32 v13, {3*ws}, v11")
    a(f"v_add_u32 v11, {ws}, v11")
    a("v_lshrrev_b32 v20, 3, v1")
    a("v_and_b32 v21, 7, v1")
    a("v_xor_b32 v21, v21, v22")
    a("v_mul_u32_u24 v2, 1280, v20")
    a("v_lshl_add_u32 v2, v21, 4, v2")
    a("v_xor_b32 v6, 64, v2")
    for i in range(1, 4):
        a(f"v_add_u32 v{2+i}, {i*(20480-1024)}, v2")
        a(f"v_add_u32 v{6+i}, {i*(20480-1024)}, v6")
    a("s_mul_i32 s18, s15, 163840")
    a("s_lshl_b32 s20, s16, 8")
    a("s_mov_b32 s19, 0")
    a("s_mov_b32 s40, 0")
    a("s_waitcnt lgkmcnt(0)")
    srd(a, 24, 4, 2048*1280)
    srd(a, 28, 48, 640*3456)
    ptr_rest(a)
    def issue():
        a("s_lshl_b32 s22, s17, 7")
        a("s_add_u32 s22, s22, s18")
        a(f"s_mul_i32 s23, s17, {64*3456}")
        a("s_add_u32 s23, s23, s20")
        xo = [0, 10240, 81920, 92160]; wo = [0, 4*3456, 32*3456, 36*3456]
        for g in range(4):
            a(f"s_add_u32 m0, s19, {16384 + g*4096}")
            a(f"s_add_u32 s41, s23, {wo[g]}")
            for i in range(4):
                a(f"buffer_load_dwordx4 v{10+i}, s[28:31], s41 offen offset:{1024*i} lds")
            if g == 3: a("s_waitcnt vmcnt(59)")
            a(f"s_add_u32 m0, s19, {g*4096}")
            a(f"s_add_u32 s41, s22, {xo[g]}")
            for i in range(4):
                a(f"buffer_load_dwordx4 v{2+4*(g&1)+i}, s[24:27], s41 offen offset:{1024*i} lds")
        a("s_add_u32 s17, s17, 1")
        a("s_cmp_eq_u32 s17, 10")
        a("s_cselect_b32 s17, 0, s17")
        a(f"s_add_u32 s19, s19, {SLOT}")
        a(f"s_cmp_eq_u32 s19, {3*SLOT}")
        a("s_cselect_b32 s19, 0, s19")
        a("s_add_u32 s40, s40, 1")
    a.label("L_P")
    issue()
    a("s_cmp_lt_u32 s40, 2")
    a("s_cbranch_scc1 L_P")
    L_setup2(a)
    a.label("L_LOOP")
    a("s_waitcnt vmcnt(32)")
    bar(a, "L")
    issue()
    a("s_cmp_lt_u32 s40, 10")
    a("s_cbranch_scc1 L_LOOP")
    emit_L_tail(a)
    a.label("LC")
    if P["CPREF"]: cpref(a)
    a("s_waitcnt lgkmcnt(0)")
    ptr_rest(a)
    L_setup2(a)
    a("s_barrier")
    a("s_branch LW_POLL")


def emit_L_tail(a):
    NL = P["NL"]
    xpoll = f"buffer_load_dword v32, v30, s[36:39], s59 offen {SC}"
    def pub(val, off=0):
        a(f"v_mov_b32 v47, {val}")
        a("s_mov_b64 exec, 1")
        a(f"ds_write_b32 v44, v47 offset:{off}")
        a("s_mov_b64 exec, -1")
    def units(j0, j1, base, win=True):
        L = newlabel("UN")
        a(f"s_mov_b32 s43, {base}")
        a(f"s_mov_b32 s42, {j0}")
        a(L + ":")
        a("s_mul_i32 s41, s46, 40960")
        a("s_add_u32 s41, s41, s57")
        if win: a(f"s_waitcnt vmcnt({P['WWIN']-5})")
        a("s_mov_b32 m0, s43")
        for dl in range(4):
            a(f"buffer_load_dwordx4 v{14+dl}, s[32:35], s41 offen offset:{1024*dl} lds")
        a("s_add_u32 m0, s43, 4096")
        a("s_add_u32 s43, s43, 5120")
        a("buffer_load_dwordx4 v18, s[32:35], s41 offen lds")
        a("s_add_u32 s46, s46, 1")
        a("s_cmp_eq_u32 s46, 28")
        a("s_cselect_b32 s46, 0, s46")
        a("s_add_u32 s42, s42, 1")
        a(f"s_cmp_lt_u32 s42, {j1}")
        a(f"s_cbranch_scc1 {L}")
    a("s_waitcnt vmcnt(32)")
    bar(a, "L", 8)
    a(xpoll)
    def rtouch():
        a(f"s_add_u32 s68, s68, {2*HS}")
        a(f"buffer_load_dword v50, v49, s[36:39], s68 offen {SC}")
        a(f"s_add_u32 s68, s68, {4*HS}")
        a(f"buffer_load_dword v50, v49, s[36:39], s68 offen {SC}")
    if P["RT"] == 1: rtouch()
    units(0, 4, L_X, False)
    a(f"s_waitcnt vmcnt({22 if P['RT'] == 1 else 20})")
    bar(a, "L", 9)
    bdump(a)
    stamp(a, 1)
    a("v_cmp_ne_u32 vcc, s100, v32")
    a("s_cbranch_vccz LW_U")
    a("s_branch LW_P2")
    a.label("LW_POLL")
    poll_global(a, [xpoll], [32])
    units(0, 4, L_X)
    a.label("LW_P2")
    poll_global(a, [xpoll], [32])
    a.label("LW_U")
    for g in range(4):
        a(f"s_mov_b32 m0, {L_U + 1440 + 3072*g}")
        for k in range(3):
            a(f"buffer_load_dwordx4 v{40+k}, s[36:39], s65 offen offset:{1024*k} {SC} lds")
        if g < 3: a("s_add_u32 s65, s65, 655360")
    if P["RT"] == 2:
        a("s_cmp_lt_u32 s14, 28")
        a(f"s_cselect_b32 s68, s68, {OOB}")
        rtouch()
    units(4, 8, SLOT)
    a("s_waitcnt vmcnt(20)"); pub("s100", 4); pub(4)
    units(8, 14, SLOT + 4*5120)
    a("s_waitcnt vmcnt(20)"); pub(10)
    units(14, 16, SLOT + 10*5120)
    spin_ge(a, 46, 48, 1)
    units(16, 20, 0)
    a("s_waitcnt vmcnt(20)"); pub(16)
    units(20, 22, 4*5120)
    a("s_waitcnt vmcnt(0)"); pub(22)
    stamp(a, 2)
    spin_ge(a, 46, 48, 3)
    units(22, 28, SLOT)
    a("s_waitcnt vmcnt(0)"); pub(28)
    if P["LDBG"]:
        a("s_lshl_b32 s22, s2, 6"); a(f"s_add_u32 s22, s22, {WS_PROF + (1<<18)}")
        a("v_lshlrev_b32 v2, 2, v1"); a("s_mov_b64 exec, 0xffff")
        a("buffer_store_dword v100, v2, s[36:39], s22 offen"); a("s_mov_b64 exec, -1")
    prof_flush(a, 3, 36, 12)
    a("s_endpgm")

def mega():
    a = Asm()
    a.label("KSTART")
    setup(a)
    a("s_cmp_eq_u32 s12, 7")
    a("s_cbranch_scc1 M_L")
    a("s_cmp_ge_u32 s12, 4")
    a("s_cbranch_scc1 M_KS")
    G_stub(a)
    a.label("M_KS")
    K_stub(a)
    a.label("M_L")
    emit_L(a)
    a.label("M_K")
    emit_K(a)
    a.label("M_G")
    emit_G(a)
    emit_KC(a)
    a.label("M_END")
    a("s_endpgm")
    return a.finish(True)

if __name__ == "__main__":
    Cfg.PROF = "--noprof" not in sys.argv
    Cfg.CYC = "--cyc" in sys.argv
    for x in sys.argv[2:]:
        if "=" in x:
            k, v = x.split("="); assert k in P, k; P[k] = int(v) if v.lstrip("-").isdigit() else v.replace("_", " ")
    name = "parallel_sum__ssm_conv_s4__dense_activation_gelu__prompt_kernel"
    body = mega()
    code, kd = kernel_text(name, body, 256)
    hdr = f"; @launch grid=(256,1,1) block=(512,1,1) lds={LDS_TOTAL}\n.amdgcn_target \"amdgcn-amd-amdhsa--gfx950\"\n"
    open(sys.argv[1], "w").write(hdr + code + kd)
```

```python
import sys, math
from common import *
from asmlib import Stream, resolve
import kconv

SC = "sc1"
NST = 10; SLOT = 32768; HS = 55296
WS_FL = 26 << 20
FL_R = WS_FL; FL_X = WS_FL + 1024; FL_T = WS_FL + 3072; FL_H = WS_FL + 4096; FL_Y = WS_FL + 8192
FL_P = WS_FL + 16384
OOB = "0x7f000000"
L_K = 98304; L_U = L_K + 3*kconv.KREG; L_X = L_U + kconv.USIZE
L_LN = L_X
L_WF = 163328; L_CS = 163584
LDS_TOTAL = 163840
P = dict(GRS=12, GPRIO=2, LPRIO=3, KPRE=180, KSL=60, KS1=16, KS2=36, YSLEEP=4, CPREF=2, CSLEEP=40, LOCAL=1, WROT=1, XROT=1, PSLEEP=4, WWIN=24, NL=4, LDBG=0, FB=5, YI=12, WG0=9, GK=4, NOWL=0, W1T=0, NOMM=0, LSTR=1, STEND=0, BDBG=0, GDBG=0, UROT=2, UW=4, HFL='sc1', PADTO=0, KPRIO=0, OUTFL='', SPIN_MAX=20000, DBGOUT=0)
_l = [0]
def newlabel(p):
    _l[0] += 1; return f"{p}_{_l[0]}"

def spin_tail(a, again):
    out = newlabel("CT")
    a(f"s_cbranch_vccz {out}")
    a("s_add_u32 s79, s79, 1")
    a(f"s_cmp_lt_u32 s79, {P['SPIN_MAX']}")
    a(f"s_cbranch_scc1 {again}")
    a(out + ":")
def check_tags(a, regs, again):
    a(f"v_cmp_ne_u32 vcc, s100, v{regs[0]}")
    for r in regs[1:]:
        a(f"v_cmp_ne_u32 s[62:63], s100, v{r}")
        a("s_or_b64 vcc, vcc, s[62:63]")
    spin_tail(a, again)
def poll_global(a, loads, regs, preissued=False):
    L = newlabel("PG"); F = newlabel("PF")
    a(f"s_branch {F}")
    a(L + ":")
    a(f"s_sleep {P['PSLEEP']}")
    if not preissued: a(F + ":")
    for l in loads: a(l)
    if preissued: a(F + ":")
    a("s_waitcnt vmcnt(0)")
    check_tags(a, regs, L)
def spin_lds(a, vaddr, vtmp, sval):
    L = newlabel("SL"); O = newlabel("SO")
    a(L + ":")
    a(f"ds_read_b32 v{vtmp}, v{vaddr}")
    a("s_waitcnt lgkmcnt(0)")
    a(f"v_cmp_ne_u32 vcc, {sval}, v{vtmp}")
    a(f"s_cbranch_vccz {O}")
    a("s_sleep 1")
    a("s_add_u32 s79, s79, 1")
    a(f"s_cmp_lt_u32 s79, {10*P['SPIN_MAX']}")
    a(f"s_cbranch_scc1 {L}")
    a(O + ":")
def store1(a, val, soff, v0, fl):
    a(f"v_mov_b32 v{v0}, {val}")
    a(f"v_mov_b32 v{v0+1}, 0")
    a("s_mov_b64 exec, 1")
    a(f"buffer_store_dword v{v0}, v{v0+1}, s[36:39], {soff} offen {fl}")
    a("s_mov_b64 exec, -1")
def arrive(a, srdc, soff, count, flag_soff, v0):
    L = newlabel("AR")
    a(f"v_mov_b32 v{v0}, 1")
    a(f"v_mov_b32 v{v0+1}, 0")
    a("s_mov_b64 exec, 1")
    a(f"buffer_atomic_add v{v0}, v{v0+1}, s[{srdc}:{srdc+3}], {soff} offen sc0 sc1")
    a("s_waitcnt vmcnt(0)")
    if count & (count-1) == 0: a(f"v_and_b32 v{v0}, {count-1}, v{v0}")
    a(f"v_cmp_ne_u32 vcc, {count-1}, v{v0}")
    a(f"s_cbranch_vccnz {L}")
    a(f"v_mov_b32 v{v0}, s100")
    a(f"buffer_store_dword v{v0}, v{v0+1}, s[36:39], {flag_soff} offen {SC}")
    a(L + ":")
    a("s_mov_b64 exec, -1")
def ptr_rest(a):
    a(f"s_add_u32 s8, s6, {FL_R}")
    a("s_addc_u32 s9, s7, 0")
    a("s_load_dword s100, s[8:9], 0")
    srd(a, 36, 6, WS_SIZE)
def tag_ready(a):
    a("s_waitcnt lgkmcnt(0)")
    a("s_mul_i32 s100, s100, 1664525")
    a("s_add_u32 s100, s100, 1013904223")
    a("s_or_b32 s100, s100, 0x100")
def xcc_val(a, d):
    a(f"s_getreg_b32 {d}, hwreg(HW_REG_XCC_ID, 0, 4)")
    a(f"s_add_u32 {d}, {d}, 1")
    a(f"s_xor_b32 {d}, {d}, s100")

bl = {}
def bar(a, who, k=None):
    if P["BDBG"]:
        a("s_memtime s[98:99]"); a("s_waitcnt lgkmcnt(0)")
        if k is None: a("s_sub_u32 m0, s40, 2"); a("v_writelane_b32 v255, s98, m0")
        else: a(f"v_writelane_b32 v255, s98, {k}")
    a("s_barrier")
def bdump(a):
    if not P["BDBG"]: return
    a("s_lshl_b32 s22, s2, 3"); a("s_add_u32 s22, s22, s12"); a("s_lshl_b32 s22, s22, 6"); a(f"s_add_u32 s22, s22, {WS_PROF + (2<<18)}")
    a("v_lshlrev_b32 v254, 2, v1"); a("s_mov_b64 exec, 0xffff")
    a("buffer_store_dword v255, v254, s[36:39], s22 offen"); a("s_mov_b64 exec, -1")
def setup(a):
    a("s_cmp_ge_u32 s2, 256")
    a("s_cbranch_scc1 M_END")
    stamp(a, 0)
    a("s_load_dwordx2 s[6:7], s[0:1], 128")
    a("s_load_dwordx2 s[4:5], s[0:1], 0")
    a("s_load_dwordx8 s[48:55], s[0:1], 80")
    a("s_load_dwordx16 s[60:75], s[0:1], 8")
    a("s_mov_b32 s79, 0")
    a("v_and_b32 v1, 63, v0")
    a("v_lshrrev_b32 v6, 6, v0")
    a("v_readfirstlane_b32 s12, v6")
    a("s_and_b32 s3, s2, 7")
    a("s_lshr_b32 s14, s2, 3")
    a("s_lshl_b32 s101, s3, 5")
    a("s_add_u32 s101, s101, s14")
    a("s_and_b32 s17, s14, 1")
    a("s_lshl_b32 s15, s3, 1")
    a("s_add_u32 s15, s15, s17")
    a("s_lshr_b32 s16, s14, 1")
    a("s_and_b32 s22, s14, 3")
    a("s_lshl_b32 s44, s3, 2")
    a("s_add_u32 s44, s44, s22")
    a("s_lshr_b32 s45, s14, 2")
    a("s_and_b32 s13, s12, 3")

vACC = 16; vCS = 80; vFR = 96; vONE = 160; vGRN = 164; vB1 = 172; vTB = 176
def G_setup(a):
    a("s_lshr_b32 s18, s13, 1")
    a("s_and_b32 s19, s13, 1")
    a("v_and_b32 v10, 15, v1")
    a("v_lshrrev_b32 v11, 4, v1")
    a("v_lshlrev_b32 v12, 1, v10")
    a("s_lshl_b32 s22, s16, 8")
    a("s_lshl_b32 s23, s19, 7")
    a("s_add_u32 s22, s22, s23")
    srd(a, 32, 50, 3456)
    for c in range(4):
        a(f"buffer_load_ushort v{vB1+c}, v12, s[32:35], s22 offen offset:{32*c}")
    if P["W1T"]:
        srd(a, 28, 48, 640*3456)
        a("s_mul_i32 s17, s17, 5")
        a("s_add_u32 s17, s17, s16")
        a(f"s_mul_i32 s22, s3, {P['XROT']}")
        a("s_add_u32 s17, s17, s22")
        a("s_add_u32 s17, s17, s13")
        a("s_add_u32 s17, s17, 2")
        a("s_mul_i32 s22, s17, 6554")
        a("s_lshr_b32 s22, s22, 16")
        a("s_mul_i32 s22, s22, 10")
        a("s_sub_u32 s17, s17, s22")
        a(f"s_mul_i32 s22, s17, {64*3456}")
        a("s_lshl_b32 s23, s16, 8")
        a("s_add_u32 s22, s22, s23")
        a(f"s_cmp_lt_u32 s13, {P['W1T']}")
        a(f"s_cselect_b32 s22, s22, {OOB}")
        a("v_lshrrev_b32 v12, 1, v1")
        a("v_mul_u32_u24 v12, 3456, v12")
        a("v_and_b32 v13, 1, v1")
        a("v_lshl_add_u32 v12, v13, 7, v12")
        a("buffer_load_dword v178, v12, s[28:31], s22 offen")
        a(f"s_add_u32 s22, s22, {32*3456}")
        a("buffer_load_dword v179, v12, s[28:31], s22 offen")
    ptr_rest(a)
    a("v_lshrrev_b32 v12, 2, v1")
    a("v_and_b32 v13, 7, v12")
    a("s_lshl_b32 s22, s19, 2")
    a("v_xor_b32 v13, s22, v13")
    a("v_lshlrev_b32 v13, 5, v13")
    a("v_lshl_add_u32 v13, v12, 8, v13")
    a("v_and_b32 v12, 3, v1")
    a("v_lshl_add_u32 v13, v12, 3, v13")
    a("v_add_u32 v2, 16384, v13")
    for c in range(1, 4): a(f"v_xor_b32 v{2+c}, {32*c}, v2")
    a("v_lshrrev_b32 v12, 1, v10")
    a("v_xor_b32 v12, v12, v11")
    a("v_lshlrev_b32 v12, 4, v12")
    a("v_and_b32 v13, 7, v10")
    a("v_lshl_add_u32 v12, v13, 7, v12")
    a("v_lshrrev_b32 v13, 3, v10")
    a("v_lshl_add_u32 v12, v13, 12, v12")
    a("s_lshl_b32 s22, s18, 13")
    a("v_add_u32 v8, s22, v12")
    a("v_xor_b32 v9, 64, v8")
    a("v_lshlrev_b32 v14, 4, v1")
    a("v_lshlrev_b32 v15, 3, v10")
    a("s_lshl_b32 s60, s15, 10")
    a("s_lshl_b32 s22, s18, 9")
    a("s_add_u32 s60, s60, s22")
    a(f"s_add_u32 s60, s60, {WS_STATS}")
    a("s_add_u32 s62, s60, 65536")
    a("v_and_b32 v13, 31, v1")
    a("v_lshlrev_b32 v13, 2, v13")
    a("s_lshl_b32 s61, s3, 7")
    a(f"s_add_u32 s61, s61, {FL_T}")
    a("v_and_b32 v12, 7, v1")
    a("v_lshlrev_b32 v12, 7, v12")
    a(f"s_mov_b32 s63, {FL_X+1024}")
    for r in range(4): a(f"v_mov_b32 v{vONE+r}, 0x3f803f80")
    tag_ready(a)

def G_loop(a):
    def reads(s):
        t, ks2 = divmod(s, 2)
        off = ((t % 3) % 2)*SLOT
        b = vFR + (s % 2)*32
        L = []
        for c in range(4):
            L.append(f"ds_read_b64_tr_b16 v[{b+4*c}:{b+4*c+1}], v{2+c} offset:{off + ks2*8192}")
            L.append(f"ds_read_b64_tr_b16 v[{b+4*c+2}:{b+4*c+3}], v{2+c} offset:{off + ks2*8192 + 4096}")
            L.append(f"ds_read_b128 v[{b+16+4*c}:{b+16+4*c+3}], v{8+ks2} offset:{off + c*1024}")
        return L
    stamp(a, 2)
    for x in reads(0): a(x)
    for s in range(20):
        t, ks2 = divmod(s, 2)
        b = vFR + (s % 2)*32
        a("s_waitcnt lgkmcnt(0)")
        pre = []
        if ks2 == 1 and t+1 < NST:
            bar(a, "G", t+1)
            if (t+1) % 3 != 1 and t+1 < NST:
                pre = [f"v_xor_b32 v{r}, 0x10000, v{r}" for r in (2, 8, 3, 4, 5, 9)]
        rr = reads(s+1) if s+1 < 20 else []
        if s == P["GRS"]:
            for rt in range(4):
                rr.append(f"buffer_load_dwordx2 v[{vGRN+2*rt}:{vGRN+1+2*rt}], v15, s[36:39], s62 offen offset:{128*rt} {SC}")
            rr.append(f"buffer_load_dword v{vTB}, v13, s[36:39], s61 offen {SC}")
        if s == 19:
            rr.append(f"buffer_load_dword v{vTB+1}, v12, s[36:39], s63 offen {SC}")
        mm = []
        for c in range(4):
            for rt in range(4):
                acc = vACC + (rt*4+c)*4
                C = f"v[{acc}:{acc+3}]" if s else "0"
                mm.append(f"v_mfma_f32_16x16x32_bf16 v[{acc}:{acc+3}], v[{b+4*c}:{b+4*c+3}], v[{b+16+4*rt}:{b+16+4*rt+3}], {C}")
            C = f"v[{vCS+4*c}:{vCS+4*c+3}]" if s else "0"
            mm.append(f"v_mfma_f32_16x16x32_bf16 v[{vCS+4*c}:{vCS+4*c+3}], v[{vONE}:{vONE+3}], v[{b+4*c}:{b+4*c+3}], {C}")
        fill = [pre[i:i+2] for i in range(0, len(pre), 2)] + [[x] for x in rr]
        assert len(fill) <= len(mm)
        for i, x in enumerate(mm):
            a(x)
            if i < len(fill):
                for y in fill[i]: a(y)
    stamp(a, 3)
    bdump(a)

def gsig(a):
    a("s_lshl_b32 s22, s13, 2")
    a(f"s_add_u32 s22, s22, {L_WF+8}")
    a("v_mov_b32 v250, s22")
    a("v_mov_b32 v251, s100")
    a("s_mov_b64 exec, 1")
    a("ds_write_b32 v250, v251")
    a("s_mov_b64 exec, -1")
def G_gelu(a):
    vA = 96; vB = 104; vK = 112; vT = 124; vO = 132; late = []
    a("s_mov_b32 s65, 0xffff0000")
    a("v_cmp_gt_u32 s[70:71], 16, v1")
    a("s_mov_b32 s66, 0x01000100")
    for rt in range(4):
        g = vGRN+2*rt
        a(f"v_perm_b32 v{vB+2*rt}, v{g}, v{g}, s66")
        a(f"v_xor_b32 v{vB+2*rt}, 0x80008000, v{vB+2*rt}")
        a(f"v_lshrrev_b32 v{vB+2*rt+1}, 16, v{g}")
    for c in range(4):
        cs = vCS+4*c
        a(f"v_cvt_pk_bf16_f32 v{cs+1}, v{cs}, v{cs}")
        a(f"v_and_b32 v{cs+1}, s65, v{cs+1}")
        a(f"v_sub_f32 v{cs+1}, v{cs}, v{cs+1}")
        a(f"v_cvt_pk_bf16_f32 v{cs+2}, v{cs}, v{cs+1}")
        a(f"v_cndmask_b32 v{vA+2*c}, 0, v{cs+2}, s[70:71]")
        a(f"v_cndmask_b32 v{vA+2*c+1}, 0, v{vB1+c}, s[70:71]")
    for rt in range(4):
        for c in range(4):
            acc = vACC + (rt*4+c)*4
            a(f"v_mfma_f32_16x16x16_bf16 v[{acc}:{acc+3}], v[{vA+2*c}:{vA+2*c+1}], v[{vB+2*rt}:{vB+2*rt+1}], v[{acc}:{acc+3}]")
        g = vGRN+2*rt; k = vK+3*rt
        a(f"v_and_b32 v{k+2}, s65, v{g}")
        a(f"v_rcp_f32 v{k}, v{k+2}")
        a(f"v_mul_f32 v{k+1}, v{k}, v{k}")
        a(f"v_mul_f32 v{k+1}, v{k+1}, v{k}")
        a(f"v_mul_f32 v{k+1}, {f32bits(GELU_K2)}, v{k+1}")
        a(f"v_mul_f32 v{k}, {f32bits(GELU_K1)}, v{k}")
    a("s_lshl_b32 s66, s15, 3")
    a("s_lshl_b32 s67, s18, 2")
    a("s_add_u32 s66, s66, s67")
    a(f"s_mul_i32 s66, s66, {HS}")
    a("s_lshl_b32 s67, s16, 12")
    a("s_add_u32 s66, s66, s67")
    a("s_lshl_b32 s67, s19, 11")
    a("s_add_u32 s66, s66, s67")
    a("s_cmp_lg_u32 s69, 0")
    a(f"s_cselect_b32 s67, s66, {OOB}")
    a(f"s_cselect_b32 s66, {OOB}, s66")
    for rt in range(4):
        k = vK+3*rt
        for p in range(2):
            accs = [vACC + (rt*4+2*p)*4 + r for r in range(8)]
            ts = [vT + r for r in range(8)]
            for x, t in zip(accs, ts): a(f"v_mul_f32 v{t}, v{x}, v{x}")
            for x, t in zip(accs, ts): a(f"v_fma_f32 v{t}, v{t}, v{k+1}, v{k}")
            for x, t in zip(accs, ts): a(f"v_mul_f32 v{t}, v{x}, v{t}")
            for x, t in zip(accs, ts): a(f"v_exp_f32 v{t}, v{t}")
            for x, t in zip(accs, ts): a(f"v_fma_f32 v{t}, v{t}, v{k+2}, v{k+2}")
            for x, t in zip(accs, ts): a(f"v_rcp_f32 v{t}, v{t}")
            for x, t in zip(accs, ts): a(f"v_mul_f32 v{x}, v{x}, v{t}")
            o = vO + 4*p if not P["STEND"] else 180 + 8*rt + 4*p
            for i in range(4): a(f"v_cvt_pk_bf16_f32 v{o+i}, v{accs[2*i]}, v{accs[2*i+1]}")
            def stores(rt=rt, p=p, o=o):
                a(f"buffer_store_dwordx4 v[{o}:{o+3}], v14, s[36:39], s66 offen offset:{1024*p}")
                a(f"buffer_store_dwordx4 v[{o}:{o+3}], v14, s[36:39], s67 offen offset:{1024*p} {SC}")
                if p == 1 and rt < 3: a(f"s_add_u32 s66, s66, {HS}"); a(f"s_add_u32 s67, s67, {HS}")
            if P["STEND"]: late.append(stores)
            else: stores()
            if rt*2 + p + 1 == P["GK"]: gsig(a)
            k2 = rt*2 + p - P["WG0"]
            if 0 <= k2 < 4:
                st = Stream(); issue_w(st, k2); resolve(st.items, a)
    for f in late: f()
    if P["WG0"] == 8:
        st = Stream()
        for i in range(4): issue_w(st, i)
        resolve(st.items, a)

vW = 160; vH = 96
def g2_rot(a):
    if P["LSTR"] == 2:
        a("s_and_b32 s46, s44, 1")
        a("s_and_b32 s22, s44, 2")
        a("s_lshl_b32 s22, s22, 2")
        a("s_add_u32 s46, s46, s22")
        a("s_lshl_b32 s46, s46, 1")
    else:
        a("s_and_b32 s46, s44, 3")
        a("s_mul_i32 s46, s46, 7")
    a(f"s_mul_i32 s22, s3, {P['WROT']}")
    a("s_add_u32 s46, s46, s22")
    a("s_lshr_b32 s46, s46, 1")
    a("s_mul_i32 s22, s46, 4682")
    a("s_lshr_b32 s22, s22, 16")
    a("s_mul_i32 s22, s22, 14")
    a("s_sub_u32 s46, s46, s22")
    a(f"s_mul_i32 s57, s45, {5*HS}")
    a(f"s_add_u32 s57, s57, {WS_W2P}")
def g2_addr(a):
    a("v_lshlrev_b32 v2, 4, v1")
    for dl in range(1, 5): a(f"v_add_u32 v{2+dl}, {dl*HS}, v2")
    for li in range(4):
        a(f"s_add_u32 s22, s13, {li}")
        a("s_and_b32 s22, s22, 3")
        a(f"s_mul_i32 s22, s22, {HS}")
        a(f"v_add_u32 v{7+li}, s22, v2")
    g2_rot(a)
    a("s_mov_b32 s47, s46")
    a("s_mul_i32 s22, s13, 14336")
    a(f"s_mul_i32 s56, s44, {4*HS}")
    a("s_add_u32 s56, s56, s22")
    a("s_add_u32 s57, s57, s22")
    a("s_cmp_eq_u32 s13, 3")
    a("s_cselect_b32 s64, 12, 14")
def adv(a, s):
    a(f"s_add_u32 {s}, {s}, 1")
    a(f"s_cmp_eq_u32 {s}, 14")
    a(f"s_cselect_b32 {s}, 0, {s}")
def issue_w(a, i):
    b = vW + (i % 4)*20
    a("s_lshl_b32 s23, s47, 10")
    a("s_add_u32 s23, s23, s57")
    a("s_cmp_lt_u32 s47, s64")
    a(f"s_cselect_b32 s23, s23, {OOB}")
    for dl in range(5):
        a(f"buffer_load_dwordx4 v[{b+4*dl}:{b+3+4*dl}], v{2+dl}, s[36:39], s23 offen {SC}", tag=("k", i))
    adv(a, "s47")
def issue_h(a, i):
    b = vH + (i % 4)*16
    a("s_lshl_b32 s22, s46, 10")
    a("s_add_u32 s22, s22, s56")
    a("s_cmp_lt_u32 s46, s64")
    a(f"s_cselect_b32 s22, s22, {OOB}")
    for li in range(4):
        a(f"buffer_load_dwordx4 v[{b+4*li}:{b+3+4*li}], v{7+li}, s[36:39], s22 offen {P['HFL']}", tag=("k", i))
    adv(a, "s46")

gl = [0]
def glog(a):
    if not P["GDBG"]: return
    a("s_memrealtime s[76:77]"); a("s_waitcnt lgkmcnt(0)"); a(f"v_writelane_b32 v255, s76, {gl[0]}"); gl[0] += 1
def G2(a):
    NL = P["NL"]
    glog(a)
    g2_addr(a)
    a("v_and_b32 v13, 7, v1")
    a("v_lshlrev_b32 v13, 7, v13")
    a(f"s_mov_b32 s59, {FL_X+1024}")
    poll_global(a, [f"buffer_load_dword v15, v13, s[36:39], s59 offen {SC}"], [15])
    glog(a)
    st = Stream()
    for i in range(4): issue_w(st, i)
    resolve(st.items, a)
    glog(a)
    a.label("G2B")
    a("s_load_dwordx4 s[8:11], s[0:1], 104")
    a("s_load_dwordx2 s[4:5], s[0:1], 0")
    a("v_min_u32 v96, 26, v1")
    a("v_lshlrev_b32 v96, 2, v96")
    a("s_lshl_b32 s59, s44, 7")
    a(f"s_add_u32 s59, s59, {FL_H}")
    hp = f"buffer_load_dword v15, v96, s[36:39], s59 offen {SC}"
    a(hp)
    a("s_waitcnt lgkmcnt(0)")
    srd(a, 48, 10, 2048*1280)
    srd(a, 52, 8, 1280)
    srd(a, 24, 4, 2048*1280)
    st = Stream()
    for k in range(3):
        st(f"v_add_u32 v11, {64*k}, v1")
        st("v_mul_u32_u24 v12, 6554, v11")
        st("v_lshrrev_b32 v12, 16, v12")
        st(f"v_mul_u32_u24 v{240+k}, {1280-160}, v12")
        st(f"v_lshl_add_u32 v{240+k}, v11, 4, v{240+k}")
    st("s_lshl_b32 s58, s44, 2")
    st("s_add_u32 s58, s58, s13")
    st("s_mul_i32 s58, s58, 20480")
    st("s_mul_i32 s22, s45, 160")
    st("s_add_u32 s58, s58, s22")
    st("v_mov_b32 v254, 0")
    st("s_lshl_b32 s73, s45, 7")
    st(f"s_add_u32 s73, s73, {FL_Y}")
    st("v_lshrrev_b32 v11, 3, v1")
    st("v_lshlrev_b32 v11, 12, v11")
    st("v_and_b32 v12, 7, v1")
    st("v_lshl_add_u32 v11, v12, 4, v11")
    st("s_lshl_b32 s61, s45, 2")
    st("s_add_u32 s61, s61, s13")
    st(f"s_mul_i32 s61, s61, {20*4096}")
    st("s_lshl_b32 s23, s44, 7")
    st("s_add_u32 s61, s61, s23")
    st(f"s_add_u32 s61, s61, {WS_AT}")
    st("v_lshrrev_b32 v12, 4, v1")
    st("v_lshlrev_b32 v14, 3, v12")
    st("s_mul_i32 s22, s13, 15360")
    st(f"s_add_u32 s22, s22, {SLOT}")
    st("v_add_u32 v250, s22, v2")
    st("s_mul_i32 s60, s13, 5120")
    st(f"s_add_u32 s60, s60, {L_X}")
    st("v_add_u32 v253, s60, v2")
    st(f"v_mov_b32 v251, {L_WF}")
    st("v_and_b32 v13, 15, v1")
    st("v_mul_u32_u24 v13, 160, v13")
    st("v_add3_u32 v13, v13, v14, s60")
    st("v_and_b32 v248, 3, v1")
    st("v_lshlrev_b32 v248, 3, v248")
    st("s_lshl_b32 s22, s13, 5")
    st(f"s_add_u32 s22, s22, {L_X + 2560}")
    st("v_add_u32 v248, s22, v248")
    for dl in range(5):
        st("v_lshrrev_b32 v249, 2, v1")
        st(f"v_add_u32 v249, {16*dl}, v249")
        st("v_mul_u32_u24 v252, 3277, v249")
        st("v_lshrrev_b32 v252, 16, v252")
        st(f"v_mul_u32_u24 v252, {5120-2560}, v252")
        st("v_lshl_add_u32 v252, v249, 7, v252")
        st(f"v_add_u32 v{243+dl}, v252, v248")
    resolve(st.items, a)
    old, P["PSLEEP"] = P["PSLEEP"], 1
    poll_global(a, [hp], [15], preissued=True)
    P["PSLEEP"] = old
    glog(a)
    vB2 = 128
    st = Stream()
    for i in range(4): issue_h(st, i)
    stamp(st, 6)
    def step(st, i):
        bw = vW + (i % 4)*20; bh = vH + (i % 4)*16
        st.wait("vm", ("k", i))
        st.wait("lg", ("kl", i))
        glog(st)
        order = [(dl, li) for dl in range(5) for li in range(4)] if i < 13 else [(dl, li) for li in (1, 2, 3, 0) for dl in range(5)]
        for dl, li in (order if not (P["NOMM"] and i) else order[:2]):
            c = vACC + (li*5+dl)*4
            C = f"v[{c}:{c+3}]" if i else "0"
            st(f"v_mfma_f32_16x16x32_bf16 v[{c}:{c+3}], v[{bw+4*dl}:{bw+3+4*dl}], v[{bh+4*li}:{bh+3+4*li}], {C}")
        if i + 4 < 14:
            issue_h(st, i + 4)
            LS = P["LSTR"]
            if i % LS == 0 and i//LS < NL:
                jj = i//LS
                if i == 0: spin_lds(st, 251, 252, "s100")
                for dl in range(5):
                    if i == 0: st(f"ds_read_b128 v[{bw+4*dl}:{bw+3+4*dl}], v253 offset:{dl*1024}", tag=("kl", i+4))
                    else: st(f"ds_read_b128 v[{bw+4*dl}:{bw+3+4*dl}], v250 offset:{(jj-1)*5120 + dl*1024}", tag=("kl", i+4))
                adv(st, "s47")
            elif not P["NOWL"]:
                issue_w(st, i + 4)
    ypoll = f"buffer_load_dword v252, v254, s[36:39], s73 offen {SC}"
    YI = P["YI"]
    for i in range(YI+1):
        step(st, i)
        if i == 9:
            st(ypoll, tag="y")
            for k in range(3):
                if k == 2: st("s_mov_b32 exec_hi, 0")
                st(f"s_add_u32 m0, s60, {1024*k}")
                st("s_nop 0")
                st(f"buffer_load_dwordx4 v{240+k}, s[24:27], s58 offen lds", tag="x")
            st("s_mov_b64 exec, -1")
        if i == 10:
            st("s_mul_i32 s22, s45, 160")
            for dl in range(5):
                st(f"buffer_load_dwordx2 v[{vB2+2*dl}:{vB2+1+2*dl}], v14, s[52:55], s22 offen offset:{32*dl}", tag="b2")
    st.wait("vm", "y")
    resolve(st.items, a)
    def at_loads(o):
        for k in range(3):
            if k == 2: o("s_mov_b32 exec_hi, 0")
            o(f"s_add_u32 m0, s60, {2560 + 1024*k}")
            o("s_nop 0")
            o(f"buffer_load_dwordx4 v11, s[36:39], s61 offen {SC} lds")
            if k < 2: o("s_add_u32 s61, s61, 32768")
        o("s_mov_b64 exec, -1")
    a("s_mov_b32 s65, 0")
    a("v_cmp_ne_u32 vcc, s100, v252")
    a("s_cbranch_vccnz Y_LATE")
    at_loads(a)
    a("s_mov_b32 s65, 1")
    a.label("Y_LATE")
    st = Stream()
    stamp(st, 7)
    for i in range(YI+1, 14): step(st, i)
    for li in range(1, 4):
        for dl in range(5):
            c = vACC + (li*5+dl)*4
            st(f"ds_write_b128 v250, v[{c}:{c+3}] offset:{((li-1)*5+dl)*1024}")
    resolve(st.items, a)
    a("s_cmp_eq_u32 s65, 1")
    a("s_cbranch_scc1 Y_OK")
    poll_global(a, [ypoll], [252])
    at_loads(a)
    a.label("Y_OK")
    st = Stream()
    st("s_mov_b32 s59, 0xffff0000")
    def unpack_add(acc, src):
        st(f"v_lshlrev_b32 v160, 16, v{src}")
        st(f"v_and_b32 v161, s59, v{src}")
        st(f"v_lshlrev_b32 v162, 16, v{src+1}")
        st(f"v_and_b32 v163, s59, v{src+1}")
        for r in range(4): st(f"v_add_f32 v{acc+r}, v{acc+r}, v{160+r}")
    st("s_waitcnt vmcnt(3)")
    for dl in range(5):
        st(f"ds_read_b64 v[{96+2*dl}:{97+2*dl}], v13 offset:{32*dl}", tag=("xr", dl))
    for li in range(1, 4):
        st(f"s_sub_u32 s22, s13, {li}")
        st("s_and_b32 s22, s22, 3")
        st("s_mul_i32 s22, s22, 15360")
        st(f"s_add_u32 s22, s22, {SLOT + (li-1)*5120}")
        st(f"v_add_u32 v{6+li}, s22, v2")
    for dl in range(5): unpack_add(vACC+4*dl, vB2+2*dl)
    for dl in range(5):
        st.wait("lg", ("xr", dl))
        unpack_add(vACC+4*dl, 96+2*dl)
    st("s_waitcnt vmcnt(0) lgkmcnt(0)")
    st("s_barrier")
    stamp(st, 8)
    RB = 36
    for dl in range(5):
        st(f"ds_read_b64_tr_b16 v[{110+2*dl}:{111+2*dl}], v{243+dl}", tag=("r", dl))
        for li in range(1, 4):
            k = dl*3 + li-1
            st(f"ds_read_b128 v[{RB+4*k}:{RB+3+4*k}], v{6+li} offset:{dl*1024}", tag=("r", dl))
    for dl in range(5):
        c = vACC + dl*4
        st.wait("lg", ("r", dl))
        k = dl*3
        for r in range(4): st(f"v_add_f32 v{RB+4*k+r}, v{RB+4*k+r}, v{RB+4*k+4+r}")
        for r in range(4): st(f"v_add_f32 v{c+r}, v{c+r}, v{RB+4*k+8+r}")
        unpack_add(c, 110+2*dl)
        for r in range(4): st(f"v_add_f32 v{c+r}, v{c+r}, v{RB+4*k+r}")
        st(f"v_cvt_pk_bf16_f32 v{120+2*dl}, v{c}, v{c+1}")
        st(f"v_cvt_pk_bf16_f32 v{121+2*dl}, v{c+2}, v{c+3}")
        st(f"ds_write_b64 v13, v[{120+2*dl}:{121+2*dl}] offset:{32*dl}")
    for k in range(3):
        st(f"ds_read_b128 v[{164+4*k}:{167+4*k}], v253 offset:{1024*k}", tag=("o", k))
    for k in range(3):
        st.wait("lg", ("o", k))
        if k == 2: st("s_mov_b32 exec_hi, 0")
        st(f"buffer_store_dwordx4 v[{164+4*k}:{167+4*k}], v{240+k}, s[48:51], s58 offen {P['OUTFL']}")
    st("s_mov_b64 exec, -1")
    if Cfg.PROF: st.waitall("vm")
    stamp(st, 9)
    resolve(st.items, a)
    a("s_or_b32 s22, s2, s12")
    a("s_cmp_lg_u32 s22, 0")
    a("s_cbranch_scc1 G_NOR")
    a("v_and_b32 v3, 7, v1")
    a("v_lshlrev_b32 v3, 7, v3")
    a(f"s_mov_b32 s59, {FL_Y}")
    poll_global(a, [f"buffer_load_dword v4, v3, s[36:39], s59 offen {SC}"], [4])
    a(f"s_mov_b32 s22, {FL_R}")
    store1(a, "s100", "s22", 4, SC)
    if P["PADTO"]:
        a.label("PADL")
        a("s_memrealtime s[76:77]"); a("s_waitcnt lgkmcnt(0)")
        a("s_sub_u32 s76, s76, s80"); a(f"s_cmp_lt_u32 s76, {P['PADTO']*100}"); a("s_cbranch_scc1 PADL")
    a.label("G_NOR")
    if P["GDBG"]:
        a("s_lshl_b32 s22, s2, 2"); a("s_add_u32 s22, s22, s13"); a("s_lshl_b32 s22, s22, 7"); a(f"s_add_u32 s22, s22, {WS_PROF + (2<<18)}")
        a("v_lshlrev_b32 v2, 2, v1"); a("s_mov_b32 exec_hi, 0")
        a("buffer_store_dword v255, v2, s[36:39], s22 offen"); a("s_mov_b64 exec, -1")
    prof_flush(a, 10, 36, 12)
    if P["DBGOUT"]:
        a("s_cmp_lg_u32 s2, 9"); a("s_cbranch_scc1 DBG_E")
        a("s_cmp_lg_u32 s12, 0"); a("s_cbranch_scc1 DBG_E")
        a("s_load_dwordx2 s[8:9], s[0:1], 120"); a("s_waitcnt lgkmcnt(0)")
        srd(a, 40, 8, 256)
        a("v_mov_b32 v1, 0"); a("s_mov_b64 exec, 1")
        for i, slot in zip(range(1, 10), [1, 2, 3, 5, 6, 7, 9, 10, 11]):
            a(f"s_sub_u32 s22, s{80+2*i}, s80"); a("v_mov_b32 v2, s22")
            a(f"buffer_store_dword v2, v1, s[40:43], 0 offen offset:{4*slot}")
        a.label("DBG_E")
    a("s_endpgm")

vR = 200; vT = 212
def G_stub(a):
    a("v_lshrrev_b32 v6, 5, v1")
    a("v_and_b32 v7, 31, v1")
    a("v_mul_u32_u24 v2, 1280, v6")
    a("v_lshl_add_u32 v2, v7, 3, v2")
    a("s_mul_i32 s22, s101, 10240")
    a("s_mul_i32 s23, s13, 2560")
    a("s_add_u32 s22, s22, s23")
    a("s_waitcnt lgkmcnt(0)")
    srd(a, 24, 4, 2048*1280)
    for k in range(5):
        a(f"buffer_load_dwordx2 v[{vR+2*k}:{vR+1+2*k}], v2, s[24:27], s22 offen offset:{256*k}")
    a("s_cmp_lt_u32 s14, 28")
    a("s_cbranch_scc1 M_G")
    a("s_branch M_CS")
def LN1(a, younger):
    a(f"v_mov_b32 v{vT+8}, 0x3f803f80")
    a(f"v_mov_b32 v{vT+9}, 0xffff0000")
    for k in range(4): a(f"v_mov_b32 v{vT+k}, 0")
    a("s_mul_i32 s22, s13, 2688")
    a(f"s_add_u32 s22, s22, {L_LN}")
    a(f"v_mul_u32_u24 v{vT+14}, 1344, v6")
    a(f"v_lshl_add_u32 v{vT+14}, v7, 3, v{vT+14}")
    a(f"v_add_u32 v{vT+14}, s22, v{vT+14}")
    a(f"v_lshlrev_b32 v{vT+15}, 3, v6")
    a("s_lshl_b32 s22, s101, 6")
    a("s_lshl_b32 s23, s13, 4")
    a("s_add_u32 s22, s22, s23")
    a(f"s_add_u32 s22, s22, {WS_STATS}")
    a("s_add_u32 s23, s22, 65536")
    a(f"s_waitcnt vmcnt({younger})")
    for k in range(10):
        a(f"v_dot2_f32_bf16 v{vT+(k&1)}, v{vR+k}, v{vT+8}, v{vT+(k&1)}")
        a(f"v_dot2_f32_bf16 v{vT+2+(k&1)}, v{vR+k}, v{vR+k}, v{vT+2+(k&1)}")
    m = vT; q = vT+2
    a(f"v_add_f32 v{m}, v{m}, v{m+1}")
    a(f"v_add_f32 v{q}, v{q}, v{q+1}")
    for dpp in ("quad_perm:[1,0,3,2]", "quad_perm:[2,3,0,1]", "row_half_mirror", "row_mirror"):
        a(f"v_add_f32_dpp v{m}, v{m}, v{m} {dpp} row_mask:0xf bank_mask:0xf")
        a(f"v_add_f32_dpp v{q}, v{q}, v{q} {dpp} row_mask:0xf bank_mask:0xf")
    a(f"v_mov_b32 v{m+1}, v{m}")
    a(f"v_mov_b32 v{q+1}, v{q}")
    a(f"v_permlane16_swap_b32 v{m}, v{m+1}")
    a(f"v_permlane16_swap_b32 v{q}, v{q+1}")
    a(f"v_add_f32 v{m}, v{m}, v{m+1}")
    a(f"v_add_f32 v{q}, v{q}, v{q+1}")
    def rbf(r):
        a(f"v_cvt_pk_bf16_f32 v{r}, v{r}, v{r}")
        a(f"v_lshlrev_b32 v{r}, 16, v{r}")
    a(f"v_mul_f32 v{m}, {f32bits(1/640.)}, v{m}")
    a(f"v_mul_f32 v{q}, {f32bits(1/640.)}, v{q}")
    a(f"v_fma_f32 v{q}, -v{m}, v{m}, v{q}")
    a(f"v_max_f32 v{q}, 0, v{q}")
    rbf(q)
    a(f"v_add_f32 v{q}, {f32bits(1e-5)}, v{q}")
    rbf(q)
    a(f"v_sqrt_f32 v{q}, v{q}")
    a(f"v_mov_b32 v{vT+5}, s100")
    a(f"v_cvt_pk_bf16_f32 v{vT+4}, v{m}, v{q}")
    a("s_mov_b32 exec_lo, 1")
    a("s_mov_b32 exec_hi, 1")
    a(f"buffer_store_dwordx2 v[{vT+4}:{vT+5}], v{vT+15}, s[36:39], s22 offen {SC}")
    a(f"buffer_store_dwordx2 v[{vT+4}:{vT+5}], v{vT+15}, s[36:39], s23 offen")
    a("s_mov_b64 exec, -1")
    a(f"v_and_b32 v{q}, v{vT+9}, v{vT+4}")
    a(f"v_lshlrev_b32 v{m}, 16, v{vT+4}")
    a(f"v_rcp_f32 v{q}, v{q}")
    for k2 in range(5):
        xs = [vR+2*k2, vR+2*k2+1]; ts = [(vT+10, vT+11), (vT+12, vT+13)]
        def two(fmt):
            for x, (t0, t1) in zip(xs, ts): a(fmt.format(x=x, t0=t0, t1=t1, m=m, q=q, k=vT+9))
        two("v_lshlrev_b32 v{t0}, 16, v{x}")
        two("v_and_b32 v{t1}, v{k}, v{x}")
        two("v_sub_f32 v{t0}, v{t0}, v{m}")
        two("v_sub_f32 v{t1}, v{t1}, v{m}")
        two("v_cvt_pk_bf16_f32 v{x}, v{t0}, v{t1}")
        two("v_lshlrev_b32 v{t0}, 16, v{x}")
        two("v_and_b32 v{t1}, v{k}, v{x}")
        two("v_mul_f32 v{t0}, v{t0}, v{q}")
        two("v_mul_f32 v{t1}, v{t1}, v{q}")
        two("v_cvt_pk_bf16_f32 v{x}, v{t0}, v{t1}")
        a(f"ds_write_b64 v{vT+14}, v[{xs[0]}:{xs[1]}] offset:{256*k2}")
    a("s_waitcnt lgkmcnt(0)")
def LN2_pre(a, vb):
    a(f"v_bfe_u32 v{vb}, v1, 2, 2")
    a(f"v_mul_u32_u24 v{vb+1}, 1344, v{vb}")
    a(f"v_lshrrev_b32 v{vb}, 4, v1")
    a(f"v_lshl_add_u32 v{vb+1}, v{vb}, 5, v{vb+1}")
    a(f"v_and_b32 v{vb}, 3, v1")
    a(f"v_lshl_add_u32 v{vb+1}, v{vb}, 3, v{vb+1}")
    a("s_mul_i32 s22, s13, 640")
    a(f"s_add_u32 s22, s22, {L_LN}")
    a(f"v_add_u32 v{vb+1}, s22, v{vb+1}")
    a(f"v_lshlrev_b32 v{vb+2}, 4, v1")
    a(f"v_add_u32 v{vb+3}, 4096, v{vb+2}")
    a("s_mul_i32 s43, s101, 10240")
    a("s_mul_i32 s22, s13, 5120")
    a("s_add_u32 s43, s43, s22")
    a(f"s_add_u32 s43, s43, {WS_XNT}")
    a("s_cmp_lt_u32 s13, 2")
    a(f"s_cselect_b32 s43, s43, {OOB}")
def LN2_rd(a, vb):
    for c in range(5):
        b = vb+4+4*c
        a(f"ds_read_b64_tr_b16 v[{b}:{b+1}], v{vb+1} offset:{c*128}")
        a(f"ds_read_b64_tr_b16 v[{b+2}:{b+3}], v{vb+1} offset:{c*128+4*1344}")
def LN2_st(vb):
    return [f"buffer_store_dwordx4 v[{vb+4+4*c}:{vb+7+4*c}], v{vb+2+c//4}, s[36:39], s43 offen offset:{1024*(c%4)} {SC}" for c in range(5)]
def p_signal(a, sidx, off, v0):
    a("s_lshl_b32 s22, s3, 10")
    a(f"s_lshl_b32 s23, {sidx}, 2")
    a("s_add_u32 s22, s22, s23")
    a(f"s_add_u32 s22, s22, {FL_P + off}")
    a("s_add_u32 s23, s22, 8192")
    a(f"v_mov_b32 v{v0}, s100")
    a(f"v_mov_b32 v{v0+1}, 0")
    a("s_mov_b64 exec, 1")
    a("s_waitcnt vmcnt(0)")
    a(f"buffer_store_dword v{v0}, v{v0+1}, s[36:39], s22 offen")
    a(f"buffer_store_dword v{v0}, v{v0+1}, s[36:39], s23 offen {SC}")
    a("s_mov_b64 exec, -1")
def leader(a, off, n4, gflag, v0, sleep=2):
    L = newlabel("LD")
    a(f"v_min_u32 v{v0}, {n4-1}, v1")
    a(f"v_lshlrev_b32 v{v0}, 4, v{v0}")
    a("s_lshl_b32 s20, s3, 10")
    a(f"s_add_u32 s20, s20, {FL_P + off}")
    a("s_mov_b32 s21, 0")
    a(L + ":")
    a(f"s_sleep {sleep}")
    a("s_add_u32 s21, s21, 1")
    a("s_and_b32 s22, s21, 31")
    a("s_cmp_eq_u32 s22, 0")
    a("s_cselect_b32 s22, 8192, 0")
    a("s_add_u32 s22, s22, s20")
    a(f"buffer_load_dwordx4 v[{v0+2}:{v0+5}], v{v0}, s[36:39], s22 offen {SC}")
    a("s_waitcnt vmcnt(0)")
    check_tags(a, [v0+2, v0+3, v0+4, v0+5], L)
    a("s_lshl_b32 s22, s3, 7")
    a(f"s_add_u32 s22, s22, {gflag}")
    store1(a, "s100", "s22", v0, SC)

def C_stub(a):
    st = Stream()
    srd(st, 40, 52, 1728*1280)
    st("s_lshl_b32 s18, s44, 2")
    st("s_add_u32 s18, s18, s13")
    st("s_mul_i32 s19, s13, 20480")
    st("v_lshrrev_b32 v8, 3, v1")
    st("v_and_b32 v9, 7, v1")
    st("v_mul_u32_u24 v8, 1280, v8")
    st("v_lshl_add_u32 v8, v9, 4, v8")
    NB = 5
    st("s_lshr_b32 s21, s18, 1")
    st("s_and_b32 s20, s18, 1")
    st("s_mul_i32 s22, s20, 640")
    st("s_mul_i32 s23, s21, 40960")
    st("s_add_u32 s22, s22, s23")
    for k in range(4):
        for i in range(NB):
            st(f"s_add_u32 m0, s19, {i*4096 + k*1024 - 128*i}")
            st("s_nop 0")
            st(f"buffer_load_dwordx4 v8, s[40:43], s22 offen offset:{128*i} lds")
        if k < 3: st("s_add_u32 s22, s22, 10240")
    st(f"s_mul_i32 s64, s20, {20*HS}")
    st("s_lshl_b32 s23, s21, 10")
    st("s_add_u32 s64, s64, s23")
    st(f"s_add_u32 s64, s64, {WS_W2P}")
    st("s_cmp_lt_u32 s21, 54")
    st(f"s_cselect_b32 s64, s64, {OOB}")
    for i in range(1, NB): st(f"s_add_u32 s{64+i}, s64, {i*4*HS}")
    resolve(st.items, a)
    a("s_branch GC")
def C_work(a):
    st = Stream()
    NB = 5
    ptr_rest(st)
    st("v_lshrrev_b32 v9, 2, v1")
    st("v_lshlrev_b32 v10, 7, v9")
    st("v_and_b32 v9, 3, v1")
    st("v_lshl_add_u32 v10, v9, 3, v10")
    st("v_add_u32 v10, s19, v10")
    st("v_lshlrev_b32 v12, 4, v1")
    for dl in range(1, 4): st(f"v_add_u32 v{12+dl}, {dl*HS}, v12")
    tag_ready(st)
    LN1(st, 20)
    st("s_barrier")
    for i in range(NB):
        st.wait("vm", ("wl", i))
        b = 16 + i*16
        for dl in range(4):
            st(f"ds_read_b64_tr_b16 v[{b+4*dl}:{b+4*dl+1}], v10 offset:{i*4096 + 32*dl}", tag=("wr", i, dl))
            st(f"ds_read_b64_tr_b16 v[{b+4*dl+2}:{b+4*dl+3}], v10 offset:{i*4096 + 32*dl + 2048}", tag=("wr", i, dl))
        for dl in range(4):
            st.wait("lg", ("wr", i, dl))
            st(f"buffer_store_dwordx4 v[{b+4*dl}:{b+4*dl+3}], v{12+dl}, s[36:39], s{64+i} offen {SC}")
    stamp(st, 1)
    resolve(st.items, a, vmq=[("wl", i) for k in range(4) for i in range(NB)])
    a("s_and_b32 s21, s18, 15")
    p_signal(a, "s21", 256, 204)
    stamp(a, 2)

def emit_G(a):
    a(f"s_setprio {P['GPRIO']}")
    G_setup(a)
    LN1(a, 6 if P['W1T'] else 4)
    stamp(a, 1)
    bar(a, "G", 0)
    a("s_lshl_b32 s22, s16, 1")
    a("s_add_u32 s22, s22, s19")
    a("s_cmp_eq_u32 s22, 27")
    a("s_cbranch_scc1 G_SKIP")
    G_loop(a)
    poll_global(a, [f"buffer_load_dwordx2 v[{vGRN+2*rt}:{vGRN+1+2*rt}], v15, s[36:39], s60 offen offset:{128*rt} {SC}" for rt in range(4)],
                [vGRN+1, vGRN+3, vGRN+5, vGRN+7], preissued=True)
    xcc_val(a, "s22")
    a(f"v_cmp_ne_u32 vcc, s22, v{vTB}")
    a("s_or_b32 s69, vcc_lo, vcc_hi")
    if not P["LOCAL"]: a("s_mov_b32 s69, 1")
    g2_addr(a)
    a(f"v_cmp_ne_u32 vcc, s100, v{vTB+1}")
    a("s_or_b32 s72, vcc_lo, vcc_hi")
    if P["WG0"] > 8: a("s_mov_b32 s72, 1")
    a("s_cmp_lg_u32 s72, 0")
    a("s_cselect_b32 s64, 0, s64")
    G_gelu(a)
    stamp(a, 4)
    a("s_lshl_b32 s22, s15, 1")
    a("s_add_u32 s22, s22, s18")
    a("s_lshl_b32 s22, s22, 7")
    a("s_lshl_b32 s23, s16, 1")
    a("s_add_u32 s23, s23, s19")
    a("s_lshl_b32 s23, s23, 2")
    a("s_add_u32 s22, s22, s23")
    a(f"s_add_u32 s68, s22, {FL_H}")
    a("s_cmp_lg_u32 s69, 0")
    a(f"s_cselect_b32 s67, s68, {OOB}")
    a(f"s_cselect_b32 s68, {OOB}, s68")
    a("v_mov_b32 v250, s100")
    a("v_mov_b32 v251, 0")
    a("s_mov_b64 exec, 1")
    a(f"s_waitcnt vmcnt({ {4: 5, 8: 20}.get(P['WG0'], 0) })")
    a("buffer_store_dword v250, v251, s[36:39], s68 offen")
    a(f"buffer_store_dword v250, v251, s[36:39], s67 offen {SC}")
    a("s_mov_b64 exec, -1")
    stamp(a, 5)
    a("s_cmp_eq_u32 s72, 0")
    a("s_cbranch_scc1 G2B")
    a.label("G2")
    G2(a)
    a.label("G_SKIP")
    a("s_waitcnt vmcnt(0)")
    a("s_mov_b32 s22, 9")
    a.label("G_BL")
    a("s_barrier")
    a("s_sub_u32 s22, s22, 1")
    a("s_cmp_lg_u32 s22, 0")
    a("s_cbranch_scc1 G_BL")
    if P["GK"]: gsig(a)
    a("s_branch G2")
    a.label("GC")
    a(f"s_setprio {P['GPRIO']}")
    C_work(a)
    a("s_branch G2")

def cbar(a):
    L = newlabel("CB")
    a("s_cmp_ge_u32 s14, 28")
    a(f"s_cbranch_scc1 {L}")
    a("s_barrier")
    a(L + ":")
def chan0(a, d):
    a(f"s_mul_i32 {d}, s14, 3")
    a("s_lshl_b32 s22, s14, 1")
    a("s_add_u32 s22, s22, 24")
    a("s_cmp_lt_u32 s14, 24")
    a(f"s_cselect_b32 {d}, {d}, s22")
def K_stub(a):
    a("s_cmp_ge_u32 s14, 28")
    a("s_cbranch_scc1 KC")
    chan0(a, "s59")
    a("s_cselect_b32 s22, 3, 2")
    a("s_cmp_ge_u32 s13, s22")
    a("s_cbranch_scc1 M_END")
    a("s_add_u32 s59, s59, s13")
    a("s_mul_i32 s47, s3, 80")
    a("s_add_u32 s47, s47, s59")
    resolve(kconv.kload().items, a)
    a("s_branch M_K")
def xcc_publish(a):
    xcc_val(a, "s23")
    a("s_lshl_b32 s22, s101, 2")
    a(f"s_add_u32 s22, s22, {FL_T}")
    a("s_cmp_eq_u32 s12, 5")
    a(f"s_cselect_b32 s22, s22, {OOB}")
    store1(a, "s23", "s22", 2, "")
def emit_KC(a):
    a.label("KC")
    a("s_waitcnt lgkmcnt(0)")
    ptr_rest(a)
    tag_ready(a)
    xcc_publish(a)
    LN2_pre(a, 4)
    a("s_barrier")
    a("s_cmp_eq_u32 s12, 6")
    a("s_cbranch_scc1 KC_A")
    LN2_rd(a, 4)
    a("s_waitcnt lgkmcnt(0)")
    for x in LN2_st(4): a(x)
    a("s_lshl_b32 s21, s14, 1")
    a("s_add_u32 s21, s21, s13")
    p_signal(a, "s21", 0, 2)
    a("s_cmp_eq_u32 s12, 4")
    a("s_cbranch_scc1 M_END")
    a.label("KC_A")
    a("s_cmp_eq_u32 s12, 5")
    a("s_cbranch_scc1 KC_B")
    if P["CPREF"] > 1:
        a("v_min_u32 v13, 26, v1")
        a("v_lshlrev_b32 v13, 2, v13")
        a("s_lshl_b32 s59, s44, 7")
        a(f"s_add_u32 s59, s59, {FL_H}")
        a.label("KC_R")
        a(f"s_sleep {P['CSLEEP']}")
        cpref(a)
        a(f"buffer_load_dword v15, v13, s[36:39], s59 offen {SC}")
        a("s_waitcnt vmcnt(0)")
        check_tags(a, [15], "KC_R")
    a("s_endpgm")
    a.label("KC_B")
    a("s_cmp_lg_u32 s14, 31")
    a("s_cbranch_scc1 LD_N1")
    leader(a, 0, 16, FL_X, 34)
    stamp(a, 1)
    a.label("LD_N1")
    a("s_cmp_lg_u32 s14, 29")
    a("s_cbranch_scc1 LD_N2")
    leader(a, 256, 4, FL_X+1024, 34)
    stamp(a, 1)
    a.label("LD_N2")
    a("s_cmp_lg_u32 s14, 30")
    a("s_cbranch_scc1 LD_N3")
    leader(a, 384, 20, FL_Y, 34, sleep=P["YSLEEP"])
    stamp(a, 1)
    a.label("LD_N3")
    prof_flush(a, 2, 36, 12)
    a("s_endpgm")
def emit_K(a):
    ptr_rest(a)
    a(f"s_mul_i32 s46, s13, {kconv.KREG}")
    a(f"s_add_u32 s46, s46, {L_K}")
    a("s_lshl_b32 s45, s13, 4")
    a(f"s_add_u32 s45, s45, {L_U}")
    pre, kg = kconv.kgen()
    items = kg.items
    itail = [i for i, it in enumerate(items) if it[0] == ("mark", "tail")][0]
    iearly = [i for i, it in enumerate(items) if it[0] == ("mark", "early_end")][0]
    print("kgen items", len(items), "early_end", iearly, "tail at", itail)
    resolve(pre.items, a)
    tag_ready(a)
    xcc_publish(a)
    LN2_pre(a, 4)
    a("s_waitcnt vmcnt(1)")
    stamp(a, 6)
    if Cfg.PROF: a("s_waitcnt lgkmcnt(0)")
    lgq = []; pos = 0
    def sl(n):
        nonlocal pos
        e = min(pos+n, itail)
        resolve(items[pos:e], a, lgq=lgq); pos = e
    sl(P["KPRE"])
    ilow = [i for i, it in enumerate(items) if it[0] == ("mark", "low_regs")][0]
    assert P["KPRE"] < ilow
    bar(a, "K", 0)
    LN2_rd(a, 4)
    lgq.extend(["ln2"]*10)
    for t in range(1, 10):
        if t == 1: sl(P["KS1"])
        elif t in (2, 3):
            sts = LN2_st(4)[:3] if t == 2 else LN2_st(4)[3:]
            if t == 2: a("s_waitcnt lgkmcnt(0)"); del lgq[:]
            for x in sts:
                a(x); sl(P["KS2"]//len(sts))
            if t == 3: assert pos < ilow
        else: sl(P["KSL"])
        bar(a, "K", t)
        if t == P["FB"]:
            a("s_cmp_eq_u32 s12, 6")
            a("s_cbranch_scc1 K_B")
            a("s_lshl_b32 s21, s14, 1")
            a("s_add_u32 s21, s21, s13")
            p_signal(a, "s21", 0, 252)
            a.label("K_B")
    print('V left after B_9:', itail-pos); itail = pos
    bdump(a)
    if P["KPRIO"]: a("s_setprio 3")
    resolve(items[itail:], a, lgq=lgq)
    if P["KPRIO"]: a("s_setprio 0")
    stamp(a, 1)
    a(f"v_mov_b32 v252, {L_WF+4}")
    spin_lds(a, 252, 253, "s100")
    if P["GK"]:
        a("s_lshl_b32 s22, s13, 2")
        a(f"s_add_u32 s22, s22, {L_WF+8}")
        a("v_mov_b32 v252, s22")
        spin_lds(a, 252, 253, "s100")
    st = Stream()
    stamp(st, 2)
    if Cfg.PROF: st("s_waitcnt lgkmcnt(0)")
    st.extend(kconv.conv(SC))
    stamp(st, 4)
    resolve(st.items, a)
    p_signal(a, "s59", 384, 4)
    stamp(a, 5)
    prof_flush(a, 8, 36, 12)
    a("s_endpgm")

def lstamp(a, k=None):
    if not P["LDBG"]: return
    a("s_memrealtime s[76:77]"); a("s_waitcnt lgkmcnt(0)")
    if k is None:
        a("s_sub_u32 m0, s40, 2"); a("v_writelane_b32 v100, s76, m0")
    else: a(f"v_writelane_b32 v100, s76, {k}")
def cpref(a):
    L = newlabel("PC")
    a("s_getpc_b64 s[10:11]")
    a(L + ":")
    a(f"s_sub_u32 s10, s10, {L}-KSTART")
    a("s_subb_u32 s11, s11, 0")
    a("v_lshlrev_b32 v55, 7, v1")
    a("s_and_b32 s22, s14, 3")
    a("s_lshl_b32 s22, s22, 14")
    a("v_add_u32 v55, s22, v55")
    for k in range(2):
        a("v_min_u32 v52, M_END-KSTART, v55")
        a("v_mov_b32 v53, s11")
        a("v_add_co_u32 v52, vcc, s10, v52")
        a("v_addc_co_u32 v53, vcc, 0, v53, vcc")
        a("global_load_dword v56, v[52:53], off sc1")
        a("v_add_u32 v55, 8192, v55")
def L_setup2(a):
    tag_ready(a)
    a("v_lshlrev_b32 v14, 4, v1")
    for dl in range(1, 4): a(f"v_add_u32 v{14+dl}, {dl*(HS-1024)}, v14")
    a(f"v_add_u32 v18, {4*HS}, v14")
    g2_rot(a)
    a("v_and_b32 v30, 7, v1")
    a("v_lshlrev_b32 v30, 7, v30")
    a(f"s_mov_b32 s59, {FL_X}")
    for k in range(3):
        a(f"v_add_u32 v36, {64*k}, v1")
        a("v_mul_u32_u24 v37, 21846, v36")
        a("v_lshrrev_b32 v37, 16, v37")
        a(f"v_mul_u32_u24 v37, {10240-48}, v37")
        a(f"v_lshl_add_u32 v{40+k}, v1, 4, v37")
    chan0(a, "s65")
    a("s_mul_i32 s23, s3, 80")
    a("s_add_u32 s65, s65, s23")
    a("s_lshl_b32 s65, s65, 4")
    a(f"s_add_u32 s65, s65, {WS_XNT}")
    a("s_cmp_lt_u32 s14, 28")
    a(f"s_cselect_b32 s65, s65, {OOB}")
    a(f"v_mov_b32 v44, {L_WF}")
    a("v_mov_b32 v45, s100")
    a("s_mov_b32 s42, 0")
def emit_L(a):
    NL = P["NL"]
    a(f"v_mov_b32 v26, {L_WF}")
    a("v_lshl_add_u32 v26, v1, 2, v26")
    a("v_mov_b32 v28, 0")
    a("ds_write_b32 v26, v28")
    a("s_cmp_ge_u32 s14, 28")
    a("s_cbranch_scc1 LC")
    a(f"s_setprio {P['LPRIO']}")
    a("s_mul_i32 s17, s17, 5")
    a("s_add_u32 s17, s17, s16")
    a(f"s_mul_i32 s22, s3, {P['XROT']}")
    a("s_add_u32 s17, s17, s22")
    a("s_mul_i32 s22, s17, 6554")
    a("s_lshr_b32 s22, s22, 16")
    a("s_mul_i32 s22, s22, 10")
    a("s_sub_u32 s17, s17, s22")
    a("v_lshrrev_b32 v22, 4, v1")
    a("v_bfe_u32 v21, v1, 1, 3")
    a("v_xor_b32 v21, v21, v22")
    a("v_and_b32 v23, 1, v1")
    a("v_lshl_add_u32 v21, v21, 1, v23")
    a("v_xor_b32 v23, 8, v21")
    a("v_mul_u32_u24 v24, 3456, v22")
    a("v_lshl_add_u32 v10, v21, 4, v24")
    a("v_lshl_add_u32 v11, v23, 4, v24")
    a("s_cmp_eq_u32 s16, 13")
    a("s_cselect_b32 s22, 8, 16")
    a(f"v_mov_b32 v25, {OOB}")
    a("v_cmp_gt_u32 vcc, s22, v21")
    a("v_cndmask_b32 v10, v25, v10, vcc")
    a("v_cmp_gt_u32 vcc, s22, v23")
    a("v_cndmask_b32 v11, v25, v11, vcc")
    ws = 8*3456-1024
    a(f"v_add_u32 v12, {2*ws}, v10")
    a(f"v_add_u32 v13, {3*ws}, v11")
    a(f"v_add_u32 v11, {ws}, v11")
    a("v_lshrrev_b32 v20, 3, v1")
    a("v_and_b32 v21, 7, v1")
    a("v_xor_b32 v21, v21, v22")
    a("v_mul_u32_u24 v2, 1280, v20")
    a("v_lshl_add_u32 v2, v21, 4, v2")
    a("v_xor_b32 v6, 64, v2")
    for i in range(1, 4):
        a(f"v_add_u32 v{2+i}, {i*(20480-1024)}, v2")
        a(f"v_add_u32 v{6+i}, {i*(20480-1024)}, v6")
    a("s_mul_i32 s18, s15, 163840")
    a("s_lshl_b32 s20, s16, 8")
    a("s_mov_b32 s19, 0")
    a("s_mov_b32 s40, 0")
    a("s_waitcnt lgkmcnt(0)")
    srd(a, 24, 4, 2048*1280)
    srd(a, 28, 48, 640*3456)
    ptr_rest(a)
    def issue():
        a("s_lshl_b32 s22, s17, 7")
        a("s_add_u32 s22, s22, s18")
        a(f"s_mul_i32 s23, s17, {64*3456}")
        a("s_add_u32 s23, s23, s20")
        xo = [0, 10240, 81920, 92160]; wo = [0, 4*3456, 32*3456, 36*3456]
        for g in range(4):
            a(f"s_add_u32 m0, s19, {16384 + g*4096}")
            a(f"s_add_u32 s41, s23, {wo[g]}")
            for i in range(4):
                a(f"buffer_load_dwordx4 v{10+i}, s[28:31], s41 offen offset:{1024*i} lds")
            if g == 3: a("s_waitcnt vmcnt(59)")
            a(f"s_add_u32 m0, s19, {g*4096}")
            a(f"s_add_u32 s41, s22, {xo[g]}")
            for i in range(4):
                a(f"buffer_load_dwordx4 v{2+4*(g&1)+i}, s[24:27], s41 offen offset:{1024*i} lds")
        a("s_add_u32 s17, s17, 1")
        a("s_cmp_eq_u32 s17, 10")
        a("s_cselect_b32 s17, 0, s17")
        a(f"s_add_u32 s19, s19, {SLOT}")
        a(f"s_cmp_eq_u32 s19, {3*SLOT}")
        a("s_cselect_b32 s19, 0, s19")
        a("s_add_u32 s40, s40, 1")
    a.label("L_P")
    issue()
    a("s_cmp_lt_u32 s40, 2")
    a("s_cbranch_scc1 L_P")
    L_setup2(a)
    a.label("L_LOOP")
    a("s_waitcnt vmcnt(32)")
    bar(a, "L")
    issue()
    a("s_cmp_lt_u32 s40, 10")
    a("s_cbranch_scc1 L_LOOP")
    emit_L_tail(a)
    a.label("LC")
    if P["CPREF"]: cpref(a)
    a("s_waitcnt lgkmcnt(0)")
    ptr_rest(a)
    L_setup2(a)
    a("s_barrier")
    a("s_branch LW_POLL")


def emit_L_tail(a):
    NL = P["NL"]
    xpoll = f"buffer_load_dword v32, v30, s[36:39], s59 offen {SC}"
    a("s_waitcnt vmcnt(32)")
    bar(a, "L", 8)
    a(xpoll)
    a("s_waitcnt vmcnt(1)")
    bar(a, "L", 9)
    bdump(a)
    stamp(a, 1)
    a("s_waitcnt vmcnt(0)")
    a("v_cmp_ne_u32 vcc, s100, v32")
    a("s_cbranch_vccz LW_U")
    a.label("LW_POLL")
    poll_global(a, [xpoll], [32])
    a.label("LW_U")
    wpoll = f"buffer_load_dword v33, v30, s[36:39], s59 offen offset:1024 {SC}"
    a(wpoll)
    for g in range(4):
        a(f"s_mov_b32 m0, {L_U + 1440 + 3072*g}")
        for k in range(3):
            a(f"buffer_load_dwordx4 v{40+k}, s[36:39], s65 offen offset:{1024*k} {SC} lds")
        if g < 3: a("s_add_u32 s65, s65, 655360")
    a("s_waitcnt vmcnt(12)")
    a("v_cmp_ne_u32 vcc, s100, v33")
    a("s_cbranch_vccz LW_LOOP")
    a("s_waitcnt vmcnt(0)")
    a("s_mov_b64 exec, 1")
    a("ds_write_b32 v44, v45 offset:4")
    a("s_mov_b64 exec, -1")
    poll_global(a, [wpoll], [33])
    a.label("LW_LOOP")
    a(f"s_mul_i32 s20, s3, {P['UROT']}")
    a("s_add_u32 s20, s20, s42")
    a("s_and_b32 s21, s20, 3")
    a("s_bfe_u32 s20, s20, 0x20002")
    a(f"s_mul_i32 s40, s20, {P['LSTR']}")
    a("s_add_u32 s40, s46, s40")
    a("s_add_u32 s40, s40, 4")
    a("s_sub_u32 s22, s40, 14")
    a("s_cmp_ge_u32 s40, 14")
    a("s_cselect_b32 s40, s22, s40")
    a("s_mul_i32 s22, s21, 14")
    a("s_add_u32 s40, s40, s22")
    a("s_lshl_b32 s41, s40, 10")
    a("s_add_u32 s41, s41, s57")
    a("s_cmp_lt_u32 s40, 54")
    a(f"s_cselect_b32 s41, s41, {OOB}")
    a("s_mul_i32 s43, s21, 3")
    a("s_add_u32 s43, s43, s20")
    a("s_mul_i32 s43, s43, 5120")
    a(f"s_add_u32 s43, s43, {SLOT-5120}")
    a("s_mul_i32 s22, s21, 5120")
    a(f"s_add_u32 s22, s22, {L_X}")
    a("s_cmp_eq_u32 s20, 0")
    a("s_cselect_b32 s43, s22, s43")
    a(f"s_waitcnt vmcnt({P['WWIN']-5})")
    a("s_mov_b32 m0, s43")
    for dl in range(4):
        a(f"buffer_load_dwordx4 v{14+dl}, s[36:39], s41 offen offset:{1024*dl} {SC} lds")
    a("s_add_u32 m0, s43, 4096")
    a("s_add_u32 s42, s42, 1")
    a(f"buffer_load_dwordx4 v18, s[36:39], s41 offen {SC} lds")
    a(f"s_cmp_lg_u32 s42, {P['UW']}")
    a("s_cbranch_scc1 LW_NU")
    a(f"s_waitcnt vmcnt({5*P['UW']})")
    a("s_mov_b64 exec, 1")
    a("ds_write_b32 v44, v45 offset:4")
    a("s_mov_b64 exec, -1")
    a.label("LW_NU")
    a("s_cmp_lt_u32 s42, 16")
    a("s_cbranch_scc1 LW_LOOP")
    a("s_waitcnt vmcnt(0)")
    a("s_mov_b64 exec, 1")
    a("ds_write_b32 v44, v45")
    a("s_mov_b64 exec, -1")
    stamp(a, 2)
    if P["LDBG"]:
        a("s_lshl_b32 s22, s2, 6"); a(f"s_add_u32 s22, s22, {WS_PROF + (1<<18)}")
        a("v_lshlrev_b32 v2, 2, v1"); a("s_mov_b64 exec, 0xffff")
        a("buffer_store_dword v100, v2, s[36:39], s22 offen"); a("s_mov_b64 exec, -1")
    prof_flush(a, 3, 36, 12)
    a("s_endpgm")

def mega():
    a = Asm()
    a.label("KSTART")
    setup(a)
    a("s_cmp_eq_u32 s12, 7")
    a("s_cbranch_scc1 M_L")
    a("s_cmp_ge_u32 s12, 4")
    a("s_cbranch_scc1 M_KS")
    G_stub(a)
    a.label("M_KS")
    K_stub(a)
    a.label("M_L")
    emit_L(a)
    a.label("M_CS")
    C_stub(a)
    a.label("M_K")
    emit_K(a)
    a.label("M_G")
    emit_G(a)
    emit_KC(a)
    a.label("M_END")
    a("s_endpgm")
    return a.finish(True)

if __name__ == "__main__":
    Cfg.PROF = "--noprof" not in sys.argv
    Cfg.CYC = "--cyc" in sys.argv
    for x in sys.argv[2:]:
        if "=" in x:
            k, v = x.split("="); assert k in P, k; P[k] = int(v) if v.lstrip("-").isdigit() else v.replace("_", " ")
    name = "parallel_sum__ssm_conv_s4__dense_activation_gelu__prompt_kernel"
    body = mega()
    code, kd = kernel_text(name, body, 256)
    hdr = f"; @launch grid=(256,1,1) block=(512,1,1) lds={LDS_TOTAL}\n.amdgcn_target \"amdgcn-amd-amdhsa--gfx950\"\n"
    open(sys.argv[1], "w").write(hdr + code + kd)
```
